```python
import torch

def _softmax(x, axis=-1):
    return torch.softmax(x, dim=axis)
def _gelu(x):
    return torch.nn.functional.gelu(x, approximate="tanh")
def _silu(x):
    return torch.nn.functional.silu(x)
def _sigmoid(x):
    return torch.sigmoid(x)
def _layernorm(x, axis=-1, eps=1e-5):
    m = x.mean(dim=axis, keepdim=True)
    v = x.var(dim=axis, keepdim=True, unbiased=False)
    return (x - m) / torch.sqrt(v + eps)
def _scatter_add(tgt, idx, src, axis=0):
    return tgt.clone().index_add_(axis, idx, src)
def _segment_sum(src, seg, n):
    out = torch.zeros((n,) + src.shape[1:], dtype=src.dtype)
    return out.index_add_(0, seg, src)
def _pad(x, pw):
    flat = tuple(v for pair in reversed(pw) for v in pair)
    return torch.nn.functional.pad(x, flat)

kernel_name = 'interleave_layers__sliding_local_dilated__sliding_local_dilated__prompt'

def setup_inputs():

    _w = (lambda a: (lambda t: t.to(torch.bfloat16) if t.is_floating_point() else t)(torch.as_tensor(a)))
    def _A_setup():
        B, S, D = 1, 2048, 512
        return {
            "x": _w((lambda *s: torch.randn(*s, dtype=torch.bfloat16) * 0.05)(B, S, D)),
            "wqkv": _w((lambda *s: torch.randn(*s, dtype=torch.bfloat16) * 0.05)(D, 3 * D)),
            "wo": _w((lambda *s: torch.randn(*s, dtype=torch.bfloat16) * 0.05)(D, D)),
        }
    _A_in = _A_setup()

    def _B_setup():
        B, S, D = 1, 2048, 512
        return {
            "x": _w((lambda *s: torch.randn(*s, dtype=torch.bfloat16) * 0.05)(B, S, D)),
            "wqkv": _w((lambda *s: torch.randn(*s, dtype=torch.bfloat16) * 0.05)(D, 3 * D)),
            "wo": _w((lambda *s: torch.randn(*s, dtype=torch.bfloat16) * 0.05)(D, D)),
        }
    _B_in = _B_setup()

    return {
        "A_x": _A_in["x"],
        "A_wqkv": _A_in["wqkv"],
        "A_wo": _A_in["wo"],
        "B_x": _B_in["x"],
        "B_wqkv": _B_in["wqkv"],
        "B_wo": _B_in["wo"],
    }

def reference(A_x, A_wqkv, A_wo, B_x, B_wqkv, B_wo):
    def _A_ref(x, wqkv, wo):
        B, S, D = x.shape
        H = 32; Dh = D // H
        W, dil = 8, 2
        qkv = (lambda x, *d: x.permute(*d))((x @ wqkv).reshape(B, S, 3, H, Dh), 2, 0, 3, 1, 4)
        q, k, v = qkv[0], qkv[1], qkv[2]
        scale = Dh ** -0.5
        pos = torch.arange(S)
        off = torch.arange(W) * dil
        idx = pos[:, None] - off[None, :]
        mask = idx >= 0
        idx_c = torch.where(mask, idx, 0).reshape(-1)
        kg = k[:, :, idx_c, :].reshape(B, H, S, W, Dh)
        vg = v[:, :, idx_c, :].reshape(B, H, S, W, Dh)
        logits = torch.einsum("bhsd,bhswd->bhsw", q, kg) * scale
        logits = torch.where(mask[None, None, :, :], logits, -1e9)
        attn = _softmax(logits, axis=-1)
        o = torch.einsum("bhsw,bhswd->bhsd", attn, vg)
        return (lambda x, *d: x.permute(*d))(o, 0, 2, 1, 3).reshape(B, S, D) @ wo

    def _B_ref(x, wqkv, wo):
        B, S, D = x.shape
        H = 32; Dh = D // H
        W, dil = 8, 2
        qkv = (lambda x, *d: x.permute(*d))((x @ wqkv).reshape(B, S, 3, H, Dh), 2, 0, 3, 1, 4)
        q, k, v = qkv[0], qkv[1], qkv[2]
        scale = Dh ** -0.5
        pos = torch.arange(S)
        off = torch.arange(W) * dil
        idx = pos[:, None] - off[None, :]
        mask = idx >= 0
        idx_c = torch.where(mask, idx, 0).reshape(-1)
        kg = k[:, :, idx_c, :].reshape(B, H, S, W, Dh)
        vg = v[:, :, idx_c, :].reshape(B, H, S, W, Dh)
        logits = torch.einsum("bhsd,bhswd->bhsw", q, kg) * scale
        logits = torch.where(mask[None, None, :, :], logits, -1e9)
        attn = _softmax(logits, axis=-1)
        o = torch.einsum("bhsw,bhswd->bhsd", attn, vg)
        return (lambda x, *d: x.permute(*d))(o, 0, 2, 1, 3).reshape(B, S, D) @ wo

    x = A_x
    x = x + _A_ref(_layernorm(x, axis=-1), A_wqkv, A_wo)
    x = x + _B_ref(_layernorm(x, axis=-1), B_wqkv, B_wo)
    x = x + _A_ref(_layernorm(x, axis=-1), A_wqkv, A_wo)
    x = x + _B_ref(_layernorm(x, axis=-1), B_wqkv, B_wo)
    return x
```

```python
import re

TRANS = ("v_exp_f32", "v_log_f32", "v_rcp_f32", "v_rsq_f32", "v_sqrt_f32", "v_sin_f32", "v_cos_f32")

def parse_regs(tok):
    tok = tok.strip()
    tok = tok.lstrip("-")
    m = re.fullmatch(r"abs\((.*)\)", tok)
    if m: tok = m.group(1)
    m = re.fullmatch(r"\|(.*)\|", tok)
    if m: tok = m.group(1)
    if tok in ("vcc", "exec", "m0", "scc"): return [tok]
    if tok in ("vcc_lo", "vcc_hi"): return ["vcc"]
    if tok in ("exec_lo", "exec_hi"): return ["exec"]
    m = re.fullmatch(r"([vas])(\d+)", tok)
    if m: return [(m.group(1), int(m.group(2)))]
    m = re.fullmatch(r"([vas])\[(\d+):(\d+)\]", tok)
    if m: return [(m.group(1), i) for i in range(int(m.group(2)), int(m.group(3)) + 1)]
    return []

class Ins:
    def __init__(self, text, tag=None, after=None, mark=None, notbefore=None):
        self.text = text; self.tag = tag; self.after = after or []; self.mark = mark; self.notbefore = notbefore
        self.reads = set(); self.writes = set()
        self.A = self.B = self.C = self.D = frozenset()
        self.states = 1
        self.waitspec = None
        t = text.split(";")[0].strip()
        if t.endswith(":"):
            self.kind = "label"; self.mn = t; self.states = 0; return
        parts = t.split(None, 1)
        mn = self.mn = parts[0]
        rest = parts[1] if len(parts) > 1 else ""
        ops = [o.strip() for o in re.split(r",(?![^\[]*\])", rest)] if rest else []
        mods = ""
        if ops:
            lp = ops[-1].split(None, 1)
            ops[-1] = lp[0]
            mods = lp[1] if len(lp) > 1 else ""
        self.mods = mods
        R = [parse_regs(o) for o in ops]
        flat = lambda L: set(x for l in L for x in l)
        self.dpp = "dpp" in mn or "quad_perm" in mods or "row_" in mods
        if mn.startswith("v_mfma"):
            self.kind = "mfma"
            self.D, self.A, self.B, self.C = (frozenset(r) for r in R)
            self.writes = set(self.D); self.reads = set(self.A) | set(self.B) | set(self.C)
            self.passes = 8 if "32x32" in mn else 4
        elif mn.startswith("v_"):
            base = re.sub(r"_(e32|e64|dpp|sdwa)$", "", mn)
            self.kind = "trans" if base in TRANS else "valu"
            if "permlane" in mn and "swap" in mn:
                self.writes = flat(R); self.reads = flat(R)
            else:
                self.writes = set(R[0]); self.reads = flat(R[1:])
                if base in ("v_fmac_f32",) or base.startswith("v_dot2c"): self.reads |= set(R[0])
                if base.startswith("v_cndmask") and len(ops) == 3: self.reads.add("vcc")
                if self.dpp: self.reads |= set(R[0])
        elif mn.startswith("buffer_") or mn.startswith("global_"):
            self.kind = "vmem"
            if " lds" in (" " + mods):
                self.reads = flat(R) | {"m0"}
            elif "_load" in mn:
                self.writes = set(R[0]); self.reads = flat(R[1:])
            else:
                self.reads = flat(R)
                if mn.startswith("buffer_store"): self.sdata = set(R[0])
                else: self.sdata = set(R[1])
                self.wide = mn.endswith("x4") or mn.endswith("x3")
        elif mn.startswith("ds_"):
            self.kind = "ds"
            if "read" in mn or "permute" in mn or "swizzle" in mn:
                self.writes = set(R[0]); self.reads = flat(R[1:])
            else:
                self.reads = flat(R)
        elif mn == "s_nop":
            self.kind = "nop"; self.states = int(ops[0], 0) + 1
        elif mn == "s_waitcnt":
            self.kind = "wait"
        elif mn in ("s_barrier",):
            self.kind = "barrier"
        elif mn.startswith("s_cbranch") or mn in ("s_branch", "s_endpgm"):
            self.kind = "branch"
            if "vcc" in mn: self.reads = {"vcc"}
        elif mn.startswith("s_load") or mn in ("s_memtime", "s_memrealtime"):
            self.kind = "smem"; self.writes = set(R[0]); self.reads = flat(R[1:])
        elif mn.startswith("s_"):
            self.kind = "salu"
            if mn.startswith("s_cmp") or mn in ("s_setprio", "s_sleep", "s_bitcmp1_b32", "s_bitcmp0_b32"):
                self.reads = flat(R)
            else:
                self.writes = set(R[0]); self.reads = flat(R[1:])
                if "saveexec" in mn: self.writes.add("exec")
        else:
            raise ValueError("unknown instr " + text)

    @property
    def is_valu(self): return self.kind in ("valu", "trans")

def vregs(s): return {r for r in s if isinstance(r, tuple) and r[0] in "va"}
def sregs(s): return {r for r in s if (isinstance(r, tuple) and r[0] == "s") or r == "vcc"}

def need(p, c):
    n = 0
    if p.is_valu:
        wv = vregs(p.writes); ws = sregs(p.writes)
        if c.kind == "mfma" and wv & c.reads: n = max(n, 2)
        if c.is_valu:
            if "permlane" in c.mn and wv & c.reads: n = max(n, 2)
            if c.dpp and wv & c.reads: n = max(n, 2)
            if (c.mn.startswith("v_readlane") or c.mn.startswith("v_readfirstlane")) and wv & c.reads: n = max(n, 1)
            if ws & c.reads: n = max(n, 4 if "lane" in c.mn else 2)
            if p.kind == "trans" and wv & (c.reads | c.writes): n = max(n, 1)
        if p.kind == "trans" and c.kind in ("vmem", "ds", "mfma") and wv & c.reads: n = max(n, 2)
        if c.kind == "vmem" and ws & c.reads: n = max(n, 5)
        if c.kind in ("salu", "branch") and ws & c.reads: n = max(n, 1)
    if p.kind == "mfma":
        big = p.passes == 8
        if c.kind == "mfma":
            if p.D & (c.A | c.B): n = max(n, 12 if big else 8)
            if p.D & c.C and not (p.D == c.C and p.passes == c.passes): n = max(n, 10 if big else 6)
            if p.D & c.D and not (p.D == c.C): n = max(n, 10 if big else 6)
        elif c.is_valu or c.kind in ("vmem", "ds"):
            if p.D & (c.reads | c.writes): n = max(n, 12 if big else 8)
            if c.is_valu and p.C & c.writes: n = max(n, 7 if big else 3)
    if p.kind == "vmem" and getattr(p, "wide", False):
        if p.sdata & c.writes: n = max(n, 2)
    if p.kind == "salu" and "m0" in p.writes and "m0" in c.reads and c.kind in ("vmem", "ds"): n = max(n, 1)
    return n

class Emitter:
    def __init__(self):
        self.out = []
        self.vm = []
        self.lg = []
        self.marks = set()
        self.nops = 0
        self.vcc_pending = False
    def gap_needed(self, c):
        dist = 0; worst = 0
        for p in reversed(self.out[-24:]):
            if dist >= 20: break
            nd = need(p, c) - dist
            if nd > worst: worst = nd
            dist += p.states
        return worst
    def resolve(self, ins):
        if ins.waitspec:
            parts = []
            for cnt, tag in ins.waitspec:
                lst = self.vm if cnt == "vm" else self.lg
                idx = max([i for i, t in enumerate(lst) if t == tag], default=None)
                if idx is None: raise ValueError("wait on unknown tag %s" % tag)
                n = len(lst) - 1 - idx
                lim = 63 if cnt == "vm" else 15
                n = min(n, lim)
                parts.append(("vmcnt(%d)" if cnt == "vm" else "lgkmcnt(%d)") % n)
            ins.text = "s_waitcnt " + " ".join(parts) + " ; " + ",".join(t for _, t in ins.waitspec)
    def emit(self, ins):
        if isinstance(ins, str): ins = Ins(ins)
        self.resolve(ins)
        g = self.gap_needed(ins)
        if g > 0:
            self.out.append(Ins("s_nop %d" % (g - 1))); self.nops += g
        self.out.append(ins)
        if ins.kind == "vmem": self.vm.append(ins.tag)
        if ins.kind == "ds": self.lg.append(ins.tag)
        if ins.mark: self.marks.add(ins.mark)
        if ins.is_valu and "vcc" in ins.writes: self.vcc_pending = True
        elif "vcc" in ins.reads: self.vcc_pending = False
        return ins
    def ok(self, ins):
        if "vcc" in ins.writes and self.vcc_pending: return False
        return all(a in self.marks for a in ins.after)
    def __call__(self, text, **kw):
        for line in text.strip().split("\n"):
            line = line.strip()
            if not line or line.startswith(";"): continue
            self.emit(Ins(line, **kw))
    def reset_counters(self):
        self.vm = []; self.lg = []
    def text(self):
        return "\n".join((i.text if i.kind == "label" else "    " + i.text) for i in self.out) + "\n"

def W(*spec, **kw):
    i = Ins("s_waitcnt vmcnt(0)", **kw)
    i.waitspec = list(spec)
    return i

def I(text, **kw): return Ins(text, **kw)

def flush(e, sides):
    sides = [s for s in sides if s]
    while any(sides):
        cand = [s for s in sides if s and e.ok(s[0])]
        if not cand: raise ValueError("schedule deadlock: " + str([s[0].text for s in sides if s]))
        best = min(cand, key=lambda s: e.gap_needed(s[0]))
        e.emit(best.pop(0))
        while best and best[0].kind == "label": e.emit(best.pop(0))
```

```python
import sys, struct
from asmlib import *

NAME = "interleave_layers__sliding_local_dilated__sliding_local_dilated__prompt"
KN = NAME + "_kernel"

OPT = dict(st="sc1", ld="sc1", stamps=False)
for a in sys.argv[2:]:
    k, v = a.split("=", 1)
    OPT[k] = {"True": True, "False": False}.get(v, v)
ST = OPT["st"]; LD = OPT["ld"]

WT_OFF = 0; WOT_OFF = 0x300000; HB = 0x400000
LS = 0x29000; CS = 4 * LS
O_XB, O_OB, O_KV, O_SB = 0, 0x10000, 0x20000, 0x28000
WS_SIZE = HB + 32 * CS
STAMP_OFF = 0x2000000
L_X = 0; L_WO = 65536; L_ST = 131072; L_CS = 133120; LDS_BYTES = 163840
T = [0, 1, 2, 3, 4, 5, 98, 99]
vL16, vL16b, vSW, vOS, vStW, vStA, vStB, vSS, vXO = 6, 7, 8, 9, 10, 11, 12, 13, 14
vBIAS = 16; vPM = 20; vONES = 22
vSTG = 24; vRING = 40; vACC = [56, 68]
vQ = [80, 82]; vK = [84, 86]; vKH = 88; vVH = 90; vV = [92, 94]; vC = [96, 97]
vXOLD = [100, 124]
vSN = 104; vSG = 106
vCSQ, vCSK, vCSV = 114, 118, 122
vOBUF = [24, 40, 56, 24]; vWR = 72; vPACC = 104
sWS, sOUT, sX, sSRC, sDBG = 8, 12, 16, 20, 24
sM = 28
sW, sHG, sC, sB, sLAYER, sBUD, sHBIAS, sSCALE = 36, 37, 38, 39, 40, 41, 42, 43
sR, sRKVI, sWOT, sCSB, sXP, sOP, sH = 60, 61, 62, 63, 64, 65, 66
sTMP = list(range(78, 90)) + list(range(94, 102))
_st = [0]
def stmp():
    _st[0] = (_st[0] + 1) % len(sTMP)
    return sTMP[_st[0]]

def vr(b, n): return "v[%d:%d]" % (b, b + n - 1)
def sr(b, n): return "s[%d:%d]" % (b, b + n - 1)
def wreg(typ, f):
    if typ == 0: return "a[%d:%d]" % (4 * f, 4 * f + 3)
    if f < 16: return "a[%d:%d]" % (192 + 4 * f, 192 + 4 * f + 3)
    return vr(128 + 4 * (f - 16), 4)
def fbits(x): return "0x%08x" % struct.unpack("<I", struct.pack("<f", x))[0]

e = Emitter()
ool = []
_lab = [0]
def lab(p):
    _lab[0] += 1
    return "L_%s_%d" % (p, _lab[0])

_stamp = [0]
def stamp(name=""):
    if not OPT["stamps"]: return
    i = _stamp[0]; _stamp[0] += 1
    e("s_memtime s[90:91]")
    e("s_waitcnt lgkmcnt(0)")
    e("v_mov_b32 v15, s90")
    e("s_mov_b64 exec, 1")
    e("buffer_store_dword v15, v%d, %s, s92 offen" % (vL16, sr(sWS, 4)), tag="stamp")
    e("s_mov_b64 exec, -1")
    e("s_add_u32 s92, s92, 4")
    e.vm.pop()

def maxchain(dst, regs):
    out = []
    regs = list(regs)
    out.append("v_max3_u32 v%d, v%d, v%d, v%d" % (dst, regs[0], regs[1], regs[2])); regs = regs[3:]
    while len(regs) >= 2:
        out.append("v_max3_u32 v%d, v%d, v%d, v%d" % (dst, dst, regs[0], regs[1])); regs = regs[2:]
    if regs: out.append("v_max_u32 v%d, v%d, v%d" % (dst, dst, regs[0]))
    return out

def checked(loads, waitins, chk_regs, tmp, reissue=None, retry_wait=0, pre=None, **kw):
    lr, lb = lab("retry"), lab("back")
    if len(chk_regs) == 1:
        chk = []; src = chk_regs[0]
    else:
        chk = maxchain(tmp, chk_regs); src = tmp
    chk = chk + ["v_cmp_eq_u32 vcc, -1, v%d" % src]
    s = [waitins] + [I(c) for c in chk] + [I("s_cbranch_vccnz " + lr), I(lb + ":", **kw)]
    o = Emitter()
    o(lr + ":")
    o("s_sub_u32 s%d, s%d, 1" % (sBUD, sBUD))
    o("s_cbranch_scc1 L_end")
    o("s_waitcnt vmcnt(0)")
    for p in (pre or []): o(p)
    for l in (reissue or loads): o(l)
    o("s_waitcnt vmcnt(%d)" % retry_wait)
    for c in chk: o(c)
    o("s_cbranch_vccnz " + lr)
    o("s_branch " + lb)
    ool.append(o.text())
    return s

def epi(t):
    a = vACC[t & 1]; q, k, v = a, a + 4, a + 8
    s = [W(("lg", "st%d" % t))]
    for r in range(4): s.append(I("v_fmac_f32 v%d, v%d, v%d" % (k + r, vSN + 1, vCSK + r)))
    for r in range(4): s.append(I("v_mul_f32 v%d, v%d, v%d" % (k + r, vSN, k + r)))
    s.append(I("v_cvt_pk_bf16_f32 v%d, v%d, v%d" % (vK[t & 1], k, k + 1)))
    s.append(I("v_cvt_pk_bf16_f32 v%d, v%d, v%d" % (vK[t & 1] + 1, k + 2, k + 3), mark="K%d" % t))
    for r in range(4): s.append(I("v_fmac_f32 v%d, v%d, v%d" % (q + r, vSN + 1, vCSQ + r)))
    s.append(I("v_mul_f32 v%d, s%d, v%d" % (vC[t & 1], sSCALE, vSN)))
    s.append(I("v_cvt_pk_bf16_f32 v%d, v%d, v%d" % (vQ[t & 1], q, q + 1)))
    s.append(I("v_cvt_pk_bf16_f32 v%d, v%d, v%d" % (vQ[t & 1] + 1, q + 2, q + 3), mark="Q%d" % t))
    for r in range(4): s.append(I("v_fmac_f32 v%d, v%d, v%d" % (v + r, vSG + 2 * r + 1, vCSV)))
    for r in range(4): s.append(I("v_mul_f32 v%d, v%d, v%d" % (v + r, vSG + 2 * r, v + r)))
    s.append(I("v_cvt_pk_bf16_f32 v%d, v%d, v%d" % (vV[t & 1], v, v + 1)))
    s.append(I("v_cvt_pk_bf16_f32 v%d, v%d, v%d" % (vV[t & 1] + 1, v + 2, v + 3), mark="V%d" % t))
    return s

def statreads(t, **kw):
    return [I("ds_read_b64 %s, v%d offset:%d" % (vr(vSN, 2), vStA, t * 128), tag="st%d" % t, **kw),
            I("ds_read_b128 %s, v%d offset:%d" % (vr(vSG, 4), vStB, t * 128), tag="st%d" % t),
            I("ds_read_b128 %s, v%d offset:%d" % (vr(vSG + 4, 4), vStB, t * 128 + 16), tag="st%d" % t)]

def attn(t, a, ta, depS_p, depS_c, depV):
    sc, sp, l = a, a + 4, a + 8
    c = vC[t & 1]
    kprev = vKH if t == 0 else vK[(t - 1) & 1]
    s = []
    if t == 0:
        for r in range(4):
            s.append(I("v_add_f32 v%d, s%d, v%d" % (sp + r, sHBIAS, vBIAS + r), after=depS_p if r == 0 else None))
        s.append(I("v_mfma_f32_16x16x16_bf16 %s, %s, %s, %s" % (vr(sp, 4), vr(kprev, 2), vr(vQ[t & 1], 2), vr(sp, 4)), after=depS_c))
    else:
        s.append(I("v_mfma_f32_16x16x16_bf16 %s, %s, %s, %s" % (vr(sp, 4), vr(kprev, 2), vr(vQ[t & 1], 2), vr(vBIAS, 4)), after=depS_p))
    s.append(I("v_mfma_f32_16x16x16_bf16 %s, %s, %s, %s" % (vr(sc, 4), vr(vK[t & 1], 2), vr(vQ[t & 1], 2), vr(vBIAS, 4)), after=depS_c))
    for r in range(4):
        s.append(I("v_cndmask_b32 v%d, v%d, v%d, %s" % (sc + r, sp + r, sc + r, sr(sM + 2 * r, 2))))
    s.append(I("v_max3_f32 v%d, v%d, v%d, v%d" % (sp, sc, sc + 1, sc + 2)))
    s.append(I("v_max_f32 v%d, v%d, v%d" % (sp, sp, sc + 3)))
    for sw in ("v_permlane32_swap_b32", "v_permlane16_swap_b32"):
        s.append(I("v_mov_b32 v%d, v%d" % (sp + 1, sp)))
        s.append(I("%s v%d, v%d" % (sw, sp, sp + 1)))
        s.append(I("v_max_f32 v%d, v%d, v%d" % (sp, sp, sp + 1)))
    s.append(I("v_mul_f32 v%d, -v%d, v%d" % (sp, sp, c)))
    for r in range(4): s.append(I("v_fma_f32 v%d, v%d, v%d, v%d" % (sc + r, sc + r, c, sp)))
    for r in range(4): s.append(I("v_exp_f32 v%d, v%d" % (sc + r, sc + r)))
    s.append(I("v_cvt_pk_bf16_f32 v%d, v%d, v%d" % (ta, sc, sc + 1)))
    s.append(I("v_cvt_pk_bf16_f32 v%d, v%d, v%d" % (ta + 1, sc + 2, sc + 3)))
    if t == 2: pc, pp, va = sp, sp + 2, vV[0]
    elif t == 0: pc, pp, va = sp + 2, sp, vVH
    else: pc, pp, va = sp + 2, sp, vV[0]
    s.append(I("v_and_b32 v%d, v%d, v%d" % (pc, ta, vPM)))
    s.append(I("v_and_b32 v%d, v%d, v%d" % (pc + 1, ta + 1, vPM + 1)))
    s.append(I("v_xor_b32 v%d, v%d, v%d" % (pp, ta, pc)))
    s.append(I("v_xor_b32 v%d, v%d, v%d" % (pp + 1, ta + 1, pc + 1)))
    s.append(I("v_mfma_f32_16x16x16_bf16 %s, %s, %s, 0" % (vr(l, 4), vr(vONES, 2), vr(ta, 2)), after=depV))
    s.append(I("v_mfma_f32_16x16x32_bf16 %s, %s, %s, 0" % (vr(sc, 4), vr(va, 4), vr(sp, 4))))
    st = stmp()
    s.append(I("s_add_u32 s%d, s%d, %d" % (st, sOP, t * 16384)))
    s.append(I("v_rcp_f32 v%d, v%d" % (l, l)))
    for r in range(4): s.append(I("v_mul_f32 v%d, v%d, v%d" % (sc + r, l, sc + r)))
    s.append(I("v_cvt_pk_bf16_f32 v%d, v%d, v%d" % (ta, sc, sc + 1)))
    s.append(I("v_cvt_pk_bf16_f32 v%d, v%d, v%d" % (ta + 1, sc + 2, sc + 3)))
    s.append(I("v_min_u32 v%d, -2, v%d" % (ta + 1, ta + 1)))
    s.append(I("buffer_store_dwordx2 %s, v%d, %s, s%d offen %s" % (vr(ta, 2), vOS, sr(sWS, 4), st, ST), tag="ost", mark="A%d" % t))
    return s

def stage(t, nb_load, nb_check):
    st = stmp()
    loads = ["s_add_u32 s%d, s%d, %d" % (st, sR, O_XB + t * 16384)]
    loads += ["buffer_load_dwordx4 %s, v%d, %s, s%d offen offset:%d %s" % (vr(vSTG + 4 * j, 4), vSW, sr(sWS, 4), st, j * 1024, LD) for j in range(4)]
    s = [I(loads[0], notbefore=nb_load)] + [I(l, tag="xs%d" % t) for l in loads[1:]]
    s[-1].mark = "xl%d" % t
    s += checked(loads, W(("vm", "xs%d" % t), notbefore=nb_check), [vSTG + 4 * j + 3 for j in range(4)], T[4])
    s += [I("ds_write_b128 v%d, %s offset:%d" % (vSW, vr(vSTG + 4 * j, 4), L_X + t * 16384 + j * 1024), tag="xw%d" % t) for j in range(4)]
    s += [W(("lg", "xw%d" % t)), I("s_barrier", mark="B%d" % t)]
    return s

def stats(hf, R, nb_load, nb_check, after=None):
    st = stmp()
    pre = ["v_lshlrev_b32 v%d, 1, v%d" % (T[5], vL16)]
    loads = ["s_add_u32 s%d, s%d, %d" % (st, sR, O_SB + hf * 2048),
             "buffer_load_dwordx4 %s, v%d, %s, s%d offen %s" % (vr(R, 4), T[5], sr(sWS, 4), st, LD),
             "buffer_load_dwordx4 %s, v%d, %s, s%d offen offset:16 %s" % (vr(R + 4, 4), T[5], sr(sWS, 4), st, LD)]
    s = [I(pre[0], notbefore=nb_load, after=after), I(loads[0])] + [I(l, tag="sl%d" % hf) for l in loads[1:]]
    s += checked(loads, W(("vm", "sl%d" % hf), notbefore=nb_check), [R + i for i in range(8)], T[5], pre=pre)
    for o in (0, 1):
        s.append(I("v_add_f32 v%d, v%d, v%d" % (R + o, R + o, R + 2 + o)))
        s.append(I("v_add_f32 v%d, v%d, v%d" % (R + 4 + o, R + 4 + o, R + 6 + o)))
    for o in (0, 1):
        s.append(I("v_add_f32 v%d, v%d, v%d" % (R + o, R + o, R + 4 + o)))
    for o in (0, 1):
        s.append(I("v_add_f32_dpp v%d, v%d, v%d quad_perm:[1,0,3,2] row_mask:0xf bank_mask:0xf" % (R + 2 + o, R + o, R + o)))
    S, SS = R + 2, R + 3
    s += [I(x) for x in [
        "v_mul_f32 v%d, %s, v%d" % (S, fbits(1.0 / 512), S),
        "v_mul_f32 v%d, %s, v%d" % (SS, fbits(1.0 / 512), SS),
        "v_fma_f32 v%d, -v%d, v%d, v%d" % (SS, S, S, SS),
        "v_max_f32 v%d, 0, v%d" % (SS, SS),
        "v_cvt_pk_bf16_f32 v%d, v%d, -v%d" % (R, SS, S),
        "v_lshlrev_b32 v%d, 16, v%d" % (R + 4, R),
        "v_and_b32 v%d, 0xffff0000, v%d" % (R + 1, R),
        "v_add_f32 v%d, %s, v%d" % (R + 4, fbits(1e-5), R + 4),
        "v_cvt_pk_bf16_f32 v%d, v%d, v%d" % (R + 4, R + 4, R + 4),
        "v_lshlrev_b32 v%d, 16, v%d" % (R + 4, R + 4),
        "v_sqrt_f32 v%d, v%d" % (R + 4, R + 4),
        "v_cvt_pk_bf16_f32 v%d, v%d, v%d" % (R + 4, R + 4, R + 4),
        "v_lshlrev_b32 v%d, 16, v%d" % (R + 4, R + 4),
        "v_rcp_f32 v%d, v%d" % (R, R + 4)]]
    s.append(I("ds_write_b64 v%d, %s offset:%d" % (vStW, vr(R, 2), hf * 256), tag="sw%d" % hf, mark="SW%d" % hf))
    return s

def wodma(q, nb, after=None):
    st = stmp()
    s = [I("s_add_u32 s%d, s%d, %d" % (st, sWOT, q * 4096), notbefore=nb, after=after),
         I("s_add_u32 m0, s67, %d" % (q * 4096))]
    s += [I("buffer_load_dwordx4 v%d, %s, s%d offen offset:%d sc1 lds" % (vL16, sr(sWS, 4), st, j * 1024), tag="wo") for j in range(4)]
    return s

def gemm_main(typ, t, last):
    a = vACC[t & 1]
    main = []
    for ks in range(16):
        fr = vr(vRING + 4 * (ks % 4), 4)
        for j in range(3):
            c = vr(a + 4 * j, 4) if ks else "0"
            w = wreg(typ, ks * 3 + j)
            A, B = (w, fr) if j < 2 else (fr, w)
            m = I("v_mfma_f32_16x16x32_bf16 %s, %s, %s, %s" % (vr(a + 4 * j, 4), A, B, c))
            att = []
            if j == 0:
                n = ks + 3
                tt, kk = (t, n) if n < 16 else (t - 1, n - 16)
                if tt >= 0:
                    att.append(I("ds_read_b128 %s, v%d offset:%d" % (vr(vRING + 4 * (n % 4), 4), vL16, L_X + tt * 16384 + kk * 1024), tag="f%d_%d" % (tt, kk)))
                    if n == 16: att[-1].needmark = "B%d" % tt
            if j == 2:
                n = ks + 1
                tt, kk = (t, n) if n < 16 else (t - 1, 0)
                if tt >= 0: att.append(W(("lg", "f%d_%d" % (tt, kk))))
            main.append((m, att))
    return main

def run_step(typ, t, sides_a, sides_b):
    main = gemm_main(typ, t, t == 0)
    sides_a = [list(s) for s in sides_a]; sides_b = [list(s) for s in sides_b]
    schedule2(main[:39], sides_a, sides_b, 0)
    flush(e, sides_a)
    schedule2(main[39:], [], sides_b, 39)
    flush(e, sides_b)

def schedule2(main, sa, sb, base, maxvalu=2):
    sides = sa + sb
    def ready(ins, idx):
        if ins.notbefore is not None and idx < ins.notbefore: return False
        return e.ok(ins)
    def pick(idx, pred):
        for s in sides:
            if s and ready(s[0], idx) and pred(s[0]) and e.gap_needed(s[0]) == 0:
                x = s.pop(0)
                return x, s
        return None, None
    def emit1(x, s):
        e.emit(x)
        while s and s[0].kind == "label": e.emit(s.pop(0))
    heavy = lambda i: i.kind == "trans" or "permlane" in i.mn
    def fill(idx, attached):
        used = 0
        if attached:
            e.emit(attached[0])
            for a in attached[1:]:
                e.emit(a); used += 1
        else:
            x, s = pick(idx, lambda i: not i.is_valu and i.kind != "mfma")
            if x: emit1(x, s)
        while used < maxvalu:
            x, s = pick(idx, lambda i: i.kind != "mfma" and (not heavy(i) or used == 0))
            if not x: break
            emit1(x, s); used += 2 if heavy(x) else 1
    for i, (m, att) in enumerate(main):
        idx = base + i
        for a in att:
            nm = getattr(a, "needmark", None)
            assert nm is None or nm in e.marks, nm
        e.emit(m)
        fill(idx, att)
        while True:
            x, s = pick(idx, lambda i: i.kind == "mfma")
            if not x: break
            emit1(x, s); fill(idx, [])

def oloads(j):
    st = stmp()
    l = ["s_add_u32 s%d, s%d, %d" % (st, 68, j * 4096)]
    l += ["buffer_load_dwordx4 %s, v%d, %s, s%d offen offset:%d %s" % (vr(vOBUF[j] + 4 * i, 4), vL16, sr(sWS, 4), st, i * 1024, LD) for i in range(4)]
    return l
def emit_oloads(j):
    for l in oloads(j): e(l, tag="og%d" % j)

def unpack_x():
    s = []
    for u in range(4):
        for h in range(2):
            src = vXOLD[u >> 1] + 2 * (u & 1) + h
            s.append(I("v_lshlrev_b32 v%d, 16, v%d" % (vPACC + 4 * u + 2 * h, src)))
            s.append(I("v_and_b32 v%d, 0xffff0000, v%d" % (vPACC + 4 * u + 2 * h + 1, src)))
    return s

def publish_stats(sbase_add):
    s, ss = T[0], T[1]
    e("v_add_f32 v%d, v%d, v%d" % (s, vPACC, vPACC + 1))
    e("v_mul_f32 v%d, v%d, v%d" % (ss, vPACC, vPACC))
    e("v_fmac_f32 v%d, v%d, v%d" % (ss, vPACC + 1, vPACC + 1))
    for i in range(2, 16):
        e("v_add_f32 v%d, v%d, v%d" % (s, s, vPACC + i))
        e("v_fmac_f32 v%d, v%d, v%d" % (ss, vPACC + i, vPACC + i))
    st = stmp()
    e("s_add_u32 s%d, s%d, %d" % (st, sR, sbase_add + O_SB))
    e("v_permlane32_swap_b32 v%d, v%d" % (s, ss))
    e("v_add_f32 v%d, v%d, v%d" % (s, s, ss))
    e("v_mov_b32 v%d, v%d" % (ss, s))
    e("v_permlane16_swap_b32 v%d, v%d" % (s, ss))
    e("v_add_f32 v%d, v%d, v%d" % (s, s, ss))
    e("v_min_u32 v%d, -2, v%d" % (s, s))
    e("buffer_store_dword v%d, v%d, %s, s%d offen %s" % (s, vSS, sr(sWS, 4), st, ST), tag="sst")

def publish_x(sbase_add):
    st = stmp()
    e("s_add_u32 s%d, s%d, %d" % (st, sXP, sbase_add))
    for k in range(2):
        e("v_min_u32 v%d, -2, v%d" % (vXOLD[k] + 3, vXOLD[k] + 3))
        e("buffer_store_dwordx4 %s, v%d, %s, s%d offen offset:%d %s" % (vr(vXOLD[k], 4), vL16, sr(sWS, 4), st, k * 1024, ST), tag="xst")

def init_stores(add, dw, q):
    for off, n, v in ((O_XB, 2, vL16), (O_OB, 2, vL16)):
        st = stmp()
        e("s_add_u32 s%d, s%d, %d" % (st, sXP, add + off - dw * 16384))
        for k in range(n):
            e("buffer_store_dwordx4 %s, v%d, %s, s%d offen offset:%d %s" % (vr(q, 4), v, sr(sWS, 4), st, k * 1024, ST), tag="init")
    st = stmp()
    e("s_add_u32 s%d, s%d, %d" % (st, 69, add - dw * 1024))
    e("buffer_store_dwordx4 %s, v%d, %s, s%d offen sc1" % (vr(q, 4), vL16, sr(sWS, 4), st), tag="init")
    st = stmp()
    e("s_add_u32 s%d, s%d, %d" % (st, sR, add + O_SB - dw * 1024))
    e("buffer_store_dword v%d, v%d, %s, s%d offen %s" % (q, vSS, sr(sWS, 4), st, ST), tag="init")

def stage_first(add):
    st, st2 = stmp(), stmp()
    pre = []
    loads = ["s_add_u32 s%d, s%d, %d" % (st, 59, add + O_XB + 3 * 16384), "s_add_u32 s%d, s%d, 4096" % (st2, st)]
    loads += ["buffer_load_dwordx4 %s, v%d, %s, s%d offen offset:%d %s" % (vr(vSTG + 4 * j, 4), vL16, sr(sWS, 4), st if j < 4 else st2, (j & 3) * 1024, LD) for j in range(8)]
    for l in loads: e(l, tag="xs3")
    e("v_add_u32 v%d, s58, v%d" % (T[3], vL16))
    for i in checked(loads, W(("vm", "xs3")), [vSTG + 4 * j + 3 for j in range(8)], T[4]): e.emit(i)
    for j in range(8):
        e("ds_write_b128 v%d, %s offset:%d" % (T[3], vr(vSTG + 4 * j, 4), L_X + 3 * 16384 + j * 1024), tag="xw3")
    e("s_waitcnt lgkmcnt(0)")

def advance_layer():
    for s in (sR, sRKVI, sXP, sOP, 68, 69, 59):
        e("s_add_u32 s%d, s%d, %d" % (s, s, LS))
    e("s_add_u32 s%d, s%d, 1" % (sLAYER, sLAYER))
    e("s_xor_b32 s%d, s%d, 0x80000" % (sWOT, sWOT))

def layer(typ):
    e.reset_counters(); e.marks = set()
    e("s_barrier")
    stamp("B3")
    for k in range(3):
        e("ds_read_b128 %s, v%d offset:%d" % (vr(vRING + 4 * k, 4), vL16, L_X + 3 * 16384 + k * 1024), tag="f3_%d" % k)
    e.emit(W(("lg", "f3_0")))
    cs = [I("v_add_u32 v%d, s%d, v%d" % (T[3], sCSB, vL16)),
          I("ds_read_b128 %s, v%d offset:%d" % (vr(vCSQ, 4), T[3], typ * 3072)),
          I("ds_read_b128 %s, v%d offset:%d" % (vr(vCSK, 4), T[3], typ * 3072 + 1024)),
          I("ds_read_b32 v%d, v%d offset:%d" % (vCSV, T[3], typ * 3072 + 2048))]
    run_step(typ, 3, [stage(2, 0, 24)],
             [stats(1, vACC[0], 4, 28) + statreads(3), cs, wodma(0, 8, ["xl2"]) + wodma(1, 16)])
    stamp("s3")
    a1 = vACC[1]
    st = stmp()
    kvp = [I("v_mov_b32 v%d, v%d" % (a1, vK[1]), after=["V3"]), I("v_mov_b32 v%d, v%d" % (a1 + 1, vK[1] + 1)),
           I("v_mov_b32 v%d, v%d" % (a1 + 2, vV[1])), I("v_min_u32 v%d, -2, v%d" % (a1 + 3, vV[1] + 1)),
           I("buffer_store_dwordx4 %s, v%d, %s, s69 offen sc1" % (vr(a1, 4), vL16, sr(sWS, 4)), tag="kvst", mark="KVP")]
    run_step(typ, 2, [stage(1, 8, 30)],
             [epi(3) + kvp + statreads(2), stats(0, a1 + 4, 18, 38, after=["KVP"]), wodma(2, 20, ["xl1"]) + wodma(3, 28)])
    stamp("s2")
    run_step(typ, 1, [stage(0, 0, 24)],
             [epi(2) + statreads(1), attn(3, vACC[0], T[0], ["K2"], ["Q2"], ["V2"])])
    stamp("s1")
    hl = ["buffer_load_dwordx4 %s, v%d, %s, s%d offen sc1" % (vr(vKH, 4), vL16, sr(sWS, 4), sRKVI)]
    halo = [I(hl[0], tag="halo", notbefore=16)] + checked(hl, W(("vm", "halo"), notbefore=44), [vKH + 3], None, mark="H")
    run_step(typ, 0, [],
             [epi(1) + statreads(0), attn(2, vACC[1], T[0], ["K1"], ["Q1"], ["V1"]), halo])
    stamp("s0")
    l1, l2 = lab("pf"), lab("pf")
    e("s_cmp_lt_u32 s%d, 2" % sW)
    e("s_cbranch_scc1 " + l1)
    n = len(e.vm); emit_oloads(0); emit_oloads(1); del e.vm[n:]
    e(l1 + ":")
    un = unpack_x(); un[0].after = ["V0"]
    flush(e, [epi(0), attn(1, vACC[1], T[0], ["K0"], [], ["V0"]), attn(0, vACC[0], T[2], ["K0"], ["Q0"], ["V0"]), un])
    stamp("E")
    e("s_cmp_lt_u32 s%d, 2" % sW)
    e("s_cbranch_scc0 " + l2)
    emit_oloads(0); emit_oloads(1)
    e(l2 + ":")
    emit_oloads(2)
    def word(n): return I("ds_read_b128 %s, v%d offset:%d" % (vr(vWR + 4 * (n % 8), 4), vL16b, n * 1024), tag="w%d" % n)
    for n in range(7): e.emit(word(n))
    def ocheck(j):
        regs = [vOBUF[j] + 4 * i + d for i in range(4) for d in (1, 3)]
        js = {0: [0, 1, 2], 1: [1, 2, 3], 2: [2, 3], 3: [3]}[j]
        re = [l for jj in js for l in oloads(jj)]
        return checked(None, W(("vm", "og%d" % j)), regs, T[4], reissue=re, retry_wait=4 * (len(js) - 1))
    for i in ocheck(0): e.emit(i)
    e.emit(W(("lg", "w0")))
    stamp("p2start")
    for j in range(4):
        main = []
        for n in range(16 * j, 16 * j + 16):
            ks, u = n // 4, n % 4
            m = I("v_mfma_f32_16x16x32_bf16 %s, %s, %s, %s" % (vr(vPACC + 4 * u, 4), vr(vWR + 4 * (n % 8), 4), vr(vOBUF[j] + 4 * (ks % 4), 4), vr(vPACC + 4 * u, 4)))
            att = []
            if n + 7 < 64: att.append(word(n + 7))
            if n + 1 < 64: att.append(W(("lg", "w%d" % (n + 1))))
            main.append((m, att))
        sides = []
        if j == 0:
            regs = [vOBUF[1] + 4 * i + d for i in range(4) for d in (1, 3)]
            re = oloads(1) + oloads(2)
            c = checked(None, W(("vm", "og1"), notbefore=4), regs, T[4], reissue=re, retry_wait=4)
            sides = [c]
        elif j == 1:
            c = ocheck(2); c[0].notbefore = 6
            sides = [[I(l, tag="og3") for l in oloads(3)] + c]
        elif j == 2:
            c = ocheck(3); c[0].notbefore = 8
            sides = [c]
        sides = [list(s) for s in sides]
        schedule2(main, sides, [], 0)
        flush(e, sides)
    for k in range(2):
        for i in range(4):
            e("v_cvt_pk_bf16_f32 v%d, v%d, v%d" % (vXOLD[k] + i, vPACC + 8 * k + 2 * i, vPACC + 8 * k + 2 * i + 1))
    if typ == 1:
        e("s_cmp_eq_u32 s%d, 3" % sLAYER)
        e("s_cbranch_scc1 L_final")
    publish_x(LS)
    stamp("xpub")
    publish_stats(LS)
    lskip, lni = lab("skip"), lab("noinit")
    e("s_cmp_lt_u32 s%d, 2" % sW)
    e("s_cbranch_scc1 " + lskip)
    e("s_cmp_ge_u32 s%d, 2" % sLAYER)
    e("s_cbranch_scc1 " + lni)
    for i in range(4): e("v_mov_b32 v%d, -1" % (vACC[0] + i))
    init_stores(2 * LS, 0, vACC[0]); init_stores(2 * LS, 2, vACC[0])
    e(lni + ":")
    stage_first(LS)
    e(lskip + ":")
    advance_layer()

def prologue():
    e(f"""
    s_load_dwordx4 s[44:47], s[0:1], 0
    s_load_dwordx2 s[48:49], s[0:1], 16
    s_load_dwordx4 s[52:55], s[0:1], 32
    s_load_dwordx4 s[4:7], s[0:1], 48
    s_load_dwordx2 s[50:51], s[0:1], 64
    s_cmp_ge_u32 s2, 256
    s_cbranch_scc1 L_end
    s_getpc_b64 s[72:73]
    L_pc:
    s_mov_b32 s74, L_codeend-L_pc
    s_mov_b32 s75, 0x00020000
    v_lshlrev_b32 v1, 7, v0
    buffer_load_dword v15, v1, s[72:75], 0 offen
    v_lshrrev_b32 v1, 6, v0
    v_and_b32 v0, 63, v0
    v_readfirstlane_b32 s{sW}, v1
    s_lshr_b32 s3, s2, 3
    s_and_b32 s{sHG}, s3, 7
    s_lshr_b32 s3, s3, 3
    s_and_b32 s{sC}, s2, 7
    s_lshl_b32 s{sC}, s{sC}, 2
    s_add_u32 s{sC}, s{sC}, s3
    s_and_b32 s{sB}, s{sC}, 15
    s_mov_b32 s{sLAYER}, 0
    s_mov_b32 s{sBUD}, 0x20000
    s_mov_b32 s{sSCALE}, {fbits(0.25 * 1.4426950408889634)}
    s_cmp_eq_u32 s{sB}, 0
    s_cselect_b32 s{sHBIAS}, 0xff800000, 0
    s_lshl_b32 s{sH}, s{sHG}, 2
    s_add_u32 s{sH}, s{sH}, s{sW}
    s_mul_i32 s{sR}, s{sC}, {CS}
    s_add_u32 s{sR}, s{sR}, {HB}
    s_lshl_b32 s3, s{sH}, 10
    s_add_u32 s69, s{sR}, s3
    s_add_u32 s69, s69, {O_KV}
    s_cmp_eq_u32 s{sB}, 0
    s_cselect_b32 s3, 0, {CS}
    s_sub_u32 s{sRKVI}, s69, s3
    s_lshl_b32 s3, s{sW}, 14
    s_add_u32 s68, s{sR}, s3
    s_lshl_b32 s{sXP}, s{sHG}, 11
    s_add_u32 s{sXP}, s{sXP}, s68
    s_add_u32 s68, s68, {O_OB}
    s_add_u32 s67, s3, {L_WO}
    s_lshl_b32 s{sWOT}, s{sHG}, 16
    s_add_u32 s{sWOT}, s{sWOT}, s3
    s_add_u32 s{sWOT}, s{sWOT}, {WOT_OFF}
    s_lshr_b32 s3, s{sH}, 1
    s_lshl_b32 s3, s3, 10
    s_add_u32 s{sOP}, s{sR}, s3
    s_add_u32 s{sOP}, s{sOP}, {O_OB}
    s_mul_i32 s{sCSB}, s{sW}, 6144
    s_add_u32 s{sCSB}, s{sCSB}, {L_CS}
    s_and_b32 s58, s{sW}, 1
    s_lshl_b32 s58, s58, 13
    s_add_u32 s59, s{sR}, s58
    v_lshlrev_b32 v{vL16}, 4, v0
    v_add_u32 v{vL16b}, {L_WO}, v{vL16}
    s_lshl_b32 s3, s{sW}, 12
    v_add_u32 v{vSW}, s3, v{vL16}
    s_and_b32 s3, s{sW}, 1
    s_lshl_b32 s3, s3, 3
    v_add_u32 v{vOS}, s3, v{vL16}
    s_lshl_b32 s3, s{sW}, 9
    s_add_u32 s3, s3, {L_ST}
    v_lshrrev_b32 v1, 1, v0
    v_lshlrev_b32 v1, 3, v1
    v_add_u32 v{vStW}, s3, v1
    v_and_b32 v2, 15, v0
    v_lshrrev_b32 v3, 4, v0
    v_lshlrev_b32 v1, 3, v2
    v_add_u32 v{vStA}, s3, v1
    v_lshlrev_b32 v1, 5, v3
    v_add_u32 v{vStB}, s3, v1
    s_lshl_b32 s3, s{sW}, 10
    s_lshl_b32 s70, s{sHG}, 3
    s_add_u32 s3, s3, s70
    v_lshlrev_b32 v1, 6, v2
    v_lshrrev_b32 v4, 5, v0
    v_lshlrev_b32 v4, 2, v4
    v_add3_u32 v{vSS}, v1, v4, s3
    s_lshl_b32 s3, s{sB}, 7
    s_lshl_b32 s70, s{sW}, 5
    s_add_u32 s3, s3, s70
    s_lshr_b32 s70, s{sC}, 4
    s_add_u32 s3, s3, s70
    s_lshl_b32 s3, s3, 10
    s_lshl_b32 s70, s{sHG}, 7
    s_add_u32 s3, s3, s70
    v_lshlrev_b32 v1, 11, v2
    v_lshlrev_b32 v4, 4, v3
    v_add3_u32 v{vXO}, v1, v4, s3
    v_lshlrev_b32 v1, 2, v3
    v_sub_u32 v1, v2, v1
    v_mov_b32 v5, 0xff800000
    v_mov_b32 v{vONES}, 0x3f803f80
    v_mov_b32 v{vONES+1}, 0x3f803f80
    """)
    for r in range(4):
        e(f"""
        v_cmp_le_i32 {sr(sM+2*r,2)}, {r}, v1
        v_subrev_u32 v4, {r}, v1
        v_cmp_gt_u32 s[70:71], 8, v4
        v_cmp_gt_i32 vcc, -8, v4
        s_or_b64 vcc, vcc, s[70:71]
        v_cndmask_b32 v{vBIAS+r}, v5, 0, vcc
        """.replace("v_cndmask_b32 v%d, v5, 0, vcc" % (vBIAS + r), "s_nop 1\nv_cndmask_b32_e64 v%d, v5, 0, vcc" % (vBIAS + r)))
    e(f"""
    v_mov_b32 v4, 0xffff
    v_mov_b32 v5, 0xffff0000
    v_cndmask_b32 v{vPM}, 0, v4, {sr(sM,2)}
    v_cndmask_b32 v1, 0, v5, {sr(sM+2,2)}
    v_or_b32 v{vPM}, v{vPM}, v1
    v_cndmask_b32 v{vPM+1}, 0, v4, {sr(sM+4,2)}
    v_cndmask_b32 v1, 0, v5, {sr(sM+6,2)}
    v_or_b32 v{vPM+1}, v{vPM+1}, v1
    ; transposition unit: type = c>>4, ks = c&15 (= b); wave<3: wqkv block w, wave 3: wo
    s_cmp_eq_u32 s{sW}, 3
    s_movk_i32 s72, 1024
    s_cselect_b32 s72, s72, 3072
    v_lshrrev_b32 v1, 3, v0
    v_mul_u32_u24 v1, s72, v1
    v_and_b32 v4, 7, v0
    v_lshlrev_b32 v4, 4, v4
    v_add_u32 v1, v1, v4
    s_mul_i32 s73, s72, 32
    s_mul_i32 s73, s73, s{sB}
    s_lshl_b32 s74, s{sW}, 10
    s_cmp_eq_u32 s{sW}, 3
    s_cselect_b32 s74, 0, s74
    s_add_u32 s73, s73, s74
    s_lshl_b32 s74, s{sHG}, 7
    s_add_u32 s73, s73, s74
    s_lshl_b32 s75, s72, 3
    s_waitcnt lgkmcnt(0)
    s_mov_b32 s{sWS}, s50
    s_mov_b32 s{sWS+1}, s51
    s_mov_b32 s{sWS+2}, {0x2100000 if OPT['stamps'] else WS_SIZE}
    s_mov_b32 s{sWS+3}, 0x00020000
    s_mov_b32 s{sOUT}, s4
    s_mov_b32 s{sOUT+1}, s5
    s_mov_b32 s{sOUT+2}, 0x200000
    s_mov_b32 s{sOUT+3}, 0x00020000
    s_mov_b32 s{sX}, s44
    s_mov_b32 s{sX+1}, s45
    s_mov_b32 s{sX+2}, 0x200000
    s_mov_b32 s{sX+3}, 0x00020000
    s_mov_b32 s{sDBG}, s6
    s_mov_b32 s{sDBG+1}, s7
    s_mov_b32 s{sDBG+2}, 256
    s_mov_b32 s{sDBG+3}, 0x00020000
    s_cmp_ge_u32 s{sC}, 16
    s_cselect_b64 s[46:47], s[52:53], s[46:47]
    s_cselect_b64 s[48:49], s[54:55], s[48:49]
    s_cmp_eq_u32 s{sW}, 3
    s_cselect_b64 {sr(sSRC,2)}, s[48:49], s[46:47]
    s_mov_b32 s76, 0x80000
    s_cselect_b32 s{sSRC+2}, s76, 0x180000
    s_mov_b32 s{sSRC+3}, 0x00020000
    s_lshl_b32 s76, s{sW}, 12
    """)
    if OPT["stamps"]:
        e(f"""
        s_lshl_b32 s92, s2, 2
        s_add_u32 s92, s92, s{sW}
        s_lshl_b32 s92, s92, 8
        s_add_u32 s92, s92, {STAMP_OFF}
        """)
    stamp("start")
    for q in range(4):
        e("s_add_u32 m0, s76, %d" % (q * 1024))
        e("buffer_load_dwordx4 v1, %s, s73 offen lds" % sr(sSRC, 4), tag="tdma")
        if q < 3: e("s_add_u32 s73, s73, s75")
    for k in range(2):
        e("buffer_load_dwordx4 %s, v%d, %s, 0 offen offset:%d" % (vr(vXOLD[k], 4), vXO, sr(sX, 4), 64 * k), tag="xin")
    for i in range(4): e("v_mov_b32 v%d, -1" % (vACC[0] + i))
    init_stores(0, 0, vACC[0]); init_stores(LS, 0, vACC[0])
    e(f"""
    v_lshrrev_b32 v1, 2, v0
    v_and_b32 v1, 3, v1
    v_and_b32 v4, 3, v0
    s_cmp_eq_u32 s{sW}, 3
    s_cbranch_scc1 L_two
    v_lshl_add_u32 v1, v3, 3, v1
    v_lshlrev_b32 v1, 7, v1
    v_lshl_add_u32 v1, v4, 3, v1
    v_add_u32 v1, s76, v1
    s_lshr_b32 s70, s{sC}, 4
    s_lshl_b32 s70, s70, 5
    s_lshl_b32 s71, s{sHG}, 2
    s_add_u32 s70, s70, s71
    s_mul_i32 s70, s70, 48
    s_mul_i32 s71, s{sB}, 3
    s_add_u32 s70, s70, s71
    s_add_u32 s70, s70, s{sW}
    s_lshl_b32 s70, s70, 10
    s_mov_b32 s71, {48*1024}
    """)
    e.emit(W(("vm", "tdma")))
    for hh in range(4):
        for e2 in range(2):
            e("ds_read_b64_tr_b16 %s, v1 offset:%d" % (vr(vSTG + 4 * hh + 2 * e2, 2), hh * 32 + e2 * 512))
    e(f"""
    s_branch L_tstore
    L_two:
    v_lshl_add_u32 v1, v3, 2, v1
    v_lshlrev_b32 v1, 7, v1
    v_lshl_add_u32 v1, v4, 4, v1
    v_add_u32 v1, s76, v1
    s_lshr_b32 s70, s{sC}, 4
    s_lshl_b32 s70, s70, 3
    s_add_u32 s70, s70, s{sHG}
    s_lshl_b32 s70, s70, 4
    s_add_u32 s70, s70, s{sB}
    s_lshl_b32 s70, s70, 12
    s_add_u32 s70, s70, {WOT_OFF}
    s_mov_b32 s71, 1024
    """)
    e.emit(W(("vm", "tdma")))
    for u in range(4):
        for e2 in range(2):
            e("ds_read_b64_tr_b16 %s, v1 offset:%d" % (vr(vSTG + 4 * u + 2 * e2, 2), (u >> 1) * 64 + (u & 1) * 8 + e2 * 2048))
    e("L_tstore:")
    e("s_waitcnt lgkmcnt(0)")
    for q in range(4):
        e("buffer_store_dwordx4 %s, v%d, %s, s70 offen sc1" % (vr(vSTG + 4 * q, 4), vL16, sr(sWS, 4)), tag="tst")
        if q < 3: e("s_add_u32 s70, s70, s71")
    e.emit(W(("vm", "xin")))
    for i in unpack_x(): e.emit(i)
    e(f"""
    s_getreg_b32 s70, hwreg(HW_REG_XCC_ID, 0, 4)
    s_or_b32 s70, s70, 0x80
    v_mov_b32 v4, s70
    s_lshl_b32 s70, s{sC}, 3
    s_add_u32 s70, s70, s{sHG}
    v_mov_b32 v5, s70
    s_waitcnt vmcnt(0)
    s_barrier
    s_cmp_eq_u32 s{sW}, 0
    s_cbranch_scc0 L_noflag
    s_mov_b64 exec, 1
    buffer_store_byte v4, v5, {sr(sDBG,4)}, 0 offen sc1
    s_mov_b64 exec, -1
    L_noflag:
    """)
    stamp("flag")
    publish_x(0)
    publish_stats(0)
    e(f"""
    s_cmp_eq_u32 s{sW}, 0
    s_cbranch_scc0 L_flagok
    v_lshrrev_b32 v5, 2, v{vL16}
    v_mov_b32 v3, 0x80808080
    L_poll:
    buffer_load_dword v4, v5, {sr(sDBG,4)}, 0 offen sc1
    s_sub_u32 s{sBUD}, s{sBUD}, 1
    s_cbranch_scc1 L_end
    s_waitcnt vmcnt(0)
    v_and_b32 v4, v3, v4
    v_cmp_ne_u32 vcc, v3, v4
    s_cbranch_vccnz L_poll
    L_flagok:
    s_barrier
    """)
    stamp("allflags")
    e.reset_counters()
    e(f"""
    s_mul_i32 s70, s{sH}, {48*1024}
    """)
    for typ in range(2):
        for f in range(48):
            if f % 4 == 0:
                st = stmp() if False else 71 + (f // 4) % 2
                e("s_add_u32 s%d, s70, %d" % (st, WT_OFF + typ * 32 * 48 * 1024 + f * 1024))
            e("buffer_load_dwordx4 %s, v%d, %s, s%d offen offset:%d sc1" % (wreg(typ, f), vL16, sr(sWS, 4), st, (f % 4) * 1024), tag="W%d" % typ)
    for i in range(4): e("v_mov_b32 v%d, 0x3f803f80" % (vRING + i))
    e("v_add_u32 v%d, s%d, v%d" % (T[3], sCSB, vL16))
    for typ in range(2):
        e.emit(W(("vm", "W%d" % typ)))
        a = vACC[typ]
        for ks in range(16):
            for j in range(3):
                w = wreg(typ, ks * 3 + j); o = vr(vRING, 4)
                A, B = (w, o) if j < 2 else (o, w)
                e("v_mfma_f32_16x16x32_bf16 %s, %s, %s, %s" % (vr(a + 4 * j, 4), A, B, vr(a + 4 * j, 4) if ks else "0"))
        e("ds_write_b128 v%d, %s offset:%d" % (T[3], vr(a, 4), typ * 3072))
        e("ds_write_b128 v%d, %s offset:%d" % (T[3], vr(a + 4, 4), typ * 3072 + 1024))
        e("ds_write_b32 v%d, v%d offset:%d" % (T[3], a + 8, typ * 3072 + 2048))
    stamp("wloaded")
    e(f"""
    s_cmp_lt_u32 s{sW}, 2
    s_cbranch_scc1 L_loop
    """)
    stage_first(0)

prologue()
e("L_loop:")
layer(0)
layer(1)
e("s_branch L_loop")
e("L_final:")
for k in range(2):
    e("buffer_store_dwordx4 %s, v%d, %s, 0 offen offset:%d" % (vr(vXOLD[k], 4), vXO, sr(sOUT, 4), 64 * k))
stamp("end")
e("L_end:")
e("s_endpgm")

hdr = open("cdna_kernels/%s.s.ref" % NAME).read().split("; Override")[0]
out = hdr + "; Persistent fused kernel: 32 clusters of 8 workgroups x 64 same-parity rows; generated by a script.\n"
out += "; @launch grid=(256,1,1) block=(256,1,1) lds=%d\n" % LDS_BYTES
out += '.amdgcn_target "amdgcn-amd-amdhsa--gfx950"\n.text\n.globl %s\n.p2align 8\n.type %s,@function\n%s:\n' % (KN, KN, KN)
out += e.text() + "".join(ool) + "L_codeend:\n"
out += ".p2align 8\n.fill 8192, 4, 0xbf800000\n" if False else ""
out += """.section .rodata,"a"
.p2align 6
.amdhsa_kernel %s
  .amdhsa_next_free_vgpr 512
  .amdhsa_next_free_sgpr 102
  .amdhsa_accum_offset 256
  .amdhsa_group_segment_fixed_size 0
  .amdhsa_kernarg_size 72
  .amdhsa_user_sgpr_count 2
  .amdhsa_user_sgpr_kernarg_segment_ptr 1
  .amdhsa_system_sgpr_workgroup_id_x 1
  .amdhsa_float_denorm_mode_32 3
.end_amdhsa_kernel
""" % KN
open(sys.argv[1], "w").write(out)
print("instrs", len(e.out), "nop states", e.nops, "stamps", _stamp[0], file=sys.stderr)
```

```python
import re

TRANS = ("v_exp_f32", "v_log_f32", "v_rcp_f32", "v_rsq_f32", "v_sqrt_f32", "v_sin_f32", "v_cos_f32")

def parse_regs(tok):
    tok = tok.strip()
    tok = tok.lstrip("-")
    m = re.fullmatch(r"abs\((.*)\)", tok)
    if m: tok = m.group(1)
    m = re.fullmatch(r"\|(.*)\|", tok)
    if m: tok = m.group(1)
    if tok in ("vcc", "exec", "m0", "scc"): return [tok]
    if tok in ("vcc_lo", "vcc_hi"): return ["vcc"]
    if tok in ("exec_lo", "exec_hi"): return ["exec"]
    m = re.fullmatch(r"([vas])(\d+)", tok)
    if m: return [(m.group(1), int(m.group(2)))]
    m = re.fullmatch(r"([vas])\[(\d+):(\d+)\]", tok)
    if m: return [(m.group(1), i) for i in range(int(m.group(2)), int(m.group(3)) + 1)]
    return []

class Ins:
    def __init__(self, text, tag=None, after=None, mark=None, notbefore=None):
        self.text = text; self.tag = tag; self.after = after or []; self.mark = mark; self.notbefore = notbefore
        self.reads = set(); self.writes = set()
        self.A = self.B = self.C = self.D = frozenset()
        self.states = 1
        self.waitspec = None
        self.blk = None
        t = text.split(";")[0].strip()
        if t.endswith(":"):
            self.kind = "label"; self.mn = t; self.states = 0; return
        parts = t.split(None, 1)
        mn = self.mn = parts[0]
        rest = parts[1] if len(parts) > 1 else ""
        ops = [o.strip() for o in re.split(r",(?![^\[]*\])", rest)] if rest else []
        mods = ""
        if ops:
            lp = ops[-1].split(None, 1)
            ops[-1] = lp[0]
            mods = lp[1] if len(lp) > 1 else ""
        self.mods = mods
        R = [parse_regs(o) for o in ops]
        flat = lambda L: set(x for l in L for x in l)
        self.dpp = "dpp" in mn or "quad_perm" in mods or "row_" in mods
        if mn.startswith("v_mfma"):
            self.kind = "mfma"
            self.D, self.A, self.B, self.C = (frozenset(r) for r in R)
            self.writes = set(self.D); self.reads = set(self.A) | set(self.B) | set(self.C)
            self.passes = 8 if "32x32" in mn else 4
        elif mn.startswith("v_"):
            base = re.sub(r"_(e32|e64|dpp|sdwa)$", "", mn)
            self.kind = "trans" if base in TRANS else "valu"
            if "permlane" in mn and "swap" in mn:
                self.writes = flat(R); self.reads = flat(R)
            else:
                self.writes = set(R[0]); self.reads = flat(R[1:])
                if base in ("v_fmac_f32",) or base.startswith("v_dot2c"): self.reads |= set(R[0])
                if base.startswith("v_cndmask") and len(ops) == 3: self.reads.add("vcc")
                if self.dpp: self.reads |= set(R[0])
        elif mn.startswith("buffer_") or mn.startswith("global_"):
            self.kind = "vmem"
            if " lds" in (" " + mods):
                self.reads = flat(R) | {"m0"}
            elif "_load" in mn:
                self.writes = set(R[0]); self.reads = flat(R[1:])
            else:
                self.reads = flat(R)
                if mn.startswith("buffer_store"): self.sdata = set(R[0])
                else: self.sdata = set(R[1])
                self.wide = mn.endswith("x4") or mn.endswith("x3")
        elif mn.startswith("ds_"):
            self.kind = "ds"
            if "read" in mn or "permute" in mn or "swizzle" in mn:
                self.writes = set(R[0]); self.reads = flat(R[1:])
            else:
                self.reads = flat(R)
        elif mn == "s_nop":
            self.kind = "nop"; self.states = int(ops[0], 0) + 1
        elif mn == "s_waitcnt":
            self.kind = "wait"
        elif mn in ("s_barrier",):
            self.kind = "barrier"
        elif mn.startswith("s_cbranch") or mn in ("s_branch", "s_endpgm"):
            self.kind = "branch"
            if "vcc" in mn: self.reads = {"vcc"}
        elif mn.startswith("s_load") or mn in ("s_memtime", "s_memrealtime"):
            self.kind = "smem"; self.writes = set(R[0]); self.reads = flat(R[1:])
        elif mn.startswith("s_"):
            self.kind = "salu"
            if mn.startswith("s_cmp") or mn in ("s_setprio", "s_sleep", "s_bitcmp1_b32", "s_bitcmp0_b32"):
                self.reads = flat(R)
            else:
                self.writes = set(R[0]); self.reads = flat(R[1:])
                if "saveexec" in mn: self.writes.add("exec")
        else:
            raise ValueError("unknown instr " + text)

    @property
    def is_valu(self): return self.kind in ("valu", "trans")

def vregs(s): return {r for r in s if isinstance(r, tuple) and r[0] in "va"}
def sregs(s): return {r for r in s if (isinstance(r, tuple) and r[0] == "s") or r == "vcc"}

def need(p, c):
    n = 0
    if p.is_valu:
        wv = vregs(p.writes); ws = sregs(p.writes)
        if c.kind == "mfma" and wv & c.reads: n = max(n, 2)
        if c.is_valu:
            if "permlane" in c.mn and wv & c.reads: n = max(n, 2)
            if c.dpp and wv & c.reads: n = max(n, 2)
            if (c.mn.startswith("v_readlane") or c.mn.startswith("v_readfirstlane")) and wv & c.reads: n = max(n, 1)
            if ws & c.reads: n = max(n, 4 if "lane" in c.mn else 2)
            if p.kind == "trans" and wv & (c.reads | c.writes): n = max(n, 1)
        if p.kind == "trans" and c.kind in ("vmem", "ds", "mfma") and wv & c.reads: n = max(n, 2)
        if c.kind == "vmem" and ws & c.reads: n = max(n, 5)
        if c.kind in ("salu", "branch") and ws & c.reads: n = max(n, 1)
    if p.kind == "mfma":
        big = p.passes == 8
        if c.kind == "mfma":
            if p.D & (c.A | c.B): n = max(n, 12 if big else 8)
            if p.D & c.C and not (p.D == c.C and p.passes == c.passes): n = max(n, 10 if big else 6)
            if p.D & c.D and not (p.D == c.C): n = max(n, 10 if big else 6)
        elif c.is_valu or c.kind in ("vmem", "ds"):
            if p.D & (c.reads | c.writes): n = max(n, 12 if big else 8)
            if c.is_valu and p.C & c.writes: n = max(n, 7 if big else 3)
    if p.kind == "vmem" and getattr(p, "wide", False):
        if p.sdata & c.writes: n = max(n, 2)
    if p.kind == "salu" and "m0" in p.writes and "m0" in c.reads and c.kind in ("vmem", "ds"): n = max(n, 1)
    return n

heavy = lambda i: i.kind == "trans" or "permlane" in i.mn
LAT = {"vm": 400.0, "lg": 110.0}

class Emitter:
    def __init__(self):
        self.out = []
        self.vm = []
        self.lg = []
        self.marks = {}
        self.nops = 0
        self.vcc_pending = False
        self.blk = None; self._nblk = 0; self._saved = None
        self.t = 0.0; self.t_valu = 0.0; self.t_mfma = 0.0; self.t_mem = {'vmem': -1e9, 'ds': -1e9}
        self.drop = lambda ins: False
    def begin_cond(self, keep=False):
        self._nblk += 1; self.blk = self._nblk
        self._saved = None if keep else (len(self.vm), len(self.lg))
    def end_cond(self):
        self.blk = None
        if self._saved:
            del self.vm[self._saved[0]:]; del self.lg[self._saved[1]:]
    def gap_needed(self, c):
        dist = 0; worst = 0
        for p in reversed(self.out[-120:]):
            if dist >= 20: break
            nd = need(p, c) - dist
            if nd > worst: worst = nd
            if p.blk is None or p.blk == self.blk: dist += p.states
        return worst
    def _find(self, cnt, tag):
        lst = self.vm if cnt == "vm" else self.lg
        idx = max([i for i, t in enumerate(lst) if t[0] == tag], default=None)
        if idx is None: raise ValueError("wait on unknown tag %s" % tag)
        return lst, idx
    def ready_time(self, ins):
        r = 0.0
        for cnt, tag in (ins.waitspec or []):
            lst, idx = self._find(cnt, tag)
            r = max([r] + [x[1] + x[2] for x in lst[max(0, idx - 40):idx + 1]])
        return r
    def resolve(self, ins):
        if ins.waitspec:
            best = {}
            for cnt, tag in ins.waitspec:
                lst, idx = self._find(cnt, tag)
                n = min(len(lst) - 1 - idx, 63 if cnt == "vm" else 15)
                best[cnt] = min(n, best.get(cnt, 99))
            parts = [("vmcnt(%d)" if cnt == "vm" else "lgkmcnt(%d)") % n for cnt, n in best.items()]
            ins.text = "s_waitcnt " + " ".join(parts) + " ; " + ",".join(t for _, t in ins.waitspec)
    def cost(self, ins, gap=0):
        start = self.t + 4.0 * gap
        if ins.kind == "label": return start, start
        if ins.is_valu:
            start = max(start, self.t_valu); return start, start + (8.4 if heavy(ins) else 4.45)
        if ins.kind == "mfma":
            start = max(start, self.t_mfma); return start, start + 4.0
        if ins.waitspec:
            return start, max(start + 4.0, self.ready_time(ins))
        d = 4.0 * ins.states
        if ins.kind in ("ds", "vmem"):
            d = 8.0
            if gap == 0 and self.out and self.out[-1].is_valu: start += 4.0
        if ins.mn == "ds_write_b128": d = 28.0
        if ins.mn == "ds_write_b64": d = 14.0
        if ins.mn.startswith("buffer_store"): d = 48.0 if ins.mn.endswith("x4") else 28.0
        if ins.kind == "branch": d = 12.0
        return start, start + d
    def emit(self, ins):
        if isinstance(ins, str): ins = Ins(ins)
        if self.drop(ins):
            if ins.mark: self.marks[ins.mark] = self.t
            return None
        self.resolve(ins)
        g = self.gap_needed(ins)
        start, end = self.cost(ins, g)
        if g > 0:
            n = Ins("s_nop %d" % (g - 1)); n.blk = self.blk; n.t = self.t
            self.out.append(n); self.nops += g
        ins.blk = self.blk; ins.t = start
        self.out.append(ins)
        self.t = end
        if ins.kind == "mfma": self.t_mfma = start + 16.0; self.t_valu = start + 8.0
        lat = getattr(ins, "lat", None)
        if ins.kind == "vmem": self.vm.append((ins.tag, start, lat or LAT["vm"]))
        if ins.kind == "ds": self.lg.append((ins.tag, start, lat or LAT["lg"]))
        if ins.mark: self.marks[ins.mark] = end
        if ins.is_valu and "vcc" in ins.writes: self.vcc_pending = True
        elif "vcc" in ins.reads: self.vcc_pending = False
        return ins
    def ok(self, ins):
        if "vcc" in ins.writes and self.vcc_pending: return False
        return all(a in self.marks for a in ins.after)
    def __call__(self, text, **kw):
        for line in text.strip().split("\n"):
            line = line.strip()
            if not line or line.startswith(";"): continue
            self.emit(Ins(line, **kw))
    def text(self, times=False):
        def f(i):
            if i.kind == "label": return i.text
            return "    " + i.text + (("  ; @%d" % i.t) if times and hasattr(i, "t") else "")
        return "\n".join(f(i) for i in self.out) + "\n"

def W(*spec, **kw):
    d = kw.pop("delay", None)
    i = Ins("s_waitcnt vmcnt(0)", **kw)
    i.delay = d
    i.waitspec = list(spec)
    return i

def I(text, lat=None, delay=None, gapmin=None, glue=False, **kw):
    i = Ins(text, **kw)
    i.glue = glue
    i.lat = lat
    i.delay = delay
    i.gapmin = gapmin
    return i

def run(e, main, sides, longest=False, memgap=44.0, drain=True, tol=1.0):
    ismem = lambda i: i.kind in ("vmem", "ds")
    def emit1(s):
        x = s.pop(0)
        r = e.emit(x)
        if r is not None and ismem(x): e.t_mem[x.kind] = x.t
        while s and (s[0].kind == "label" or getattr(x, "glue", False)):
            x = s.pop(0); e.emit(x)
    def timely(i):
        d = getattr(i, "delay", None)
        if d and (d[0] not in e.marks or e.t < e.marks[d[0]] + d[1]): return False
        if i.waitspec and e.ready_time(i) > e.t + 4.0: return False
        if ismem(i) and e.t < e.t_mem[i.kind] + (getattr(i, "gapmin", None) or memgap): return False
        return True
    def force(mark, depth=0):
        while mark not in e.marks:
            src = [s for s in sides if any(i.mark == mark for i in s)]
            if not src or depth > 8: raise ValueError("nobody provides mark " + mark)
            s = src[0]
            miss = [a for a in s[0].after if a not in e.marks]
            if miss: force(miss[0], depth + 1); continue
            if not e.ok(s[0]):
                for o in sides:
                    if o and o is not s and "vcc" in o[0].reads: emit1(o); break
                else: raise ValueError("vcc deadlock")
                continue
            emit1(s)
    def heads():
        H = [s for s in sides if s and e.ok(s[0]) and timely(s[0])]
        return sorted(H, key=lambda s: -len(s)) if longest else H
    def starved(i):
        if not hasattr(i, "seen"): i.seen = e.t
        return e.t - i.seen > getattr(i, 'patience', 70.0) and not e.out[-1].is_valu
    def step():
        limit = e.t_mfma
        H = heads()
        if e.t + 1.0 < e.t_valu:
            for s in H:
                if not s[0].is_valu and s[0].kind != "mfma" and e.gap_needed(s[0]) == 0: emit1(s); return True
        for s in H:
            if s[0].kind == "mfma" or e.gap_needed(s[0]): continue
            st, en = e.cost(s[0])
            if ismem(s[0]):
                if (not e.out[-1].is_valu and st + 8.0 <= limit + tol) or starved(s[0]): emit1(s); return True
                continue
            if en <= limit + tol or (not s[0].is_valu and st + 4.0 <= limit + tol): emit1(s); return True
        free = int((limit + tol - e.t) // 4)
        for s in H:
            if s[0].kind == "mfma" and e.gap_needed(s[0]) <= max(free, 0): emit1(s); return True
        if free >= 1:
            gs = [e.gap_needed(s[0]) for s in H]
            gs = [g for g in gs if g > 1 or (g == 1 and e.t + 1.0 < e.t_valu)]
            if gs:
                e.emit(Ins("s_nop %d" % (min(free, min(gs)) - 1))); return True
        return False
    for m, att in main:
        for x in [m] + att:
            for nm in getattr(x, "need", []): force(nm)
        while step(): pass
        e.emit(m)
        for a in att: e.emit(a)
    if drain: flush(e, sides, memgap)

def flush(e, sides, memgap=0.0, until=None, longest=False, first=None):
    ismem = lambda i: i.kind in ("vmem", "ds")
    while any(sides) and not (until and until in e.marks):
        best = None
        for s in sides:
            if not s or not e.ok(s[0]): continue
            i = s[0]
            st, en = e.cost(i, e.gap_needed(i))
            if i.waitspec: st = max(st, e.ready_time(i) - 4.0)
            d = getattr(i, "delay", None)
            if d:
                if d[0] not in e.marks: st += 1e6
                else: st = max(st, e.marks[d[0]] + d[1])
            if ismem(i): st = max(st - 4.5, e.t_mem[i.kind] + (getattr(i, "gapmin", None) or memgap))
            if best is None or st < best[0] - 0.01 or (longest and st < best[0] + 0.01 and len(s) > len(best[1]) and best[1] is not first): best = (st, s)
        if best is None: raise ValueError("schedule deadlock: " + str([s[0].text for s in sides if s]))
        s = best[1]
        x = s.pop(0)
        r = e.emit(x)
        if r is not None and ismem(x): e.t_mem[x.kind] = x.t
        while s and (s[0].kind == "label" or getattr(x, "glue", False)):
            x = s.pop(0); e.emit(x)
```

```python
import sys, struct
from asmlib3 import *

NAME = "interleave_layers__sliding_local_dilated__sliding_local_dilated__prompt"
KN = NAME + "_kernel"
OPT = dict(stamps=False, force="", rot=1, bench="", hgo=0, only="", g0st=0, bdrop="", drop="", times=False, w64=0, pace=80, g0gap=40, g0tol=4, initat=2, tsat=5, f2at=10, tcat=10, flat=12, s2at=14, wb0=8, wbper=4, h0d=500, wbx=11, x1d=560, wgap=64, wgap2=40, lgap=64, lgap2=30, bks=12, pgap=36, s0d=800)
for a in sys.argv[2:]:
    k, v = a.split("=", 1)
    OPT[k] = {"True": True, "False": False}.get(v, int(v) if v.lstrip("-").isdigit() else v)
LD = "sc1"
ST = ""

WT_OFF = 0; WOT_OFF = 0x180000; FL1 = 0x280000; FL2 = 0x282000; EPOCH = 0x284000; HB = 0x288000
O_XB = [0, 0x10000]; O_OB = [0x20000, 0x30000]; O_KV = 0x40000; O_SB = [0x68000, 0x69000]; CS = 0x6a000
WS_SIZE = HB + 32 * CS
STAMP_OFF = 0x2000000
L_X = 0; L_WO = [32768, 98304]; LDS_BYTES = 163840; L_ST0 = 8192
def slot(i): return (7 - ((i + 5) % 7)) * 12288
T = [0, 1, 2, 3, 4, 5]
vL16, vSW, vOS, vSL, vSS, vXO, vID = 6, 7, 8, 9, 10, 11, 14
vL16b = 5; vDUM = 96
vCS = [(12, 13, 120), (121, 122, 123)]
vBIAS = 16; vPM = 20; vONES = 22
vSTG = 24; vRING = 40; vACC = [56, 68]
vH = 98
vXOLD = [100, 124]
vOBUF = [24, 40, 56, 24]; vWR = 72; vPACC = 104
class RM: pass
N = RM()
N.acc = lambda t: vACC[t & 1]
N.q = lambda t: 80 + 2 * (t & 1); N.k = lambda t: 88 if t < 0 else 84 + 2 * (t & 1)
N.v = lambda t: 92 + 2 * (t & 1); N.c = lambda t: 96 + (t & 1)
N.kh = 88
N.rs = lambda t: 104 + (t & 1); N.nm = lambda t: 106 + (t & 1); N.rs2 = lambda t: 108 + (t & 1); N.nm2 = lambda t: 110 + (t & 1)
N.va = lambda t: (92, True) if t == 2 else ((90, False) if t == 0 else (92, False))
Z = RM()
Z.acc = lambda t: 128 + 12 * t
Z.q = lambda t: 216 + 2 * t; Z.k = lambda t: 80 if t < 0 else (72 if t == 3 else 224 + 2 * t)
Z.v = lambda t: 88 + 2 * t; Z.c = lambda t: 244 + t
Z.rs = lambda t: 176 + 4 * t; Z.nm = lambda t: 177 + 4 * t; Z.rs2 = lambda t: 178 + 4 * t; Z.nm2 = lambda t: 179 + 4 * t
Z.va = lambda t: (86 + 2 * t, False)
zXB = [176, 196]; zCS = 216; zG = 228; zR = 232; zONE = 236; zA = 240; zAO = 244; zTR = 248; zXV = 250; zUV = 251; zUA = 252; zWV = 254
zFL = 60; zF1 = 62; zF2 = 64
sWS, sOUT, sX, sWA, sM = 8, 12, 16, 20, 28
sW, sHG, sC, sB, sROT, sBUD, sHBIAS, sSCALE = 36, 37, 38, 39, 40, 41, 42, 43
sU1, sU2 = 44, 48
sXBASE, sUS, sUD, sW3K, sW1K, sN1, sN2, sFO1, sFO2 = 52, 53, 56, 59, 4, 5, 6, 7, 93
sR, sKVI, sKVO, sXP, sOI, sOP, sOL, sF, sF2, sWB, sWOT, sWL = range(60, 72)
sOLP = 69
sTMP = list(range(78, 90)) + list(range(94, 102))
_st = [0]
def stmp():
    _st[0] = (_st[0] + 1) % len(sTMP)
    return sTMP[_st[0]]

def vr(b, n): return "v[%d:%d]" % (b, b + n - 1)
def sr(b, n): return "s[%d:%d]" % (b, b + n - 1)
WS = sr(sWS, 4)
def wreg(typ, f, half=None):
    if typ == 0: p, b = "a", 4 * f
    elif f < 16: p, b = "a", 192 + 4 * f
    else: p, b = "v", 128 + 4 * (f - 16)
    if half is None: return "%s[%d:%d]" % (p, b, b + 3)
    return "%s[%d:%d]" % (p, b + 2 * half, b + 2 * half + 1)
def fbits(x): return "0x%08x" % struct.unpack("<I", struct.pack("<f", x))[0]
MF32 = "v_mfma_f32_16x16x32_bf16"; MF16 = "v_mfma_f32_16x16x16_bf16"

e = Emitter()
_drop = [d for d in OPT["drop"].split(",") if d]
e.drop = lambda ins: ins.kind == "vmem" and ins.tag in _drop
ool = []
_lab = [0]
def lab(p):
    _lab[0] += 1
    return "L_%s_%d" % (p, _lab[0])
def emit_all(L):
    for i in L: e.emit(i)

stamp_names = []
def stamp(name="", real=False):
    if not OPT["stamps"]: return
    if OPT["only"] and name not in OPT["only"].split(","): return
    if ST == "": stamp_names.append(name)
    e("s_memrealtime s[90:91]" if real else "s_memtime s[90:91]")
    e("s_waitcnt lgkmcnt(0)")
    e("v_writelane_b32 v%d, s90, 0" % vSL)
    e("s_mov_b64 exec, 1")
    e("buffer_store_dword v%d, v%d, %s, s92 offen" % (vSL, vL16, WS), tag="stamp")
    e("s_mov_b64 exec, -1")
    e("s_add_u32 s92, s92, 4")
    e("s_nop 1")
    e("v_writelane_b32 v%d, 0, 0" % vSL)
    e.vm.pop()

def maxchain(dst, regs):
    out = []; regs = list(regs)
    out.append("v_max3_u32 v%d, v%d, v%d, v%d" % (dst, regs[0], regs[1], regs[2])); regs = regs[3:]
    while len(regs) >= 2:
        out.append("v_max3_u32 v%d, v%d, v%d, v%d" % (dst, dst, regs[0], regs[1])); regs = regs[2:]
    if regs: out.append("v_max_u32 v%d, v%d, v%d" % (dst, dst, regs[0]))
    return out

def checked(loads, waitins, chk_regs, tmp, retry_wait=0, chk=None, **kw):
    lr, lb = lab("retry"), lab("back")
    if chk is None:
        if len(chk_regs) == 1: chk = []; src = chk_regs[0]
        else: chk = maxchain(tmp, chk_regs); src = tmp
        chk = chk + ["v_cmp_eq_u32 vcc, -1, v%d" % src]
    s = [waitins] + [I(c) for c in chk] + [I("s_cbranch_vccnz " + lr), I(lb + ":", **kw)]
    o = Emitter()
    o(lr + ":")
    for l in loads: o(l)
    o("s_sub_u32 s%d, s%d, 1" % (sBUD, sBUD))
    o("s_cbranch_scc1 L_end")
    o("s_waitcnt vmcnt(%d)" % retry_wait)
    for c in chk: o(c)
    o("s_cbranch_vccnz " + lr)
    o("s_branch " + lb)
    ool.append(o.text())
    return s

BC = "row_newbcast:%d row_mask:0xf bank_mask:0xf"
def epi_kq(M, typ, t, after=None):
    a = M.acc(t); q, k = a, a + 4; cq, ck, cv = vCS[typ]
    s = []
    for r in range(4): s.append(I("v_fmac_f32_dpp v%d, v%d, v%d %s" % (k + r, ck, M.nm(t), BC % r), after=after if r == 0 else None))
    for r in range(4): s.append(I("v_mul_f32 v%d, v%d, v%d" % (k + r, M.rs(t), k + r)))
    s.append(I("v_cvt_pk_bf16_f32 v%d, v%d, v%d" % (M.k(t), k, k + 1)))
    s.append(I("v_cvt_pk_bf16_f32 v%d, v%d, v%d" % (M.k(t) + 1, k + 2, k + 3), mark="K%d" % t))
    for r in range(4): s.append(I("v_fmac_f32_dpp v%d, v%d, v%d %s" % (q + r, cq, M.nm(t), BC % r)))
    s.append(I("v_cvt_pk_bf16_f32 v%d, v%d, v%d" % (M.q(t), q, q + 1)))
    s.append(I("v_cvt_pk_bf16_f32 v%d, v%d, v%d" % (M.q(t) + 1, q + 2, q + 3)))
    s.append(I("v_mul_f32 v%d, s%d, v%d" % (M.c(t), sSCALE, M.rs(t)), mark="Q%d" % t))
    return s
def epi_v(M, typ, t, after=None):
    v = M.acc(t) + 8; cv = vCS[typ][2]
    s = []
    for r in range(4): s.append(I("v_fmac_f32_dpp v%d, v%d, v%d %s" % (v + r, M.nm2(t), cv, BC % r), after=after if r == 0 else None))
    for r in range(4): s.append(I("v_mul_f32_dpp v%d, v%d, v%d %s" % (v + r, M.rs2(t), v + r, BC % r)))
    s.append(I("v_cvt_pk_bf16_f32 v%d, v%d, v%d" % (M.v(t), v, v + 1)))
    s.append(I("v_cvt_pk_bf16_f32 v%d, v%d, v%d" % (M.v(t) + 1, v + 2, v + 3), mark="V%d" % t))
    return s
def epi(M, typ, t, after=None): return epi_kq(M, typ, t, after) + epi_v(M, typ, t)

def statshuf(hf, after=None):
    s = []
    P = ((vH, 104, 108), (vH + 1, 106, 110))
    for src, la, ra in P:
        s += [I("v_mov_b32 v%d, v%d" % (la, src)), I("v_mov_b32 v%d, v%d" % (la + 1, src)), I("v_mov_b32 v%d, v%d" % (ra, src))]
    for src, la, ra in P:
        s += [I("v_mov_b32_dpp v%d, v%d row_ror:8 row_mask:0xc bank_mask:0xf" % (ra, src))]
    for src, la, ra in P:
        s += [I("v_permlane16_swap_b32 v%d, v%d" % (la, la + 1))]
    for src, la, ra in P:
        s += [I("v_mov_b32_dpp v%d, v%d row_ror:12 row_mask:0xf bank_mask:0xf" % (ra + 1, ra))]
    for src, la, ra in P:
        s += [I("v_permlane16_swap_b32 v%d, v%d" % (ra, ra + 1))]
    s[0].after = after or []
    s[-1].mark = "SH%d" % hf
    return s

def sel4(dst, a):
    return [I("v_cndmask_b32 v%d, v%d, v%d, s[44:45]" % (dst, a, a + 1)), I("v_cndmask_b32 v%d, v%d, v%d, s[46:47]" % (dst, dst, a + 2)),
            I("v_cndmask_b32 v%d, v%d, v%d, s[48:49]" % (dst, dst, a + 3))]
def sel4_masks():
    return [I("s_mov_b32 s44, 0x22222222"), I("s_mov_b32 s45, s44"), I("s_lshl_b64 s[46:47], s[44:45], 1"), I("s_lshl_b64 s[48:49], s[44:45], 2")]
def cs_compact(typ, a):
    return sel4(vCS[typ][0], a) + sel4(vCS[typ][1], a + 4) + [I("v_mov_b32 v%d, v%d" % (vCS[typ][2], a + 8), mark="CS")]
def cs_mfma(typ, ks, a, ones):
    out = []
    for j in range(3):
        w = wreg(typ, 3 * ks + j); A, B = (w, vr(ones, 4)) if j < 2 else (vr(ones, 4), w)
        out.append(I("%s %s, %s, %s, %s" % (MF32, vr(a + 4 * j, 4), A, B, vr(a + 4 * j, 4) if ks else "0")))
    return out

def attn(M, l, t, a, ta, depS_p, depS_c, depV):
    sc, sp, lsum = a, a + 4, a + 8
    c = M.c(t); kprev = M.k(t - 1)
    s = []
    if t == 0:
        for r in range(4):
            s.append(I("v_add_f32 v%d, s%d, v%d" % (sp + r, sHBIAS, vBIAS + r), after=depS_p if r == 0 else None))
        s.append(I("%s %s, %s, %s, %s" % (MF16, vr(sc, 4), vr(M.k(t), 2), vr(M.q(t), 2), vr(vBIAS, 4)), after=depS_c))
        s.append(I("%s %s, %s, %s, %s" % (MF16, vr(sp, 4), vr(kprev, 2), vr(M.q(t), 2), vr(sp, 4)), after=["H"]))
    else:
        s.append(I("%s %s, %s, %s, %s" % (MF16, vr(sp, 4), vr(kprev, 2), vr(M.q(t), 2), vr(vBIAS, 4)), after=depS_p))
        s.append(I("%s %s, %s, %s, %s" % (MF16, vr(sc, 4), vr(M.k(t), 2), vr(M.q(t), 2), vr(vBIAS, 4)), after=depS_c))
    for r in range(4):
        s.append(I("v_cndmask_b32 v%d, v%d, v%d, %s" % (sc + r, sp + r, sc + r, sr(sM + 2 * r, 2))))
    s.append(I("v_max3_f32 v%d, v%d, v%d, v%d" % (sp, sc, sc + 1, sc + 2)))
    s.append(I("v_max_f32 v%d, v%d, v%d" % (sp + 1, sp, sc + 3)))
    s.append(I("v_max_f32 v%d, v%d, v%d" % (sp, sp, sc + 3)))
    s.append(I("v_permlane32_swap_b32 v%d, v%d" % (sp, sp + 1)))
    s.append(I("v_max_f32 v%d, v%d, v%d" % (sp + 2, sp, sp + 1)))
    s.append(I("v_max_f32 v%d, v%d, v%d" % (sp, sp, sp + 1)))
    s.append(I("v_permlane16_swap_b32 v%d, v%d" % (sp, sp + 2)))
    s.append(I("v_max_f32 v%d, v%d, v%d" % (sp, sp, sp + 2)))
    s.append(I("v_mul_f32 v%d, -v%d, v%d" % (sp, sp, c)))
    for r in range(4): s.append(I("v_fma_f32 v%d, v%d, v%d, v%d" % (sc + r, sc + r, c, sp)))
    s[-1].mark = "F%d" % t
    for r in range(4): s.append(I("v_exp_f32 v%d, v%d" % (sc + r, sc + r)))
    s.append(I("v_cvt_pk_bf16_f32 v%d, v%d, v%d" % (ta, sc, sc + 1)))
    s.append(I("v_cvt_pk_bf16_f32 v%d, v%d, v%d" % (ta + 1, sc + 2, sc + 3)))
    va, curfirst = M.va(t)
    pc, pp = (sp, sp + 2) if curfirst else (sp + 2, sp)
    s.append(I("v_and_b32 v%d, v%d, v%d" % (pc, ta, vPM)))
    s.append(I("v_and_b32 v%d, v%d, v%d" % (pc + 1, ta + 1, vPM + 1)))
    s.append(I("%s %s, %s, %s, 0" % (MF16, vr(sc, 4), vr(vONES, 2), vr(ta, 2))))
    s.append(I("v_xor_b32 v%d, v%d, v%d" % (pp, ta, pc)))
    s.append(I("v_xor_b32 v%d, v%d, v%d" % (pp + 1, ta + 1, pc + 1)))
    st = stmp()
    s.append(I("s_add_u32 s%d, s%d, %d" % (st, sOP, O_OB[l & 1] + t * 16384)))
    s.append(I("%s %s, %s, %s, 0" % (MF32, vr(lsum, 4), vr(va, 4), vr(sp, 4)), after=depV, mark="PV%d" % t))
    s.append(I("v_rcp_f32 v%d, v%d" % (sc, sc)))
    for r in range(4): s.append(I("v_mul_f32 v%d, v%d, v%d" % (lsum + r, sc, lsum + r)))
    s.append(I("v_cvt_pk_bf16_f32 v%d, v%d, v%d" % (ta + 1, lsum + 2, lsum + 3)))
    s.append(I("v_cvt_pk_bf16_f32 v%d, v%d, v%d" % (ta, lsum, lsum + 1)))
    s.append(I("v_min_u32 v%d, -2, v%d" % (ta + 1, ta + 1)))
    s.append(I("buffer_store_dwordx2 %s, v%d, %s, s%d offen %s" % (vr(ta, 2), vOS, WS, st, ST), tag="ost", mark="A%d" % t, gapmin=1))
    return s

def kvpub(M, l, q):
    st = stmp()
    return [I("v_mov_b32 v%d, v%d" % (q, M.k(3)), after=["V3"]), I("v_mov_b32 v%d, v%d" % (q + 1, M.k(3) + 1)),
            I("s_add_u32 s%d, s%d, %d" % (st, sKVO, l * 0x8000)),
            I("v_mov_b32 v%d, v%d" % (q + 2, M.v(3))), I("v_min_u32 v%d, -2, v%d" % (q + 3, M.v(3) + 1)),
            I("buffer_store_dwordx4 %s, v%d, %s, s%d offen sc1" % (vr(q, 4), vL16, WS, st), tag="kvst", mark="KVP", gapmin=1, lat=1000)]
def halo(M, l, delay, lat=900):
    st = 72
    hl = ["s_add_u32 s%d, s%d, %d" % (st, sKVI, l * 0x8000),
          "buffer_load_dwordx4 %s, v%d, %s, s%d offen sc1" % (vr(M.kh, 4), vL16, WS, st)]
    return [I(hl[0], delay=delay), I(hl[1], tag="halo", lat=lat)] + checked(hl, W(("vm", "halo")), [M.kh + 3], None, mark="H")

def stage_loads(l, t):
    st = 73
    loads = ["s_add_u32 s%d, s%d, %d" % (st, sR, O_XB[l & 1] + t * 16384)]
    loads += ["buffer_load_dwordx4 %s, v%d, %s, s%d offen offset:%d %s" % (vr(vSTG + 4 * j, 4), vSW, WS, st, j * 1024, LD) for j in range(4)]
    return loads
def stage_streams(l):
    ls, ws_ = [], []
    for t in (2, 1, 0):
        loads = stage_loads(l, t)
        ls.append(I(loads[0], after=["xw%d_0" % (t + 1)] if t < 2 else None, delay=("B3", OPT["x1d"]) if t == 1 else None))
        for j in range(4):
            ls.append(I(loads[1 + j], tag="xs%d" % t, gapmin=OPT["lgap"] if t < 2 else OPT["lgap2"], after=["xw%d_%d" % (t + 1, j)] if t < 2 else None, mark="xl%d" % t if j == 3 else None))
        ws_ += checked(loads, W(("vm", "xs%d" % t), after=["xl%d" % t]), [vSTG + 4 * j + 3 for j in range(4)], T[4])
        for j in range(4):
            o = L_X + (t & 1) * 16384 + j * 1024
            gap = OPT["wgap"] if t < 2 else OPT["wgap2"]
            aft = ["B%d" % (t + 1)] if j == 0 else None
            if OPT["w64"]:
                for h in range(2):
                    ws_.append(I("ds_write_b64 v%d, %s offset:%d" % (vSW, vr(vSTG + 4 * j + 2 * h, 2), o + 8 * h), tag="xw%d" % t, gapmin=gap // 2, lat=60,
                                 mark="xw%d_%d" % (t, j) if h else None, after=aft if h == 0 else None))
            else:
                ws_.append(I("ds_write_b128 v%d, %s offset:%d" % (vSW, vr(vSTG + 4 * j, 4), o), tag="xw%d" % t, gapmin=gap, lat=60, mark="xw%d_%d" % (t, j), after=aft))
    return ls, ws_

def finalize(S, SS, t1, rstd, nmean):
    return [
        "v_mul_f32 v%d, %s, v%d" % (S, fbits(1.0 / 512), S),
        "v_mul_f32 v%d, %s, v%d" % (SS, fbits(1.0 / 512), SS),
        "v_fma_f32 v%d, -v%d, v%d, v%d" % (SS, S, S, SS),
        "v_max_f32 v%d, 0, v%d" % (SS, SS),
        "v_cvt_pk_bf16_f32 v%d, v%d, -v%d" % (S, SS, S),
        "v_lshlrev_b32 v%d, 16, v%d" % (t1, S),
        "v_add_f32 v%d, %s, v%d" % (t1, fbits(1e-5), t1),
        "v_cvt_pk_bf16_f32 v%d, v%d, v%d" % (t1, t1, t1),
        "v_lshlrev_b32 v%d, 16, v%d" % (t1, t1),
        "v_sqrt_f32 v%d, v%d" % (t1, t1),
        "v_and_b32 v%d, 0xffff0000, v%d" % (nmean, S),
        "v_cvt_pk_bf16_f32 v%d, v%d, v%d" % (t1, t1, t1),
        "v_lshlrev_b32 v%d, 16, v%d" % (t1, t1),
        "v_rcp_f32 v%d, v%d" % (rstd, t1)]

def stats(l, hf, R, Q, delay, after=None, after_fin=None):
    st = 74 + hf
    loads = ["s_add_u32 s%d, s%d, %d" % (st, sR, O_SB[l & 1] + hf * 2048),
             "buffer_load_dwordx4 %s, v%d, %s, s%d offen %s" % (vr(R, 4), vSL, WS, st, LD),
             "buffer_load_dwordx4 %s, v%d, %s, s%d offen offset:16 %s" % (vr(Q, 4), vSL, WS, st, LD)]
    s = [I(loads[0], delay=delay, after=after)] + [I(l_, tag="sl%d" % hf, gapmin=OPT["lgap"] if hf == 0 else OPT["lgap2"]) for l_ in loads[1:]]
    s[-1].mark = "sll%d" % hf
    s += checked(loads, W(("vm", "sl%d" % hf)), [R + 1, R + 3, Q + 1, Q + 3], T[5])
    for i in range(4): s.append(I("v_add_f32 v%d, v%d, v%d" % (R + i, R + i, Q + i)))
    s[-1].mark = "SQ%d" % hf
    for o in (0, 1):
        s.append(I("v_add_f32 v%d, v%d, v%d" % (R + o, R + o, R + 2 + o)))
    s.append(I("v_permlane32_swap_b32 v%d, v%d" % (R, R + 1)))
    s.append(I("v_add_f32 v%d, v%d, v%d" % (R + 2, R, R + 1)))
    s.append(I("v_add_f32 v%d, v%d, v%d" % (R + 3, R, R + 1)))
    s.append(I("v_permlane32_swap_b32 v%d, v%d" % (R + 2, R + 3)))
    f = [I(x) for x in finalize(R + 2, R + 3, R, vH, vH + 1)]
    if after_fin: f[10].after = after_fin
    f[-1].mark = "SW%d" % hf
    return s + f

def pubstats_stream(l):
    R, G, O = 104, 108, 96
    out = [I("v_mov_b32 v%d, 0x3f803f80" % (O + i)) for i in range(4)]
    for k in range(2):
        x = vr(vXOLD[k], 4)
        out.append(I("%s %s, %s, %s, %s" % (MF32, vr(G, 4), x, x, vr(G, 4) if k else "0")))
    for k in range(2):
        out.append(I("%s %s, %s, %s, %s" % (MF32, vr(R, 4), vr(O, 4), vr(vXOLD[k], 4), vr(R, 4) if k else "0")))
    out[-1].mark = "PSM"
    st = stmp()
    out.append(I("s_add_u32 s%d, s%d, %d" % (st, sR, O_SB[l & 1])))
    out += sel4(G, G)
    out.append(I("v_min_u32 v%d, -2, v%d" % (R + 1, G)))
    out.append(I("buffer_store_dwordx2 %s, v%d, %s, s%d offen %s" % (vr(R, 2), vSS, WS, st, ST), tag="sst", mark="PS", gapmin=1))
    return out

sWBQ = [24, 25, 26, 27]
def wbloads(f0, f1, gap):
    out = []
    for f in range(f0, f1):
        st = 76 + ((f >> 2) & 1)
        if f % 4 == 0: out.append(I("s_add_u32 s%d, s%d, %d" % (st, sWBQ[f // 12], (f % 12) * 1024)))
        out.append(I("buffer_load_dwordx4 %s, v%d, %s, s%d offen offset:%d sc1" % (wreg(1, f), vL16, WS, st, (f % 4) * 1024),
                     tag="wb%d" % (f // 3), gapmin=gap, lat=1, mark="WB%d" % (f // 3) if f % 3 == 2 else None))
    return out
def wobdma(q, gap, typ=1):
    s = [I("s_add_u32 s50, s%d, %d" % (sWOT, typ * 0x80000 + q * 4096)), I("s_add_u32 m0, s%d, %d" % (sWL, L_WO[typ] + q * 4096))]
    s += [I("buffer_load_dwordx4 v%d, %s, s50 offen offset:%d sc1 lds" % (vL16, WS, j * 1024), tag="wo", gapmin=gap, lat=1) for j in range(4)]
    return s

def fill2k(sbase, add, q, flav, gap=None):
    st = stmp()
    s = [I("s_add_u32 s%d, s%d, %d" % (st, sbase, add & 0xffffffff))]
    s += [I("buffer_store_dwordx4 %s, v%d, %s, s%d offen offset:%d %s" % (vr(q, 4), vL16, WS, st, k * 1024, flav), tag="init", gapmin=gap) for k in range(2)]
    return s
def touch2k(sbase, add, gap=None, dst=vDUM):
    st = stmp()
    return [I("s_add_u32 s%d, s%d, %d" % (st, sbase, add & 0xffffffff)),
            I("buffer_load_dword v%d, v%d, %s, s%d offen sc1" % (dst, vSL, WS, st), tag="touch", gapmin=gap)]
def fillsb(add, q, flav, gap=None):
    st = stmp()
    return [I("s_add_u32 s%d, s%d, %d" % (st, sR, add & 0xffffffff)),
            I("buffer_store_dwordx2 %s, v%d, %s, s%d offen %s" % (vr(q, 2), vSS, WS, st, flav), tag="init", gapmin=gap)]
def touchsb(add, gap=None, dst=vDUM):
    st = stmp()
    return [I("s_add_u32 s%d, s%d, %d" % (st, sR, add & 0xffffffff)),
            I("buffer_load_dword v%d, v%d, %s, s%d offen sc1" % (dst, vSS, WS, st), tag="touch", gapmin=gap)]
def fillkv(add, q, gap=None):
    st = stmp()
    return [I("s_add_u32 s%d, s%d, %d" % (st, sKVO, add & 0xffffffff)),
            I("buffer_store_dwordx4 %s, v%d, %s, s%d offen sc1" % (vr(q, 4), vL16, WS, st), tag="kvinit", gapmin=gap)]
def ones_q(q): return [I("v_mov_b32 v%d, -1" % (q + i)) for i in range(4)]

def xread(reg, t, ks, tag):
    return I("ds_read_b128 %s, v%d offset:%d" % (vr(reg, 4), vL16, L_X + (t & 1) * 16384 + ks * 1024), tag=tag)

RING6 = [40, 44, 48, 52, 112, 116]
def p1_main(typ, jit):
    uses = []
    for t in (3, 2, 1):
        for ks in range(16): uses.append((t, ks, (0, 1, 2)))
    for ks in range(16): uses.append((0, ks, (0, 1)))
    for ks in range(16): uses.append((0, ks, (2,)))
    free = list(RING6); reg = {}
    nxt = 0; waited = -1
    def rd():
        nonlocal nxt
        reg[nxt] = free.pop(0)
        i = xread(reg[nxt], uses[nxt][0], uses[nxt][1], "f%d" % nxt); nxt += 1
        return i
    first = [rd() for _ in range(3)]
    opened = 3
    steps = [[], [], [], [], []]
    for n, (t, ks, js) in enumerate(uses):
        a = vACC[t & 1]; fr = vr(reg[n], 4)
        g_ = []
        for j in js:
            w = wreg(typ, ks * 3 + j)
            A, B = (w, fr) if j < 2 else (fr, w)
            g_.append((I("%s %s, %s, %s, %s" % (MF32, vr(a + 4 * j, 4), A, B, vr(a + 4 * j, 4) if ks else "0")), []))
        if jit and t == 3: g_ += [(m, []) for m in cs_mfma(typ, ks, vACC[0], 88)]
        if n == 48: free += [24, 28, 32, 36]
        nrd = 2 if (len(g_) > 2 or (len(g_) == 2 and waited >= n + 1)) else 1
        for k in range(nrd):
            if nxt < len(uses) and free and uses[nxt][0] >= opened: g_[k][1].append(rd())
        last = g_[-1][1]
        if t > 0 and ks == OPT["bks"]:
            w_ = W(("lg", "f%d" % (n + 15 - ks)), ("lg", "xw%d" % (t - 1))); w_.need = ["xw%d_3" % (t - 1)]
            assert nxt > n + 15 - ks
            last += [w_, I("s_barrier", mark="B%d" % (t - 1))]
            waited = n + 15 - ks; opened = t - 1
        if n + 1 < len(uses):
            spec = []
            if waited < n + 1:
                waited = min(n + (1 if len(js) == 3 else (2 if len(js) == 2 else 3)), nxt - 1)
                assert waited >= n + 1
                spec.append(("lg", "f%d" % waited))
            nd = []
            if jit and t == 3 and ks < 15: spec.append(("vm", "wb%d" % (ks + 1))); nd = ["WB%d" % (ks + 1)]
            if spec:
                w_ = W(*spec); w_.need = nd; last.append(w_)
        free.append(reg[n])
        steps[n // 16] += g_
    for k, t in enumerate((3, 2, 1)):
        steps[k][0][0].mark = "S%d" % t; steps[k][-1][0].mark = "G%d" % t
    steps[3][0][0].mark = "S0"; steps[3][-1][0].mark = "KQ0"; steps[4][-1][0].mark = "VG0"
    return first, steps

def oloads(l, j):
    st = stmp()
    L = ["s_add_u32 s%d, s%d, %d" % (st, sOL, O_OB[l & 1] + j * 4096)]
    L += ["buffer_load_dwordx4 %s, v%d, %s, s%d offen offset:%d %s" % (vr(vOBUF[j] + 4 * i, 4), vL16, WS, st, i * 1024, LD) for i in range(4)]
    return L
def emit_oloads(l, j):
    for x in oloads(l, j): e(x, tag="og%d" % j)

def resid():
    return [I("%s %s, %s, %s, 0" % (MF16, vr(vPACC + 4 * u, 4), vr(vID, 2), vr(vXOLD[u >> 1] + 2 * (u & 1), 2))) for u in range(4)]

def stage_first(l):
    st, st2 = stmp(), stmp()
    loads = ["s_add_u32 s%d, s%d, %d" % (st, sF, O_XB[l & 1] + 3 * 16384), "s_add_u32 s%d, s%d, 4096" % (st2, st)]
    loads += ["buffer_load_dwordx4 %s, v%d, %s, s%d offen offset:%d %s" % (vr(vSTG + 4 * j, 4), vL16, WS, st if j < 4 else st2, (j & 3) * 1024, LD) for j in range(8)]
    for x in loads: e(x, tag="xs3")
    e("v_add_u32 v%d, s%d, v%d" % (T[3], sF2, vL16))
    emit_all(checked(loads, W(("vm", "xs3")), [vSTG + 4 * j + 3 for j in range(8)], T[4]))
    for j in range(8):
        e("ds_write_b128 v%d, %s offset:%d" % (T[3], vr(vSTG + 4 * j, 4), L_X + 16384 + j * 1024), tag="xw3")
    e("s_waitcnt lgkmcnt(0)")

def p2(l, extra=None):
    def word(n): return I("ds_read_b128 %s, v%d offset:%d" % (vr(vWR + 4 * (n % 8), 4), vL16b, n * 1024), tag="w%d" % n)
    e("v_add_u32 v%d, %d, v%d" % (vL16b, L_WO[l & 1], vL16))
    rs = resid()
    for n in range(7):
        if n % 2 == 0: e.emit(rs[n // 2])
        e.emit(word(n))
    def ocheck(j, js):
        regs = [vOBUF[j] + 4 * i + d for i in range(4) for d in (1, 3)]
        re_ = [x for jj in js for x in oloads(l, jj)]
        return checked(re_, W(("vm", "og%d" % j)), regs, T[4], retry_wait=0 if (extra and j == 2) else 4 * (len(js) - 1), mark="OK%d" % j)
    emit_all(ocheck(0, [0, 1, 2]))
    e.emit(W(("lg", "w0")))
    stamp("p2start")
    main = []
    for n in range(64):
        ks, u, j = n // 4, n % 4, n // 16
        m = I("%s %s, %s, %s, %s" % (MF32, vr(vPACC + 4 * u, 4), vr(vWR + 4 * (n % 8), 4), vr(vOBUF[j] + 4 * (ks % 4), 4), vr(vPACC + 4 * u, 4)))
        att = []
        if n + 7 < 64: att.append(word(n + 7))
        if n + 1 < 64 and n % 2 == 0: att.append(W(("lg", "w%d" % min(n + 2, 63))))
        if n % 16 == 0: m.need = ["OK%d" % j]
        if n % 16 == 15: m.mark = "PG%d" % j
        main.append((m, att))
    g3 = [I(x, tag="og3", gapmin=16, lat=420) for x in oloads(l, 3)]
    for x in g3 + (extra or []): x.patience = 0
    g3[0].patience = 0; g3[0].after = ["PG0"]; g3[-1].mark = "G3I"
    chain = ocheck(1, [1, 2]) + g3 + ocheck(2, [2, 3]) + ocheck(3, [3])
    extra = extra or []
    if extra: extra[0].after = ["G3I"]
    run(e, main, [chain, extra], drain=False)
    assert not chain
    st = stmp()
    if l < 3: e("s_add_u32 s%d, s%d, %d" % (st, sXP, O_XB[(l + 1) & 1]))
    for k in range(2):
        for i in (3, 0, 1, 2):
            e("v_cvt_pk_bf16_f32 v%d, v%d, v%d" % (vXOLD[k] + i, vPACC + 8 * k + 2 * i, vPACC + 8 * k + 2 * i + 1))
        if l < 3:
            e("v_min_u32 v%d, -2, v%d" % (vXOLD[k] + 3, vXOLD[k] + 3))
            e("buffer_store_dwordx4 %s, v%d, %s, s%d offen offset:%d %s" % (vr(vXOLD[k], 4), vL16, WS, st, k * 1024, ST), tag="xst")
        else:
            e("buffer_store_dwordx4 %s, v%d, %s, 0 offen offset:%d" % (vr(vXOLD[k], 4), vXO, sr(sOUT, 4), 64 * k))
    stamp("xpub")
    if l == 3:
        stamp("rt1", real=True)
        e(f"""
        s_or_b32 s72, s2, s{sW}
        s_cbranch_scc1 L_end
        v_mov_b32 v0, s{sN1}
        s_mov_b32 s72, {EPOCH}
        s_mov_b64 exec, 1
        buffer_store_dword v0, v{vL16}, {WS}, s72 offen sc1
        s_endpgm
        """)
        return
    if extra: flush(e, [extra], until="WB%d" % OPT["wbx"])
    lskip = lab("skip")
    e("s_cmp_lt_u32 s%d, 2" % sW)
    e("s_cbranch_scc1 " + lskip)
    e.begin_cond()
    emit_all(pubstats_stream(l + 1))
    q = vACC[1]
    if l < 2:
        emit_all(ones_q(q))
        emit_all(fillkv((l + 2) * 0x8000, q) + fillkv((l + 2) * 0x8000 - 2048, q))
    if l == 1:
        e("s_lshl_b32 s72, s%d, 1" % sF2)
        e("s_add_u32 s72, s72, s%d" % sXP)
        emit_all(fill2k(72, O_XB[1] - 32768, q, ST) + fill2k(72, O_XB[1] - 16384, q, ST))
        e("s_lshr_b32 s73, s%d, 3" % sF2)
        e("s_add_u32 s73, s73, s%d" % sR)
        for d in (0, 1024):
            st = stmp()
            e("s_add_u32 s%d, s73, %d" % (st, O_SB[1] - 2048 + d))
            e("buffer_store_dwordx2 %s, v%d, %s, s%d offen %s" % (vr(q, 2), vSS, WS, st, ST), tag="init")
    stage_first(l + 1)
    e.end_cond()
    e(lskip + ":")
    return extra

def p1(l, carry=None):
    typ = l & 1; a0, a1 = vACC
    keep = {k: v for k, v in e.marks.items() if k.startswith("WB")}
    e.marks = keep
    e("s_barrier", mark="B3")
    stamp("B3")
    jit = l == 1
    first, steps = p1_main(typ, jit)
    emit_all(first)
    sld, stg = stage_streams(l)
    ch = stats(l, 1, 80, 84, None, after_fin=["PSM"]) + statshuf(1, after=["PS"])
    if jit:
        c = cs_compact(1, a0); c[0].after = ["G3", "FILL"]
        ch += c
    ch += epi(N, typ, 3, after=["G3"]) + kvpub(N, l, a1) + epi(N, typ, 2, after=["G2"]) + statshuf(0, after=["SW0"]) \
        + epi(N, typ, 1, after=["G1", "A3"])
    [x for x in ch if x.tag == "kvst"][0].after = ["xl0", "sll0"]
    ch2 = epi_kq(N, typ, 0, after=["KQ0", "F2", "V1"]) + epi_v(N, typ, 0, after=["VG0", "PV2"])
    at = attn(N, l, 3, a0, T[0], ["K2", "SQ0"], ["Q2"], ["V2"]) + attn(N, l, 2, a1, T[0], ["K1"], ["Q1"], ["V1"])
    at1 = attn(N, l, 1, a1, T[0], ["K0", "A2"], [], ["V0"])
    at0 = halo(N, l, ("S1", 500)) + attn(N, l, 0, a0, T[2], ["K0"], ["Q0"], ["V0"])
    at0[0].after = ["SW0"]
    s0 = stats(l, 0, 88, T[0], ("B3", OPT["s0d"]), after=["PS"] + (["CS"] if jit else []), after_fin=["SH1"])
    ps = pubstats_stream(l)
    sides = [stg, sld, ps, ch, s0, at, ch2, at1, at0]
    emit_all([ps[4], ch[0], ch[1], ps[0], ps[5], sld[0], ps[1], ps[2], ps[3], ch[2], ps[6], ps[8], sld[1], ps[7]])
    del ps[:9]; del ch[:3]; del sld[:2]
    e.t_mem["vmem"] = e.t
    if jit:
        emit_all(sld[:3]); del sld[:3]
        emit_all(carry); carry = []
        for i in range(4): e("v_mov_b32 v%d, 0x3f803f80" % (88 + i))
        q = 92
        fl = ones_q(q) + fill2k(sXP, O_XB[0], q, ST) + fillsb(O_SB[0], q, ST); fl[-1].mark = "FILL"
        tc = touch2k(sOI, O_OB[1], dst=vSTG) + touch2k(sXP, O_XB[0], dst=vSTG) + touchsb(O_SB[0], dst=vSTG); tc[0].after = ["xw1_0"]
        ex = fl + wobdma(0, 60) + wobdma(1, 60) + wobdma(2, 60) + wobdma(3, 60) + tc
        ex[-1].mark = "WOB"
        sides.append(ex)
        [x for x in sld if x.tag == "xs0"][0].after += ["WOB"]
        e.emit(W(("lg", "f0"), ("vm", "wb0")))
    else:
        e.emit(W(("lg", "f0")))
    steps[1][0][0].need = ["CS"] if jit else []
    steps[2][0][0].need = ["KVP"]
    steps[3][0][0].need = ["A3"]
    for k, nm in enumerate(("s3", "s2", "s1", None, None)):
        run(e, steps[k], sides, drain=False, memgap=OPT["lgap"])
        if nm: stamp(nm)
    pf = [I(x.replace("s%d," % sOL, "s%d," % sOLP), tag="opf", gapmin=OPT["pgap"]) for j in (0, 1) for x in oloads(l, j)]
    flush(e, [pf] + sides, until="V0")
    flush(e, [pf] + sides, longest=True, first=pf)

def layer(l, carry=None):
    p1(l, carry)
    stamp("E")
    l2 = lab("pf")
    e("s_cmp_lt_u32 s%d, 2" % sW)
    e("s_cbranch_scc0 " + l2)
    e.begin_cond(keep=True)
    if l in (1, 2):
        n = len(e.vm)
        emit_all(ones_q(vWR)); emit_all(fill2k(sOI, O_OB[(l + 1) & 1], vWR, ST) + fill2k(sOI, O_OB[(l + 1) & 1] + 32768, vWR, ST))
        del e.vm[n:]
    emit_oloads(l, 0); emit_oloads(l, 1)
    e.end_cond()
    e(l2 + ":")
    emit_oloads(l, 2)
    p2(l)

def wchunk(i, after=None):
    s = [I("s_add_u32 s72, s%d, %d" % (sROT, i), after=after), I("s_and_b32 s72, s72, 15"), I("s_mul_i32 s72, s72, 98304"),
         I("s_add_u32 m0, s%d, %d" % (sW3K, slot(i)))]
    s += [I("buffer_load_dwordx4 v%d, %s, s72 offen offset:%d lds" % (zWV, sr(sWA, 4), j * 1024), tag="wc%d" % i, lat=1) for j in range(3)]
    s[-1].mark = "WC%d" % i
    return s
def xslab(sl):
    s = [I("s_lshl_b32 s73, s%d, 6" % sROT), I("s_add_u32 s73, s73, %d" % (256 * sl)), I("s_and_b32 s73, s73, 1023"),
         I("s_add_u32 s73, s73, s%d" % sXBASE)]
    for t in range(4):
        s += [I("s_add_u32 m0, s%d, %d" % (sW1K, L_WO[1] + sl * 16384 + t * 4096)),
              I("buffer_load_dwordx4 v%d, %s, s73 offen lds" % (zXV, sr(sX, 4)), tag="xl%d" % sl, lat=1)]
        if t < 3: s.append(I("s_add_u32 s73, s73, 32768"))
    s[-1].mark = "XL%d" % sl
    return s
def stream(text):
    L = [x.strip() for x in text.strip().split("\n")]
    L = [I(x) for x in L if x and not x.startswith(";")]
    for a, b in zip(L, L[1:]):
        if b.mn.startswith("s_cselect"): a.glue = True
    return L

def prologue():
    rot = {0: "s_mov_b32 s%d, 0" % sROT,
           1: "s_lshl_b32 s%d, s3, 2" % sROT,
           2: "s_and_b32 s94, s2, 3\n s_lshl_b32 s%d, s94, 2" % sROT,
           3: "s_and_b32 s94, s3, 1\n s_lshl_b32 s94, s94, 1\n s_add_u32 s94, s94, s2\n s_and_b32 s94, s94, 3\n s_lshl_b32 s%d, s94, 2" % sROT,
           }[OPT["rot"]]
    e(f"""
    s_load_dwordx4 s[76:79], s[0:1], 0
    s_load_dwordx2 s[82:83], s[0:1], 64
    s_load_dwordx2 s[80:81], s[0:1], 16
    s_load_dwordx4 s[84:87], s[0:1], 32
    s_load_dwordx2 s[88:89], s[0:1], 48
    s_cmp_ge_u32 s2, 256
    s_cbranch_scc1 L_end
    v_lshrrev_b32 v1, 6, v0
    v_and_b32 v0, 63, v0
    v_readfirstlane_b32 s{sW}, v1
    s_lshr_b32 s3, s2, 3
    s_getpc_b64 s[96:97]
    L_pc:
    s_mov_b32 s98, L_slow-L_pc
    s_mov_b32 s99, 0x00020000
    s_lshl_b32 s94, s3, 11
    s_cmp_eq_u32 s{sW}, 2
    s_cbranch_scc0 L_nocp
    """)
    e.begin_cond()
    e(f"""
    v_lshlrev_b32 v1, 5, v0
    buffer_load_dword v{vDUM}, v1, s[96:99], s94 offen
    """)
    e.end_cond()
    e(f"""
    L_nocp:
    s_add_u32 s{sHG}, s3, {OPT['hgo']}
    s_and_b32 s{sHG}, s{sHG}, 7
    s_lshr_b32 s3, s3, 3
    s_and_b32 s{sC}, s2, 7
    s_lshl_b32 s{sC}, s{sC}, 2
    s_add_u32 s{sC}, s{sC}, s3
    s_and_b32 s{sB}, s{sC}, 15
    {rot}
    v_and_b32 v2, 15, v0
    v_lshrrev_b32 v3, 4, v0
    v_lshlrev_b32 v{vL16}, 4, v0
    s_lshl_b32 s94, s{sW}, 2
    v_add_u32 v1, s94, v3
    v_xor_b32 v4, v1, v2
    v_lshlrev_b32 v4, 4, v4
    v_lshl_add_u32 v{zXV}, v1, 11, v4
    s_lshl_b32 s{sXBASE}, s{sB}, 7
    s_lshr_b32 s95, s{sC}, 4
    s_add_u32 s{sXBASE}, s{sXBASE}, s95
    s_lshl_b32 s{sXBASE}, s{sXBASE}, 10
    s_lshl_b32 s94, s{sW}, 3
    v_lshrrev_b32 v1, 3, v0
    v_add_u32 v{zUV}, s94, v1
    v_and_b32 v4, 1, v3
    v_lshlrev_b32 v4, 1, v4
    s_and_b32 s94, s{sW}, 1
    s_lshl_b32 s94, s94, 2
    v_or_b32 v4, s94, v4
    v_and_b32 v5, 7, v0
    v_xor_b32 v4, v4, v5
    v_lshlrev_b32 v4, 4, v4
    s_lshl_b32 s95, s{sHG}, 7
    v_mul_u32_u24 v{zWV}, 3072, v{zUV}
    v_add3_u32 v{zWV}, v{zWV}, v4, s95
    s_mul_i32 s{sW3K}, s{sW}, 3072
    s_lshl_b32 s{sW1K}, s{sW}, 10
    ; x touch: rows 8hg..8hg+7, one dword per 128B line
    v_lshlrev_b32 v1, 11, v1
    v_lshl_add_u32 v1, v5, 7, v1
    s_lshl_b32 s94, s{sHG}, 14
    s_add_u32 s94, s94, s{sXBASE}
    s_mov_b32 s{sX+2}, 0x200000
    s_mov_b32 s{sX+3}, 0x00020000
    s_mov_b32 s{sWA+2}, 0x180000
    s_mov_b32 s{sWA+3}, 0x00020000
    s_mov_b32 s{sWS+2}, {0x2100000 if OPT['stamps'] else WS_SIZE}
    s_mov_b32 s{sWS+3}, 0x00020000
    s_mov_b32 s{sOUT+2}, 0x200000
    s_mov_b32 s{sOUT+3}, 0x00020000
    s_waitcnt lgkmcnt(0)
    s_mov_b64 {sr(sX,2)}, s[76:77]
    s_mov_b64 {sr(sWA,2)}, s[78:79]
    s_mov_b64 {sr(sWS,2)}, s[82:83]
    """)
    if OPT["stamps"]:
        e(f"""
        s_lshl_b32 s92, s2, 2
        s_add_u32 s92, s92, s{sW}
        s_lshl_b32 s92, s92, 8
        s_add_u32 s92, s92, {STAMP_OFF}
        """)
        stamp("rt0", real=True)
        stamp("start")
    emit_all(xslab(0) + wchunk(0))
    e(f"""
    s_cmp_eq_u32 s{sW}, 3
    s_cbranch_scc0 L_noxt
    """)
    e.begin_cond()
    e("buffer_load_dword v%d, v1, %s, s94 offen" % (vDUM, sr(sX, 4)))
    e.end_cond()
    e(f"""
    L_noxt:
    s_add_u32 s82, s82, {EPOCH}
    s_addc_u32 s83, s83, 0
    s_load_dword s{sN1}, s[82:83], 0
    """)
    emit_all(wchunk(1))
    e(f"""
    s_mov_b64 {sr(sOUT,2)}, s[88:89]
    s_cmp_ge_u32 s{sC}, 16
    s_cselect_b64 {sr(sU1,2)}, s[80:81], s[84:85]
    s_cselect_b64 {sr(sU2,2)}, s[86:87], s[84:85]
    s_cselect_b32 s{sU1+2}, 0x80000, s{sWA+2}
    s_mov_b32 s{sU2+2}, s{sU1+2}
    s_mov_b32 s{sU1+3}, 0x00020000
    s_mov_b32 s{sU2+3}, 0x00020000
    v_lshlrev_b32 v1, 8, v2
    v_add_u32 v1, {L_WO[1]}, v1
    s_lshl_b32 s3, s{sW}, 12
    """)
    for m in range(4):
        e(f"""
        v_or_b32 v4, {4*m}, v3
        v_xor_b32 v4, v4, v2
        v_lshl_add_u32 v{zA+m}, v4, 4, v1
        v_add_u32 v{zAO+m}, s3, v{zA+m}
        v_mov_b32 v{zONE+m}, 0x3f803f80
        """)
    e(f"""
    v_bfe_u32 v1, v0, 2, 2
    v_lshrrev_b32 v4, 1, v1
    v_and_b32 v5, 1, v3
    v_lshl_or_b32 v4, v5, 1, v4
    v_xor_b32 v4, s{sW}, v4
    v_lshlrev_b32 v4, 5, v4
    v_and_b32 v5, 3, v0
    v_lshl_add_u32 v4, v5, 3, v4
    v_lshl_add_u32 v4, v1, 7, v4
    v_mul_u32_u24 v{zTR}, 3072, v3
    v_add_u32 v{zTR}, v4, v{zTR}
    v_add_u32 v{zTR+1}, 49152, v{zTR}
    """)
    emit_all(wchunk(2) + wchunk(3))
    e("s_waitcnt lgkmcnt(0)")
    stamp("issued")

def consts():
    t = f"""
    s_mul_i32 s{sR}, s{sC}, {CS}
    s_add_u32 s{sR}, s{sR}, {HB}
    s_lshl_b32 s{sWL}, s{sW}, 14
    s_add_u32 s{sOL}, s{sR}, s{sWL}
    s_lshl_b32 s3, s{sHG}, 1
    s_sub_u32 s74, s3, s{sROT}
    s_and_b32 s74, s74, 15
    s_lshl_b32 s74, s74, 10
    s_add_u32 s{sXP}, s{sOL}, s74
    s_lshl_b32 s3, s3, 10
    s_add_u32 s{sOI}, s{sOL}, s3
    s_lshl_b32 s74, s{sHG}, 3
    s_add_u32 s3, s{sW1K}, s74
    v_lshlrev_b32 v1, 6, v2
    v_add_u32 v1, s3, v1
    v_mov_b32 v4, 0x7ffffff0
    s_mov_b32 s74, 0x00f0000f
    s_mov_b32 s75, 0xf0000f00
    v_cndmask_b32 v{vSS}, v4, v1, s[74:75]
    v_mov_b32 v{vACC[0]}, -1
    v_mov_b32 v{vACC[0]+1}, -1
    v_mov_b32 v{vACC[0]+2}, -1
    v_mov_b32 v{vACC[0]+3}, -1
    """
    a = stream(t); a[-1].mark = "C1"
    a2 = stream(f"""
    s_mul_i32 s{sN1}, s{sN1}, 0x9e3779b1
    s_add_u32 s{sN1}, s{sN1}, 0x7f4a7c15
    s_mul_i32 s{sN2}, s{sN1}, 0x85ebca6b
    s_and_b32 s{sN2}, s{sN2}, 0xffffff00
    s_getreg_b32 s3, hwreg(HW_REG_XCC_ID, 0, 4)
    s_or_b32 s{sN2}, s{sN2}, s3
    v_mov_b32 v{zFL}, s{sN1}
    v_mov_b32 v{zFL+1}, s{sN2}
    s_lshl_b32 s{sFO1}, s{sC}, 3
    s_add_u32 s{sFO1}, s{sFO1}, s{sHG}
    s_lshl_b32 s{sFO1}, s{sFO1}, 4
    s_add_u32 s{sFO1}, s{sFO1}, {FL1}
    s_cmp_eq_u32 s{sW}, 3
    s_cselect_b32 s{sFO1}, s{sFO1}, 0x7f000000
    v_and_b32 v{zST+3}, 0x70, v{vL16}
    """); a2[-1].mark = "CF"
    t = f"""
    v_mov_b32 v4, 0x3f80
    v_and_b32 v1, 1, v0
    v_lshlrev_b32 v1, 4, v1
    v_lshlrev_b32 v1, v1, v4
    s_and_b32 s76, s74, 0x33333333
    s_and_b32 s77, s75, 0x33333333
    v_cndmask_b32 v{vID}, 0, v1, s[76:77]
    s_xor_b64 s[76:77], s[76:77], s[74:75]
    v_cndmask_b32 v{vID+1}, 0, v1, s[76:77]
    """
    b0 = stream(t)
    t = f"""
    ; ---- transposition job: p=0: W_B chunk b ; p=1: woA unit b, woB unit b
    s_lshl_b32 s3, s{sHG}, 7
    v_and_b32 v1, 7, v0
    v_lshlrev_b32 v1, 4, v1
    v_lshlrev_b32 v{zUV}, 10, v{zUV}
    v_add3_u32 v{zUV}, v{zUV}, v1, s3
    s_cmp_ge_u32 s{sC}, 16
    s_cselect_b64 s[76:77], -1, 0
    v_cndmask_b32 v{zUV}, v{zWV}, v{zUV}, s[76:77]
    s_mul_i32 s3, s{sB}, 98304
    s_lshl_b32 s74, s{sB}, 15
    s_add_u32 s75, s3, 1024
    s_add_u32 s{sUS+2}, s3, 2048
    s_cmp_ge_u32 s{sC}, 16
    s_cselect_b32 s{sUS}, s74, s3
    s_cselect_b32 s{sUS+1}, s74, s75
    s_cselect_b32 s{sUS+2}, 0x7f000000, s{sUS+2}
    """
    b = stream(t); b[-1].mark = "C2"
    t = f"""
    ; wo tr address: (g>>1)*3072 + (4(g&1)+r)*128 + (w>>1)*64 + cc*16 + (w&1)*8 ; e2 stride 6144
    v_lshrrev_b32 v1, 1, v3
    v_mul_u32_u24 v1, 3072, v1
    v_bfe_u32 v4, v0, 2, 3
    v_lshl_add_u32 v1, v4, 7, v1
    v_and_b32 v4, 3, v0
    v_lshl_add_u32 v1, v4, 4, v1
    s_lshr_b32 s3, s{sW}, 1
    s_lshl_b32 s3, s3, 6
    s_and_b32 s74, s{sW}, 1
    s_lshl_b32 s75, s74, 3
    v_add_u32 v{vOS}, s75, v{vL16}
    s_add_u32 s3, s3, s75
    v_add_u32 v1, s3, v1
    s_cmp_ge_u32 s{sC}, 16
    s_cselect_b64 s[76:77], -1, 0
    v_cndmask_b32 v{zUA}, v{zTR}, v1, s[76:77]
    s_movk_i32 s3, 512
    s_cmp_ge_u32 s{sC}, 16
    s_cselect_b32 s3, 6144, s3
    v_add_u32 v{zUA+1}, s3, v{zUA}
    s_lshl_b32 s{sF2}, s74, 13
    s_add_u32 s{sF}, s{sR}, s{sF2}
    s_lshl_b32 s{sFO2}, s{sHG}, 5
    s_add_u32 s{sFO2}, s{sFO2}, s{sC}
    s_lshl_b32 s{sFO2}, s{sFO2}, 2
    s_add_u32 s{sFO2}, s{sFO2}, s{sW}
    s_lshl_b32 s{sFO2}, s{sFO2}, 3
    s_add_u32 s{sFO2}, s{sFO2}, {FL2}
    s_mov_b32 s{sBUD}, 0x20000
    s_mov_b32 s{sSCALE}, {fbits(0.25 * 1.4426950408889634)}
    s_lshl_b32 s74, s{sHG}, 2
    s_add_u32 s74, s74, s{sW}
    s_lshl_b32 s75, s74, 10
    s_add_u32 s{sKVO}, s{sR}, s75
    s_add_u32 s{sKVO}, s{sKVO}, {O_KV}
    s_cmp_eq_u32 s{sB}, 0
    s_cselect_b32 s{sHBIAS}, 0xff800000, 0
    s_cselect_b32 s3, 0, {CS}
    s_sub_u32 s{sKVI}, s{sKVO}, s3
    s_lshr_b32 s3, s74, 1
    s_lshl_b32 s3, s3, 10
    s_add_u32 s{sOP}, s{sR}, s3
    s_mul_i32 s74, s74, 49152
    s_mul_i32 s3, s{sROT}, 3072
    s_add_u32 s24, s3, s74
    s_cmp_eq_u32 s{sROT}, 12
    s_cselect_b32 s3, 49152, 0
    s_add_u32 s25, s24, 12288
    s_sub_u32 s25, s25, s3
    s_cmp_eq_u32 s{sROT}, 8
    s_cselect_b32 s3, 49152, 0
    s_add_u32 s26, s25, 12288
    s_sub_u32 s26, s26, s3
    s_cmp_eq_u32 s{sROT}, 4
    s_cselect_b32 s3, 49152, 0
    s_add_u32 s27, s26, 12288
    s_sub_u32 s27, s27, s3
    s_cmp_lt_u32 s{sW}, 2
    s_cselect_b32 s{sOLP}, 0x7f000000, s{sOL}
    ; destinations of the transposed fragments
    s_mul_i32 s3, s{sB}, 3072
    s_add_u32 s74, s74, s3
    s_lshl_b32 s{sWOT}, s{sHG}, 16
    s_add_u32 s{sWOT}, s{sWOT}, {WOT_OFF}
    s_lshl_b32 s3, s{sB}, 12
    s_add_u32 s3, s3, s{sW1K}
    s_add_u32 s3, s3, s{sWOT}
    s_add_u32 s{sWOT}, s{sWOT}, s{sWL}
    s_add_u32 s75, s3, 0x80000
    s_add_u32 s{sUD+1}, s74, 1024
    s_add_u32 s{sUD+2}, s74, 2048
    s_cmp_ge_u32 s{sC}, 16
    s_cselect_b32 s{sUD}, s3, s74
    s_cselect_b32 s{sUD+1}, s75, s{sUD+1}
    s_cselect_b32 s{sUD+2}, 0x7f000000, s{sUD+2}
    s_lshl_b32 s3, s{sW}, 15
    s_add_u32 s3, s3, s{sXBASE}
    s_lshl_b32 s74, s{sHG}, 7
    s_add_u32 s3, s3, s74
    v_lshlrev_b32 v1, 11, v2
    v_lshlrev_b32 v4, 4, v3
    v_add3_u32 v{vXO}, v1, v4, s3
    s_lshl_b32 s3, s{sW}, 12
    v_add_u32 v{vSW}, s3, v{vL16}
    v_and_b32 v1, 31, v0
    v_lshrrev_b32 v4, 5, v0
    v_lshlrev_b32 v1, 6, v1
    v_lshl_add_u32 v{vSL}, v4, 5, v1
    """
    c = stream(t); c[-1].mark = "C3"
    t = f"""
    v_lshlrev_b32 v1, 2, v3
    v_sub_u32 v1, v2, v1
    v_mov_b32 v5, 0xff800000
    v_mov_b32 v{vONES}, 0x3f803f80
    v_mov_b32 v{vONES+1}, 0x3f803f80
    """
    for r in range(4):
        t += f"""
        v_cmp_le_i32 {sr(sM+2*r,2)}, {r}, v1
        v_subrev_u32 v4, {r}, v1
        v_cmp_gt_u32 s[74:75], 8, v4
        v_cmp_gt_i32 s[76:77], -8, v4
        s_or_b64 s[74:75], s[76:77], s[74:75]
        v_cndmask_b32_e64 v{vBIAS+r}, v5, 0, s[74:75]
        """
    t += f"""
    v_mov_b32 v4, 0xffff
    v_mov_b32 v5, 0xffff0000
    v_cndmask_b32 v{vPM}, 0, v4, {sr(sM,2)}
    v_cndmask_b32 v1, 0, v5, {sr(sM+2,2)}
    v_or_b32 v{vPM}, v{vPM}, v1
    v_cndmask_b32 v{vPM+1}, 0, v4, {sr(sM+4,2)}
    v_cndmask_b32 v1, 0, v5, {sr(sM+6,2)}
    v_or_b32 v{vPM+1}, v{vPM+1}, v1
    v_mov_b32 v74, s{sN1}
    v_mov_b32 v75, s{sN1}
    v_mov_b32 v76, s{sN1}
    v_mov_b32 v77, s{sN1}
    v_mov_b32 v80, 0
    v_mov_b32 v81, 0
    v_mov_b32 v82, s{sN1}
    v_mov_b32 v84, s{sN1}
    v_mov_b32 v86, 0
    v_mov_b32 v87, 0
    ; statistics exchange addresses
    v_lshlrev_b32 v{zST}, 3, v2
    s_lshl_b32 s3, s{sW}, 7
    v_add_u32 v{zST+1}, s3, v{zST}
    v_and_b32 v4, 0x18, v{zST}
    v_lshl_add_u32 v{zST+2}, v3, 5, v4
    """
    d = stream(t); d[-1].mark = "C4"
    return b + a + b0 + a2 + c + d
zST = 68

def reads0(i):
    s = []
    a = zTR + (1 if slot(i) >= 49152 else 0); base = slot(i) - (49152 if slot(i) >= 49152 else 0)
    xb = zXB[i & 1]
    for j in range(3):
        for e2 in range(2):
            s.append(I("ds_read_b64_tr_b16 %s, v%d offset:%d" % (wreg(0, 3 * i + j, e2), a, base + j * 1024 + e2 * 512), tag="r%d" % i))
    for t in range(4):
        s.append(I("ds_read_b128 %s, v%d offset:%d" % (vr(xb + 4 * t, 4), zA + (i & 3), t * 4096 + (i >> 2) * 16384), tag="r%d" % i))
    s.append(I("ds_read_b128 %s, v%d offset:%d" % (vr(xb + 16, 4), zAO + (i & 3), (i >> 2) * 16384), tag="r%d" % i))
    if i >= 2: s[6].after = ["M%d" % (i - 2)]
    return s
def mfmas0(i):
    xb = zXB[i & 1]; out = []
    def acc(a): return vr(a, 4) if i else "0"
    out += cs_mfma(0, i, zCS, zONE)
    for t in range(4):
        for j in range(3):
            w = wreg(0, 3 * i + j); x = vr(xb + 4 * t, 4); a = Z.acc(t) + 4 * j
            A, B = (w, x) if j < 2 else (x, w)
            out.append(I("%s %s, %s, %s, %s" % (MF32, vr(a, 4), A, B, acc(a))))
    x = vr(xb + 16, 4)
    out.append(I("%s %s, %s, %s, %s" % (MF32, vr(zG, 4), x, x, acc(zG))))
    out.append(I("%s %s, %s, %s, %s" % (MF32, vr(zR, 4), vr(zONE, 4), x, acc(zR))))
    out[0].need = ["R%d" % i]; out[-1].mark = "M%d" % i
    return [(m, []) for m in out]

def f1load(): return ["s_lshl_b32 s72, s%d, 7" % sC, "s_add_u32 s72, s72, %d" % FL1,
                      "buffer_load_dwordx2 %s, v%d, %s, s72 offen sc1" % (vr(zF1, 2), zST + 3, WS)]
def f2load(): return ["s_lshl_b32 s75, s%d, 10" % sHG, "s_add_u32 s75, s75, %d" % FL2,
                      "buffer_load_dwordx4 %s, v%d, %s, s75 offen sc1" % (vr(zF2, 4), vL16, WS)]
def lane0_store(sreg, **kw):
    return [I("s_mov_b64 exec, 1", glue=True, **kw),
            I("buffer_store_dwordx2 %s, v%d, %s, s%d offen sc1" % (vr(zFL, 2), vL16, WS, sreg), tag="fst", glue=True),
            I("s_mov_b64 exec, -1")]
def gemm0():
    q = vACC[0]; U = vSTG
    emit_all(consts())
    for j in range(3):
        e("s_add_u32 m0, s%d, %d" % (sW3K, j * 1024))
        e("buffer_load_dwordx4 v%d, %s, s%d offen lds" % (zUV, sr(sU1 if j == 0 else sU2, 4), sUS + j), tag="tdma")
    e.emit(W(("vm", "wc0")))
    e("s_barrier")
    stamp("x0")
    emit_all(reads0(0))
    emit_all(wchunk(4) + xslab(1))
    def groups(L):
        out = [[]]
        for x in L:
            out[-1].append(x)
            if x.kind in ("vmem", "ds") and not getattr(x, "glue", False): out.append([])
        tail = out.pop()
        if tail: out[-1] += tail
        return out
    c2 = ["v_xor_b32 v%d, v%d, v%d" % (T[0], zF2, zFL), "v_xor_b32 v%d, v%d, v%d" % (T[1], zF2 + 2, zFL),
          "v_xor_b32 v%d, v%d, v%d" % (T[2], zF2 + 1, zFL + 1), "v_xor_b32 v%d, v%d, v%d" % (T[5], zF2 + 3, zFL + 1),
          "v_or_b32 v%d, v%d, v%d" % (T[2], T[2], T[5]), "v_lshrrev_b32 v%d, 8, v%d" % (T[2], T[2]),
          "v_or3_b32 v%d, v%d, v%d, v%d" % (T[0], T[0], T[1], T[2]), "v_cmp_ne_u32 vcc, 0, v%d" % T[0]]
    global BG
    BG = wbloads(0, OPT["wb0"], OPT["pace"])
    for qq in range(4): BG += wobdma(qq, OPT["pace"], typ=0)
    BG[-1].mark = "WOA"
    BG += wbloads(OPT["wb0"], 16, OPT["pace"])
    ex = {i: [] for i in range(1, 18)}
    ex[1] = wchunk(5) + wchunk(6) + wchunk(7)
    for i in range(2, 10):
        ex[i] += wchunk(i + 6)
        if (i + 6) % 4 == 0: ex[i] += xslab((i + 6) // 4)
    ex[OPT["initat"]] = fill2k(sOI, O_OB[0], q, "") + fill2k(sXP, O_XB[1], q, "") + fillsb(O_SB[1], q, "") + ex[OPT["initat"]]
    ex[OPT["initat"] + 6] += lane0_store(sFO1)
    TS = OPT["tsat"]
    ex[TS - 1] += [I("ds_read_b64_tr_b16 %s, v%d offset:%d" % (vr(U + 4 * j + 2 * e2, 2), zUA + e2, j * 1024), tag="ur") for j in range(3) for e2 in range(2)]
    ex[TS] += [W(("lg", "ur"))] + [I("buffer_store_dwordx4 %s, v%d, %s, s%d offen sc1" % (vr(U + 4 * j, 4), vL16, WS, sUD + j), tag="tst") for j in range(3)] + fillkv(0x8000, q)
    ex[OPT["f2at"]] += [W(("vm", "kvinit"))] + lane0_store(sFO2)
    ex[OPT["tcat"]] += [I("buffer_load_dwordx4 %s, v%d, %s, 0 offen offset:%d" % (vr(vXOLD[k], 4), vXO, sr(sX, 4), 64 * k), tag="xin") for k in range(2)] \
        + touch2k(sOI, O_OB[0]) + touch2k(sXP, O_XB[1]) + touchsb(O_SB[1])
    ex[OPT["flat"]] += [I(x, tag="f1") for x in f1load()] + [I(x, tag="f2") for x in f2load()]
    for i in range(1, 17):
        e.emit(W(("lg", "r%d" % (i - 1))))
        G = []
        if i < 16:
            spec = ("vm", "xl%d" % (i // 4)) if i % 4 == 0 else ("vm", "wc%d" % i)
            G = groups([W(spec), I("s_barrier")] + reads0(i))
        X = groups(ex[i]) if ex[i] else []
        if i == OPT["s2at"]: X = [checked(f2load(), W(("vm", "f2")), None, None, chk=c2)] + X
        if i > OPT["s2at"]:
            n = 0
            while n < OPT["wbper"] and BG and not (BG[0].tag == "wo" or BG[0].text.startswith("s_add_u32 s50")):
                g_ = []
                while BG[0].kind != "vmem": g_.append(BG.pop(0))
                g_.append(BG.pop(0)); X.append(g_); n += 1
        M = [m for m, _ in mfmas0(i - 1)]
        slots = len(M) - 1
        allg = G + X
        per = [[] for _ in M]
        k = 1; over = max(0, len(allg) - slots)
        gi = 0
        while gi < len(allg):
            per[min(k, len(M) - 1)] += allg[gi]; gi += 1
            if over and gi < len(allg): per[min(k, len(M) - 1)] += allg[gi]; gi += 1; over -= 1
            k += 1
        for m, p in zip(M, per):
            e.emit(m); emit_all(p)
        if OPT["g0st"] and i % 2 == 0 and i < 16: stamp("k%d" % i)
    stamp("gemm0")
    emit_all(sel4_masks() + sel4(zG, zG))
    fin = [I(x) for x in finalize(zR, zG, zG + 1, zR + 2, zR + 3)]
    chk = ["v_xor_b32 v%d, v%d, v%d" % (T[4], zF1, zFL), "v_xor_b32 v%d, v%d, v%d" % (T[3], zF1 + 1, zFL + 1),
           "v_lshrrev_b32 v%d, 8, v%d" % (T[2], T[3]), "v_or_b32 v%d, v%d, v%d" % (T[4], T[4], T[2]), "v_cmp_ne_u32 vcc, 0, v%d" % T[4]]
    flush(e, [fin, cs_compact(0, zCS)])
    e(f"""
    s_mov_b32 exec_lo, 0x00f0000f
    s_mov_b32 exec_hi, 0xf0000f00
    ds_write_b64 v{zST+1}, {vr(zR+2,2)} offset:{L_ST0}
    s_mov_b64 exec, -1
    """)
    emit_all(checked(f1load(), W(("vm", "f1")), None, None, chk=chk))
    e(f"""
    v_and_b32 v{T[3]}, 15, v{T[3]}
    v_cmp_ne_u32 vcc, 0, v{T[3]}
    s_waitcnt lgkmcnt(0)
    """)
    e("s_barrier", mark="G0E")
    for t in (3, 2, 1, 0):
        e("ds_read_b64 %s, v%d offset:%d" % (vr(Z.rs(t), 2), zST, L_ST0 + t * 128), tag="st%d" % t)
        e("ds_read_b64 %s, v%d offset:%d" % (vr(Z.rs2(t), 2), zST + 2, L_ST0 + t * 128), tag="st%d" % t)
    if OPT["force"] == "slow": e("s_branch L_slow")
    elif OPT["force"] != "fast": e("s_cbranch_vccnz L_slow")
    e.vcc_pending = False

def layer0_rest():
    stamp("flags")
    q = vACC[0]
    M = Z
    def at(t): return attn(M, 0, t, M.acc(t), 248 + 2 * t, ["V%d" % t] + (["K%d" % (t - 1)] if t else []), [], ["V%d" % (t - 1)] if t else [])
    def ep(t): return [W(("lg", "st%d" % t))] + epi(M, 0, t)
    KM, VM = "0xff00ff00", None
    def masked(op, kq, vq, sbase):
        return ["s_add_u32 s73, s%d, 0x20000" % sbase, "s_mov_b32 exec_lo, 0xff00ff00", "s_mov_b32 exec_hi, 0xff00ff00",
                "buffer_%s_dwordx4 %s, v%d, %s, s%d offen sc1" % (op, vr(kq, 4), vL16, WS, sbase),
                "s_mov_b32 exec_lo, 0", "s_mov_b32 exec_hi, -1",
                "buffer_%s_dwordx4 %s, v%d, %s, s73 offen sc1" % (op, vr(vq, 4), vL16, WS),
                "s_mov_b32 exec_lo, -1"]
    def glued(L, tag, **kw):
        out = [I(x, tag=tag, glue=True, lat=kw.get("lat")) for x in L]; out[-1].glue = False
        return out
    kv = [I("v_mov_b32 v78, v%d" % M.v(3)), I("v_mov_b32 v79, v%d" % (M.v(3) + 1))] + glued(masked("store", 72, 76, sKVO), "kvst", lat=1)
    kv[-1].mark = "KVP"
    hl = masked("load", 80, 84, sKVI)
    hchk = ["v_xor_b32 v%d, v82, v74" % T[4], "v_xor_b32 v%d, v84, v74" % T[3], "v_or_b32 v%d, v%d, v%d" % (T[4], T[4], T[3]), "v_cmp_ne_u32 vcc, 0, v%d" % T[4]]
    hs = glued(hl, "halo", lat=600); hs[0].delay = ("KVP", OPT["h0d"])
    hs += checked(hl, W(("vm", "halo")), None, None, chk=hchk, mark="H")
    import copy
    bg = copy.deepcopy(BG)
    sides = [bg, ep(3) + kv + fill2k(sOI, O_OB[1], q, ST) + ep(2), at(3), ep(1), at(2), ep(0), at(1), hs, at(0)]
    flush(e, sides, until="A0")
    flush(e, sides[1:])
    stamp("E")
    for x in bg: x.gapmin = 1
    flush(e, [bg], until="WOA")
    for j in range(3): emit_oloads(0, j)
    e.emit(W(("vm", "wo")))
    e("s_barrier")
    stamp("wotr")
    for x in bg: x.gapmin = 30
    return p2(0, extra=bg + wbloads(16, 48, 30))

def bench():
    e("s_waitcnt vmcnt(0) lgkmcnt(0)")
    for r in list(range(24, 128)): e("v_mov_b32 v%d, 0" % r)
    e("s_mov_b32 s3, 0")
    e("L_bl:")
    e("s_cmp_eq_u32 s3, 1")
    e("s_cbranch_scc0 L_bn")
    e("s_memtime s[90:91]")
    e("s_waitcnt lgkmcnt(0)")
    e("L_bn:")
    t0 = e.t; n0 = len(e.out)
    p1(2)
    print("model cycles", e.t - t0, file=sys.stderr)
    bd = OPT["bdrop"].split(",")
    new = []
    for i in e.out[n0:]:
        rep = None
        if "bar" in bd and i.kind == "barrier": rep = "s_nop 0"
        if "dsw" in bd and i.mn.startswith("ds_write"): rep = "ds_read_b32 v96, v6"
        if "vmw" in bd and i.kind == "wait" and "vmcnt" in i.text: rep = "s_nop 0"
        if "valu" in bd and i.is_valu and "vcc" not in i.writes: rep = ""
        if "valu4" in bd and i.is_valu and "vcc" not in i.writes: rep = "v_mov_b32 v96, v97"
        if "ld" in bd and i.kind == "vmem" and "load" in i.mn: rep = "s_nop 0"
        if "st" in bd and i.kind == "vmem" and "store" in i.mn: rep = "s_nop 0"
        if "br" in bd and i.mn == "s_cbranch_vccnz": rep = "s_nop 0"
        if "lgw" in bd and i.kind == "wait" and "lgkmcnt" in i.text: rep = "s_nop 0"
        if rep is None: new.append(i)
        elif rep: new.append(Ins(rep))
    e.out[n0:] = new
    e("s_nop 7")
    e("s_add_u32 s3, s3, 1")
    e("s_cmp_lt_u32 s3, 21")
    e("s_cbranch_scc1 L_bl")
    e("s_waitcnt lgkmcnt(0)")
    e("s_memtime s[72:73]")
    e("s_waitcnt lgkmcnt(0) vmcnt(0)")
    e("s_sub_u32 s72, s72, s90")
    e("v_mov_b32 v0, s72")
    e("s_lshl_b32 s73, s2, 2")
    e("s_add_u32 s73, s73, s%d" % sW)
    e("s_lshl_b32 s73, s73, 2")
    e("s_mov_b64 exec, 1")
    e("buffer_store_dword v0, v%d, %s, s73 offen" % (vL16, sr(sOUT, 4)))

def rest():
    if OPT["bench"]:
        if ST == "": bench()
        else: e("s_endpgm")
        return
    carry = layer0_rest()
    layer(1, carry); layer(2); layer(3)

prologue()
gemm0()
snap = (list(e.vm), list(e.lg), dict(e.marks), e.t, e.t_valu, e.t_mfma, dict(e.t_mem))
ST = ""
rest()
fast_ool = list(ool); ool.clear()
e("L_end:")
e("s_endpgm")
fast_text = e.text(OPT["times"]); nfast = len(e.out); tfast = e.t
e.out = []
e.vm, e.lg, e.marks, e.t, e.t_valu, e.t_mfma, e.t_mem = snap
ST = "sc1"
e("L_slow:")
q = vACC[0]
emit_all(fill2k(sOI, O_OB[0], q, ST) + fill2k(sXP, O_XB[1], q, ST) + fillsb(O_SB[1], q, ST))
e(f"""
v_or_b32 v{zFL+1}, 0x40, v{zFL+1}
s_waitcnt vmcnt(0)
s_barrier
""")
emit_all(lane0_store(sFO1))
e("L_slowpoll:")
for x in f1load(): e(x)
e(f"""
s_sub_u32 s{sBUD}, s{sBUD}, 1
s_cbranch_scc1 L_end
s_waitcnt vmcnt(0)
v_and_b32 v{T[4]}, 0x40, v{zF1+1}
v_cmp_eq_u32 vcc, 0, v{T[4]}
s_cbranch_vccnz L_slowpoll
""")
rest()

hdr = open("cdna_kernels/%s.s.ref" % NAME).read().split("; Override")[0]
out = hdr + "; Persistent fused kernel: 32 clusters of 8 workgroups x 64 same-parity rows; generated by a script.\n"
out += "; @launch grid=(256,1,1) block=(256,1,1) lds=%d\n" % LDS_BYTES
out += '.amdgcn_target "amdgcn-amd-amdhsa--gfx950"\n.text\n.globl %s\n.p2align 8\n.type %s,@function\n%s:\n' % (KN, KN, KN)
out += fast_text + "".join(fast_ool) + e.text() + "".join(ool)
out += """.section .rodata,"a"
.p2align 6
.amdhsa_kernel %s
  .amdhsa_next_free_vgpr 512
  .amdhsa_next_free_sgpr 102
  .amdhsa_accum_offset 256
  .amdhsa_group_segment_fixed_size 0
  .amdhsa_kernarg_size 72
  .amdhsa_user_sgpr_count 2
  .amdhsa_user_sgpr_kernarg_segment_ptr 1
  .amdhsa_system_sgpr_workgroup_id_x 1
  .amdhsa_float_denorm_mode_32 3
.end_amdhsa_kernel
""" % KN
open(sys.argv[1], "w").write(out)
print("fast instrs", nfast, "model cycles", int(tfast), "nop states", e.nops, "stamps", len(stamp_names), " ".join(stamp_names), file=sys.stderr)
```

```python
import re

TRANS = ("v_exp_f32", "v_log_f32", "v_rcp_f32", "v_rsq_f32", "v_sqrt_f32", "v_sin_f32", "v_cos_f32")

def parse_regs(tok):
    tok = tok.strip()
    tok = tok.lstrip("-")
    m = re.fullmatch(r"abs\((.*)\)", tok)
    if m: tok = m.group(1)
    m = re.fullmatch(r"\|(.*)\|", tok)
    if m: tok = m.group(1)
    if tok in ("vcc", "exec", "m0", "scc"): return [tok]
    if tok in ("vcc_lo", "vcc_hi"): return ["vcc"]
    if tok in ("exec_lo", "exec_hi"): return ["exec"]
    m = re.fullmatch(r"([vas])(\d+)", tok)
    if m: return [(m.group(1), int(m.group(2)))]
    m = re.fullmatch(r"([vas])\[(\d+):(\d+)\]", tok)
    if m: return [(m.group(1), i) for i in range(int(m.group(2)), int(m.group(3)) + 1)]
    return []

class Ins:
    def __init__(self, text, tag=None, after=None, mark=None, notbefore=None):
        self.text = text; self.tag = tag; self.after = after or []; self.mark = mark; self.notbefore = notbefore
        self.reads = set(); self.writes = set()
        self.A = self.B = self.C = self.D = frozenset()
        self.states = 1
        self.waitspec = None
        self.blk = None
        t = text.split(";")[0].strip()
        if t.endswith(":"):
            self.kind = "label"; self.mn = t; self.states = 0; return
        parts = t.split(None, 1)
        mn = self.mn = parts[0]
        rest = parts[1] if len(parts) > 1 else ""
        ops = [o.strip() for o in re.split(r",(?![^\[]*\])", rest)] if rest else []
        mods = ""
        if ops:
            lp = ops[-1].split(None, 1)
            ops[-1] = lp[0]
            mods = lp[1] if len(lp) > 1 else ""
        self.mods = mods
        R = [parse_regs(o) for o in ops]
        flat = lambda L: set(x for l in L for x in l)
        self.dpp = "dpp" in mn or "quad_perm" in mods or "row_" in mods
        if mn.startswith("v_mfma"):
            self.kind = "mfma"
            self.D, self.A, self.B, self.C = (frozenset(r) for r in R)
            self.writes = set(self.D); self.reads = set(self.A) | set(self.B) | set(self.C)
            self.passes = 8 if "32x32" in mn else 4
        elif mn.startswith("v_"):
            base = re.sub(r"_(e32|e64|dpp|sdwa)$", "", mn)
            self.kind = "trans" if base in TRANS else "valu"
            if "permlane" in mn and "swap" in mn:
                self.writes = flat(R); self.reads = flat(R)
            else:
                self.writes = set(R[0]); self.reads = flat(R[1:])
                if base in ("v_fmac_f32",) or base.startswith("v_dot2c"): self.reads |= set(R[0])
                if base.startswith("v_cndmask") and len(ops) == 3: self.reads.add("vcc")
                if self.dpp: self.reads |= set(R[0])
        elif mn.startswith("buffer_") or mn.startswith("global_"):
            self.kind = "vmem"
            if " lds" in (" " + mods):
                self.reads = flat(R) | {"m0"}
            elif "_load" in mn:
                self.writes = set(R[0]); self.reads = flat(R[1:])
            else:
                self.reads = flat(R)
                if mn.startswith("buffer_store"): self.sdata = set(R[0])
                else: self.sdata = set(R[1])
                self.wide = mn.endswith("x4") or mn.endswith("x3")
        elif mn.startswith("ds_"):
            self.kind = "ds"
            if "read" in mn or "permute" in mn or "swizzle" in mn:
                self.writes = set(R[0]); self.reads = flat(R[1:])
            else:
                self.reads = flat(R)
        elif mn == "s_nop":
            self.kind = "nop"; self.states = int(ops[0], 0) + 1
        elif mn == "s_waitcnt":
            self.kind = "wait"
        elif mn in ("s_barrier",):
            self.kind = "barrier"
        elif mn.startswith("s_cbranch") or mn in ("s_branch", "s_endpgm"):
            self.kind = "branch"
            if "vcc" in mn: self.reads = {"vcc"}
        elif mn.startswith("s_load") or mn in ("s_memtime", "s_memrealtime"):
            self.kind = "smem"; self.writes = set(R[0]); self.reads = flat(R[1:])
        elif mn.startswith("s_"):
            self.kind = "salu"
            if mn.startswith("s_cmp") or mn in ("s_setprio", "s_sleep", "s_bitcmp1_b32", "s_bitcmp0_b32"):
                self.reads = flat(R)
            else:
                self.writes = set(R[0]); self.reads = flat(R[1:])
                if "saveexec" in mn: self.writes.add("exec")
        else:
            raise ValueError("unknown instr " + text)

    @property
    def is_valu(self): return self.kind in ("valu", "trans")

def vregs(s): return {r for r in s if isinstance(r, tuple) and r[0] in "va"}
def sregs(s): return {r for r in s if (isinstance(r, tuple) and r[0] == "s") or r == "vcc"}

def need(p, c):
    n = 0
    if p.is_valu:
        wv = vregs(p.writes); ws = sregs(p.writes)
        if c.kind == "mfma" and wv & c.reads: n = max(n, 2)
        if c.is_valu:
            if "permlane" in c.mn and wv & c.reads: n = max(n, 2)
            if c.dpp and wv & c.reads: n = max(n, 2)
            if (c.mn.startswith("v_readlane") or c.mn.startswith("v_readfirstlane")) and wv & c.reads: n = max(n, 1)
            if ws & c.reads: n = max(n, 4 if "lane" in c.mn else 2)
            if p.kind == "trans" and wv & (c.reads | c.writes): n = max(n, 1)
        if p.kind == "trans" and c.kind in ("vmem", "ds", "mfma") and wv & c.reads: n = max(n, 2)
        if c.kind == "vmem" and ws & c.reads: n = max(n, 5)
        if c.kind in ("salu", "branch") and ws & c.reads: n = max(n, 1)
    if p.kind == "mfma":
        big = p.passes == 8
        if c.kind == "mfma":
            if p.D & (c.A | c.B): n = max(n, 12 if big else 8)
            if p.D & c.C and not (p.D == c.C and p.passes == c.passes): n = max(n, 10 if big else 6)
            if p.D & c.D and not (p.D == c.C): n = max(n, 10 if big else 6)
        elif c.is_valu or c.kind in ("vmem", "ds"):
            if p.D & (c.reads | c.writes): n = max(n, 12 if big else 8)
            if c.is_valu and p.C & c.writes: n = max(n, 7 if big else 3)
    if p.kind == "vmem" and getattr(p, "wide", False):
        if p.sdata & c.writes: n = max(n, 2)
    if p.kind == "salu" and "m0" in p.writes and "m0" in c.reads and c.kind in ("vmem", "ds"): n = max(n, 1)
    return n

heavy = lambda i: i.kind == "trans" or "permlane" in i.mn
LAT = {"vm": 400.0, "lg": 110.0}

class Emitter:
    def __init__(self):
        self.out = []
        self.vm = []
        self.lg = []
        self.marks = {}
        self.nops = 0
        self.vcc_pending = False
        self.blk = None; self._nblk = 0; self._saved = None
        self.t = 0.0; self.t_valu = 0.0; self.t_mfma = 0.0; self.t_mem = {'vmem': -1e9, 'ds': -1e9}
        self.drop = lambda ins: False
    def begin_cond(self, keep=False):
        self._nblk += 1; self.blk = self._nblk
        self._saved = None if keep else (len(self.vm), len(self.lg))
    def end_cond(self):
        self.blk = None
        if self._saved:
            del self.vm[self._saved[0]:]; del self.lg[self._saved[1]:]
    def gap_needed(self, c):
        dist = 0; worst = 0
        for p in reversed(self.out[-120:]):
            if dist >= 20: break
            nd = need(p, c) - dist
            if nd > worst: worst = nd
            if p.blk is None or p.blk == self.blk: dist += p.states
        return worst
    def _find(self, cnt, tag):
        lst = self.vm if cnt == "vm" else self.lg
        idx = max([i for i, t in enumerate(lst) if t[0] == tag], default=None)
        if idx is None: raise ValueError("wait on unknown tag %s" % tag)
        return lst, idx
    def ready_time(self, ins):
        r = 0.0
        for cnt, tag in (ins.waitspec or []):
            lst, idx = self._find(cnt, tag)
            r = max([r] + [x[1] + x[2] for x in lst[max(0, idx - 40):idx + 1]])
        return r
    def resolve(self, ins):
        if ins.waitspec:
            best = {}
            for cnt, tag in ins.waitspec:
                lst, idx = self._find(cnt, tag)
                n = min(len(lst) - 1 - idx, 63 if cnt == "vm" else 15)
                best[cnt] = min(n, best.get(cnt, 99))
            parts = [("vmcnt(%d)" if cnt == "vm" else "lgkmcnt(%d)") % n for cnt, n in best.items()]
            ins.text = "s_waitcnt " + " ".join(parts) + " ; " + ",".join(t for _, t in ins.waitspec)
    def cost(self, ins, gap=0):
        start = self.t + 4.0 * gap
        if ins.kind == "label": return start, start
        if ins.is_valu:
            start = max(start, self.t_valu); return start, start + (8.4 if heavy(ins) else 4.45)
        if ins.kind == "mfma":
            start = max(start, self.t_mfma); return start, start + 4.0
        if ins.waitspec:
            return start, max(start + 4.0, self.ready_time(ins))
        d = 4.0 * ins.states
        if ins.kind in ("ds", "vmem"):
            d = 8.0
            if gap == 0 and self.out and self.out[-1].is_valu: start += 4.0
        if ins.mn == "ds_write_b128": d = 28.0
        if ins.mn == "ds_write_b64": d = 14.0
        if ins.mn.startswith("buffer_store"): d = 48.0 if ins.mn.endswith("x4") else 28.0
        if ins.kind == "branch": d = 12.0
        return start, start + d
    def emit(self, ins):
        if isinstance(ins, str): ins = Ins(ins)
        if self.drop(ins):
            if ins.mark: self.marks[ins.mark] = self.t
            return None
        self.resolve(ins)
        g = self.gap_needed(ins)
        start, end = self.cost(ins, g)
        if g > 0:
            n = Ins("s_nop %d" % (g - 1)); n.blk = self.blk; n.t = self.t
            self.out.append(n); self.nops += g
        ins.blk = self.blk; ins.t = start
        self.out.append(ins)
        self.t = end
        if ins.kind == "mfma": self.t_mfma = start + 16.0; self.t_valu = start + 8.0
        lat = getattr(ins, "lat", None)
        if ins.kind == "vmem": self.vm.append((ins.tag, start, lat or LAT["vm"]))
        if ins.kind == "ds": self.lg.append((ins.tag, start, lat or LAT["lg"]))
        if ins.mark: self.marks[ins.mark] = end
        if ins.is_valu and "vcc" in ins.writes: self.vcc_pending = True
        elif "vcc" in ins.reads: self.vcc_pending = False
        return ins
    def ok(self, ins):
        if "vcc" in ins.writes and self.vcc_pending: return False
        return all(a in self.marks for a in ins.after)
    def __call__(self, text, **kw):
        for line in text.strip().split("\n"):
            line = line.strip()
            if not line or line.startswith(";"): continue
            self.emit(Ins(line, **kw))
    def text(self, times=False):
        def f(i):
            if i.kind == "label": return i.text
            return "    " + i.text + (("  ; @%d" % i.t) if times and hasattr(i, "t") else "")
        return "\n".join(f(i) for i in self.out) + "\n"

def W(*spec, **kw):
    d = kw.pop("delay", None)
    i = Ins("s_waitcnt vmcnt(0)", **kw)
    i.delay = d
    i.waitspec = list(spec)
    return i

def I(text, lat=None, delay=None, gapmin=None, glue=False, **kw):
    i = Ins(text, **kw)
    i.glue = glue
    i.lat = lat
    i.delay = delay
    i.gapmin = gapmin
    return i

def run(e, main, sides, longest=False, memgap=44.0, drain=True, tol=1.0):
    ismem = lambda i: i.kind in ("vmem", "ds")
    def emit1(s):
        x = s.pop(0)
        r = e.emit(x)
        if getattr(x, "kind2", None): e.t_mem[x.kind2] = x.t
        if r is not None and ismem(x): e.t_mem[x.kind] = x.t
        while s and (s[0].kind == "label" or getattr(x, "glue", False)):
            x = s.pop(0); e.emit(x)
    def timely(i):
        d = getattr(i, "delay", None)
        if d and (d[0] not in e.marks or e.t < e.marks[d[0]] + d[1]): return False
        if i.waitspec and e.ready_time(i) > e.t + 4.0: return False
        if ismem(i) and e.t < e.t_mem[i.kind] + (getattr(i, "gapmin", None) or memgap): return False
        if getattr(i, "kind2", None) and (e.t < e.t_mem[i.kind2] + (i.gapmin or memgap) or not (e.out[-1].kind == "mfma" or starved(i))): return False
        return True
    def force(mark, depth=0):
        while mark not in e.marks:
            src = [s for s in sides if any(i.mark == mark for i in s)]
            if not src or depth > 8: raise ValueError("nobody provides mark " + mark)
            s = src[0]
            miss = [a for a in s[0].after if a not in e.marks]
            if miss: force(miss[0], depth + 1); continue
            if not e.ok(s[0]):
                for o in sides:
                    if o and o is not s and "vcc" in o[0].reads: emit1(o); break
                else: raise ValueError("vcc deadlock")
                continue
            emit1(s)
    def heads():
        H = [s for s in sides if s and e.ok(s[0]) and timely(s[0])]
        return sorted(H, key=lambda s: -len(s)) if longest else H
    def starved(i):
        if not hasattr(i, "seen"): i.seen = e.t
        return e.t - i.seen > getattr(i, 'patience', 70.0) and not e.out[-1].is_valu
    def step():
        limit = e.t_mfma
        H = heads()
        if e.t + 1.0 < e.t_valu:
            for s in H:
                if not s[0].is_valu and s[0].kind != "mfma" and e.gap_needed(s[0]) == 0: emit1(s); return True
        for s in H:
            if s[0].kind == "mfma" or e.gap_needed(s[0]): continue
            st, en = e.cost(s[0])
            if ismem(s[0]):
                if (not e.out[-1].is_valu and st + 8.0 <= limit + tol) or starved(s[0]): emit1(s); return True
                continue
            if en <= limit + tol or (not s[0].is_valu and st + 4.0 <= limit + tol): emit1(s); return True
        free = int((limit + tol - e.t) // 4)
        for s in H:
            if s[0].kind == "mfma" and e.gap_needed(s[0]) <= max(free, 0): emit1(s); return True
        if free >= 1:
            gs = [e.gap_needed(s[0]) for s in H]
            gs = [g for g in gs if g > 1 or (g == 1 and e.t + 1.0 < e.t_valu)]
            if gs:
                e.emit(Ins("s_nop %d" % (min(free, min(gs)) - 1))); return True
        return False
    for m, att in main:
        for x in [m] + att:
            for nm in getattr(x, "need", []): force(nm)
        while step(): pass
        e.emit(m)
        for a in att: e.emit(a)
    if drain: flush(e, sides, memgap)

def flush(e, sides, memgap=0.0, until=None, longest=False, first=None):
    ismem = lambda i: i.kind in ("vmem", "ds")
    while any(sides) and not (until and until in e.marks):
        best = None
        for s in sides:
            if not s or not e.ok(s[0]): continue
            i = s[0]
            st, en = e.cost(i, e.gap_needed(i))
            if i.waitspec: st = max(st, e.ready_time(i) - 4.0)
            d = getattr(i, "delay", None)
            if d:
                if d[0] not in e.marks: st += 1e6
                else: st = max(st, e.marks[d[0]] + d[1])
            if i.kind == "mfma": st += 3.0 if getattr(i, "lazy", False) else -0.5
            if getattr(i, "lazy", False): st += 0.5
            if ismem(i) and e.out[-1].is_valu and getattr(i, "soft", False) and e.t < e.t_mem[i.kind] + 2 * i.gapmin: st += 6.0
            if getattr(i, "kind2", None): st = max(st - 0.1, e.t_mem[i.kind2] + (i.gapmin or memgap))
            if ismem(i): st = max(st - 4.5, e.t_mem[i.kind] + (getattr(i, "gapmin", None) or memgap))
            if best is None or st < best[0] - 0.01 or (longest and st < best[0] + 0.01 and len(s) > len(best[1]) and best[1] is not first): best = (st, s)
        if best is None: raise ValueError("schedule deadlock: " + str([s[0].text for s in sides if s]))
        s = best[1]
        x = s.pop(0)
        r = e.emit(x)
        if getattr(x, "kind2", None): e.t_mem[x.kind2] = x.t
        if r is not None and ismem(x): e.t_mem[x.kind] = x.t
        while s and (s[0].kind == "label" or getattr(x, "glue", False)):
            x = s.pop(0); e.emit(x)
```

```python
import sys, struct, copy
from asmlib3 import *

NAME = "interleave_layers__sliding_local_dilated__sliding_local_dilated__prompt"
KN = NAME + "_kernel"
OPT = dict(stamps=False, force="", rot=2, bench="", hgo=0, only="", g0st=0, bdrop="", drop="", times=False, w64=0, pace=90, g0gap=40, g0tol=4, initat=3, uat=6, tcat=9, flat=13, la=4, h3=1, c0=60, blat=700, trg=24, twg=60, h0d=500, wbx=11, x1d=560, wgap=64, wgap2=40, lgap=64, lgap2=30, bks=12, bks3=12, cut=30, lox=50, vdef=8, hd=550, pgap=30, pfd=420, p2tol=1, tol="1/1/1/1/1", s0d=120)
for a in sys.argv[2:]:
    k, v = a.split("=", 1)
    OPT[k] = {"True": True, "False": False}.get(v, int(v) if v.lstrip("-").isdigit() else v)
LD = OPT.get("ld", "sc1").replace("+", " ")
STF = OPT.get("stf", "").replace("+", " ")
ST = ""

WOT_OFF = 0; FL1 = 0x80000; FL2 = 0x82000; EPOCH = 0x84000; HB = 0x88000
O_XB = [0, 0x10000]; O_OB = [0x20000, 0x30000]; O_KV = 0x40000; O_SB = [0x68000, 0x69000]; CS = 0x6a000
WS_SIZE = HB + 32 * CS
STAMP_OFF = 0x2000000
L_X = 0; L_WO = [32768, 98304]; LDS_BYTES = 163840; L_ST0 = 24576
def slot(i): return (7 - ((i + 5) % 7)) * 12288
T = [0, 1, 2, 3, 4, 5]
vL16, vSW, vOS, vSL, vSS, vXO, vID = 6, 7, 8, 9, 10, 11, 14
vL16b = 5; vDUM = 96
vCS = [(12, 13, 120), (121, 122, 123)]
vBIAS = 16; vPM = 20; vONES = 22
vSTG = 24; vRING = 40; vACC = [56, 68]
vH = 98
vXOLD = [100, 124]
vOBUF = [24, 40, 56, 24]; vWR = 72; vPACC = 104
class RM: pass
N = RM()
N.acc = lambda t: vACC[t & 1]
N.q = lambda t: 80 + 2 * (t & 1); N.k = lambda t: 88 if t < 0 else 84 + 2 * (t & 1)
N.v = lambda t: 92 + 2 * (t & 1); N.c = lambda t: 96 + (t & 1)
N.kh = 88
N.rs = lambda t: 104 + 4 * (t & 1); N.nm = lambda t: 105 + 4 * (t & 1); N.rs2 = lambda t: 106 + 4 * (t & 1); N.nm2 = lambda t: 107 + 4 * (t & 1)
N.va = lambda t: (92, True) if t == 2 else ((90, False) if t == 0 else (92, False))
Z = RM()
Z.acc = lambda t: 128 + 12 * t
Z.q = lambda t: 216 + 2 * t; Z.k = lambda t: 80 if t < 0 else (72 if t == 3 else 224 + 2 * t)
Z.v = lambda t: 88 + 2 * t; Z.c = lambda t: 244 + t
Z.rs = lambda t: 176 + 4 * t; Z.nm = lambda t: 177 + 4 * t; Z.rs2 = lambda t: 178 + 4 * t; Z.nm2 = lambda t: 179 + 4 * t
Z.va = lambda t: (86 + 2 * t, False)
zXB = [176, 196]; zCS = 216; zG = 228; zR = 232; zONE = 236; zA = 240; zAO = 244; zTR = 248; zXV = 250; zUV = 251; zUA = 252; zOV = 253; zWV = 254
zTA = 97
vBV, vBT = 0, 1
zFL = 60; zF1 = 62; zF2 = 64
sWS, sOUT, sX, sWA, sM = 8, 12, 16, 20, 28
sW, sHG, sC, sB, sROT, sBUD, sHBIAS, sSCALE = 36, 37, 38, 39, 40, 41, 42, 43
sU1, sWOA, sWBP = 44, 24, 50
sXBASE, sUS, sUD, sW3K, sW1K, sN1, sN2, sFO1, sFO2 = 52, 53, 56, 59, 4, 5, 6, 7, 93
sR, sKVI, sKVO, sXP, sOI, sOP, sOL, sF, sF2, sWB, sWOT, sWL = range(60, 72)
sWL2 = 69
sTMP = list(range(78, 90)) + list(range(94, 102))
_st = [0]
def stmp():
    _st[0] = (_st[0] + 1) % len(sTMP)
    return sTMP[_st[0]]

def vr(b, n): return "v[%d:%d]" % (b, b + n - 1)
def sr(b, n): return "s[%d:%d]" % (b, b + n - 1)
WS = sr(sWS, 4)
def wreg(typ, f, half=None):
    if typ == 0: p, b = "a", 4 * f
    elif f < 16: p, b = "a", 192 + 4 * f
    else: p, b = "v", 128 + 4 * (f - 16)
    if half is None: return "%s[%d:%d]" % (p, b, b + 3)
    return "%s[%d:%d]" % (p, b + 2 * half, b + 2 * half + 1)
def fbits(x): return "0x%08x" % struct.unpack("<I", struct.pack("<f", x))[0]
MF32 = "v_mfma_f32_16x16x32_bf16"; MF16 = "v_mfma_f32_16x16x16_bf16"

e = Emitter()
_drop = [d for d in OPT["drop"].split(",") if d]
e.drop = lambda ins: ins.kind == "vmem" and ins.tag in _drop
ool = []
_lab = [0]
def lab(p):
    _lab[0] += 1
    return "L_%s_%d" % (p, _lab[0])
def emit_all(L):
    for i in L: e.emit(i)

stamp_names = []
def stamp(name="", real=False):
    if not OPT["stamps"]: return
    if OPT["only"] and name not in OPT["only"].split(","): return
    if ST != "sc1": stamp_names.append(name)
    if name == "cnt": e("s_mov_b32 s90, s52"); e("s_mov_b32 s52, 0")
    else: e("s_memrealtime s[90:91]" if real else "s_memtime s[90:91]")
    e("s_waitcnt lgkmcnt(0)")
    e("v_writelane_b32 v%d, s90, 0" % vSL)
    e("s_mov_b64 exec, 1")
    e("buffer_store_dword v%d, v%d, %s, s92 offen" % (vSL, vL16, WS), tag="stamp")
    e("s_mov_b64 exec, -1")
    e("s_add_u32 s92, s92, 4")
    e("s_nop 1")
    e("v_writelane_b32 v%d, 0, 0" % vSL)
    e.vm.pop()

LREG = [24, 26, 52, 54, 56, 16, 18, 20, 22]
CURL = [0]
def lstamp(i):
    if OPT["stamps"] and OPT.get("light") and CURL[0] == 2: e("s_memtime s[%d:%d]" % (LREG[i], LREG[i] + 1))
def ldump(n):
    if not (OPT["stamps"] and OPT.get("light") and CURL[0] == 3): return
    e("s_waitcnt lgkmcnt(0)")
    for i in range(n):
        if ST != "sc1": stamp_names.append("l%d" % i)
        e("v_writelane_b32 v%d, s%d, 0" % (vSL, LREG[i]))
        e("s_mov_b64 exec, 1")
        e("buffer_store_dword v%d, v%d, %s, s92 offen" % (vSL, vL16, WS), tag="stamp")
        e("s_mov_b64 exec, -1")
        e("s_add_u32 s92, s92, 4")
        e("s_nop 1")
        e.vm.pop()
    e("v_writelane_b32 v%d, 0, 0" % vSL)

def maxchain(dst, regs):
    out = []; regs = list(regs)
    out.append("v_max3_u32 v%d, v%d, v%d, v%d" % (dst, regs[0], regs[1], regs[2])); regs = regs[3:]
    while len(regs) >= 2:
        out.append("v_max3_u32 v%d, v%d, v%d, v%d" % (dst, dst, regs[0], regs[1])); regs = regs[2:]
    if regs: out.append("v_max_u32 v%d, v%d, v%d" % (dst, dst, regs[0]))
    return out

def checked(loads, waitins, chk_regs, tmp, retry_wait=0, chk=None, **kw):
    lr, lb = lab("retry"), lab("back")
    if chk is None:
        if len(chk_regs) == 1: chk = []; src = chk_regs[0]
        else: chk = maxchain(tmp, chk_regs); src = tmp
        chk = chk + ["v_cmp_eq_u32 vcc, -1, v%d" % src]
    s = [waitins] + [I(c) for c in chk] + [I("s_cbranch_vccnz " + lr), I(lb + ":", **kw)]
    o = Emitter()
    o(lr + ":")
    for l in loads: o(l)
    if OPT["stamps"] and not OPT.get("light"):
        tg = waitins.waitspec[0][1]
        k = {"og0": 0, "og1": 1, "og2": 1, "og3": 1, "xs3_0": 2, "xs3_1": 6, "xs3_2": 6, "xs3_3": 6, "xs2": 3, "xs1": 3, "xs0": 3, "sl": 4, "halo": 5}.get(tg, 6)
        o("s_add_u32 s52, s52, %d" % (1 << (4 * k)) if k < 7 else "")
    o("s_sub_u32 s%d, s%d, 1" % (sBUD, sBUD))
    o("s_cbranch_scc1 L_end")
    o("s_waitcnt vmcnt(%d)" % retry_wait)
    for c in chk: o(c)
    o("s_cbranch_vccnz " + lr)
    o("s_branch " + lb)
    ool.append(o.text())
    return s

BC = "row_newbcast:%d row_mask:0xf bank_mask:0xf"
def epi_kq(M, typ, t, after=None):
    a = M.acc(t); q, k = a, a + 4; cq, ck, cv = vCS[typ]
    s = []
    for r in range(4): s.append(I("v_fmac_f32_dpp v%d, v%d, v%d %s" % (k + r, ck, M.nm(t), BC % r), after=after if r == 0 else None))
    for r in range(4): s.append(I("v_mul_f32 v%d, v%d, v%d" % (k + r, M.rs(t), k + r)))
    s.append(I("v_cvt_pk_bf16_f32 v%d, v%d, v%d" % (M.k(t), k, k + 1)))
    s.append(I("v_cvt_pk_bf16_f32 v%d, v%d, v%d" % (M.k(t) + 1, k + 2, k + 3), mark="K%d" % t))
    for r in range(4): s.append(I("v_fmac_f32_dpp v%d, v%d, v%d %s" % (q + r, cq, M.nm(t), BC % r)))
    s.append(I("v_cvt_pk_bf16_f32 v%d, v%d, v%d" % (M.q(t), q, q + 1)))
    s.append(I("v_cvt_pk_bf16_f32 v%d, v%d, v%d" % (M.q(t) + 1, q + 2, q + 3)))
    s.append(I("v_mul_f32 v%d, s%d, v%d" % (M.c(t), sSCALE, M.rs(t)), mark="Q%d" % t))
    return s
def epi_v(M, typ, t, after=None):
    v = M.acc(t) + 8; cv = vCS[typ][2]
    s = []
    for r in range(4): s.append(I("v_fmac_f32_dpp v%d, v%d, v%d %s" % (v + r, M.nm2(t), cv, BC % r), after=after if r == 0 else None))
    for r in range(4): s.append(I("v_mul_f32_dpp v%d, v%d, v%d %s" % (v + r, M.rs2(t), v + r, BC % r)))
    s.append(I("v_cvt_pk_bf16_f32 v%d, v%d, v%d" % (M.v(t), v, v + 1)))
    s.append(I("v_cvt_pk_bf16_f32 v%d, v%d, v%d" % (M.v(t) + 1, v + 2, v + 3), mark="V%d" % t))
    return s
def epi(M, typ, t, after=None): return epi_kq(M, typ, t, after) + epi_v(M, typ, t)

def sel4(dst, a):
    return [I("v_cndmask_b32 v%d, v%d, v%d, s[44:45]" % (dst, a, a + 1)), I("v_cndmask_b32 v%d, v%d, v%d, s[46:47]" % (dst, dst, a + 2)),
            I("v_cndmask_b32 v%d, v%d, v%d, s[48:49]" % (dst, dst, a + 3))]
def sel4_masks():
    return [I("s_mov_b32 s44, 0x22222222"), I("s_mov_b32 s45, s44"), I("s_lshl_b64 s[46:47], s[44:45], 1"), I("s_lshl_b64 s[48:49], s[44:45], 2")]
def cs_compact(typ, a):
    return sel4(vCS[typ][0], a) + sel4(vCS[typ][1], a + 4) + [I("v_mov_b32 v%d, v%d" % (vCS[typ][2], a + 8), mark="CS")]
def cs_mfma(typ, ks, a, ones):
    out = []
    for j in range(3):
        w = wreg(typ, 3 * ks + j); A, B = (w, vr(ones, 4)) if j < 2 else (vr(ones, 4), w)
        out.append(I("%s %s, %s, %s, %s" % (MF32, vr(a + 4 * j, 4), A, B, vr(a + 4 * j, 4) if ks else "0")))
    return out

def attn(M, l, t, a, ta, depS_p, depS_c, depV):
    sc, sp, lsum = a, a + 4, a + 8
    c = M.c(t); kprev = M.k(t - 1)
    s = []
    if t == 0:
        for r in range(4):
            s.append(I("v_add_f32 v%d, s%d, v%d" % (sp + r, sHBIAS, vBIAS + r), after=depS_p if r == 0 else None))
        s.append(I("%s %s, %s, %s, %s" % (MF16, vr(sc, 4), vr(M.k(t), 2), vr(M.q(t), 2), vr(vBIAS, 4)), after=depS_c))
        s.append(I("%s %s, %s, %s, %s" % (MF16, vr(sp, 4), vr(kprev, 2), vr(M.q(t), 2), vr(sp, 4)), after=["H"]))
    else:
        s.append(I("%s %s, %s, %s, %s" % (MF16, vr(sp, 4), vr(kprev, 2), vr(M.q(t), 2), vr(vBIAS, 4)), after=depS_p))
        s.append(I("%s %s, %s, %s, %s" % (MF16, vr(sc, 4), vr(M.k(t), 2), vr(M.q(t), 2), vr(vBIAS, 4)), after=depS_c))
    for r in range(4):
        s.append(I("v_cndmask_b32 v%d, v%d, v%d, %s" % (sc + r, sp + r, sc + r, sr(sM + 2 * r, 2))))
    s.append(I("v_max3_f32 v%d, v%d, v%d, v%d" % (sp, sc, sc + 1, sc + 2)))
    s.append(I("v_max_f32 v%d, v%d, v%d" % (sp + 1, sp, sc + 3)))
    s.append(I("v_max_f32 v%d, v%d, v%d" % (sp, sp, sc + 3)))
    s.append(I("v_permlane32_swap_b32 v%d, v%d" % (sp, sp + 1)))
    s.append(I("v_max_f32 v%d, v%d, v%d" % (sp + 2, sp, sp + 1)))
    s.append(I("v_max_f32 v%d, v%d, v%d" % (sp, sp, sp + 1)))
    s.append(I("v_permlane16_swap_b32 v%d, v%d" % (sp, sp + 2)))
    s.append(I("v_max_f32 v%d, v%d, v%d" % (sp, sp, sp + 2)))
    s.append(I("v_mul_f32 v%d, -v%d, v%d" % (sp, sp, c)))
    for r in range(4): s.append(I("v_fma_f32 v%d, v%d, v%d, v%d" % (sc + r, sc + r, c, sp)))
    s[-1].mark = "F%d" % t
    for r in range(4): s.append(I("v_exp_f32 v%d, v%d" % (sc + r, sc + r)))
    s.append(I("v_cvt_pk_bf16_f32 v%d, v%d, v%d" % (ta, sc, sc + 1)))
    s.append(I("v_cvt_pk_bf16_f32 v%d, v%d, v%d" % (ta + 1, sc + 2, sc + 3)))
    va, curfirst = M.va(t)
    pc, pp = (sp, sp + 2) if curfirst else (sp + 2, sp)
    s.append(I("v_and_b32 v%d, v%d, v%d" % (pc, ta, vPM)))
    s.append(I("v_and_b32 v%d, v%d, v%d" % (pc + 1, ta + 1, vPM + 1)))
    s.append(I("%s %s, %s, %s, 0" % (MF16, vr(sc, 4), vr(vONES, 2), vr(ta, 2))))
    s.append(I("v_xor_b32 v%d, v%d, v%d" % (pp, ta, pc)))
    s.append(I("v_xor_b32 v%d, v%d, v%d" % (pp + 1, ta + 1, pc + 1)))
    st = stmp()
    if t % 2 == 0: s.append(I("s_add_u32 s%d, s%d, %d" % (st, sOP, O_OB[l & 1] + t * 16384)))
    s.append(I("%s %s, %s, %s, 0" % (MF32, vr(lsum, 4), vr(va, 4), vr(sp, 4)), after=depV, mark="PV%d" % t))
    s.append(I("v_rcp_f32 v%d, v%d" % (sc, sc)))
    for r in range(4): s.append(I("v_mul_f32 v%d, v%d, v%d" % (lsum + r, sc, lsum + r)))
    s.append(I("v_cvt_pk_bf16_f32 v%d, v%d, v%d" % (ta + 1, lsum + 2, lsum + 3)))
    s.append(I("v_cvt_pk_bf16_f32 v%d, v%d, v%d" % (ta, lsum, lsum + 1)))
    if t % 2: s[-1].mark = "A%d" % t
    else:
        s.append(I("v_permlane16_swap_b32 v%d, v%d" % (ta - 1, ta + 1), after=["A%d" % (t + 1)]))
        s.append(I("v_permlane16_swap_b32 v%d, v%d" % (ta - 2, ta)))
        s.append(I("v_min_u32 v%d, -2, v%d" % (ta + 1, ta + 1)))
        s.append(I("buffer_store_dwordx4 %s, v%d, %s, s%d offen %s" % (vr(ta - 2, 4), vOS, WS, st, ST), tag="ost", mark="A%d" % t, gapmin=1))
    return s

def kvpub(M, l, q):
    st = stmp()
    return [I("v_mov_b32 v%d, v%d" % (q, M.k(3)), after=["V3"]), I("v_mov_b32 v%d, v%d" % (q + 1, M.k(3) + 1)),
            I("s_add_u32 s%d, s%d, %d" % (st, sKVO, l * 0x8000)),
            I("v_mov_b32 v%d, v%d" % (q + 2, M.v(3))), I("v_min_u32 v%d, -2, v%d" % (q + 3, M.v(3) + 1)),
            I("buffer_store_dwordx4 %s, v%d, %s, s%d offen sc1" % (vr(q, 4), vL16, WS, st), tag="kvst", mark="KVP", gapmin=1, lat=1000)]
def halo(M, l, delay, lat=900):
    st = 75
    hl = ["s_add_u32 s%d, s%d, %d" % (st, sKVI, l * 0x8000),
          "buffer_load_dwordx4 %s, v%d, %s, s%d offen sc1" % (vr(M.kh, 4), vL16, WS, st)]
    return [I(hl[0], delay=delay), I(hl[1], tag="halo", lat=lat)] + checked(hl, W(("vm", "halo")), [M.kh + 3], None, mark="H")

def stage_loads(l, t):
    st = 73
    loads = ["s_add_u32 s%d, s%d, %d" % (st, sR, O_XB[l & 1] + t * 16384)]
    loads += ["buffer_load_dwordx4 %s, v%d, %s, s%d offen offset:%d %s" % (vr(vSTG + 4 * j, 4), vSW, WS, st, j * 1024, LD) for j in range(4)]
    return loads
def stage_streams(l):
    loads = stage_loads(l, 2)
    ls = [I(loads[0])] + [I(loads[1 + j], tag="xs2", gapmin=OPT["lgap2"], mark="xl2" if j == 3 else None) for j in range(4)]
    ws_ = checked(loads, W(("vm", "xs2"), after=["xl2"]), [vSTG + 4 * j + 3 for j in range(4)], T[4])
    for j in range(4):
        ws_.append(I("ds_write_b128 v%d, %s offset:%d" % (vSW, vr(vSTG + 4 * j, 4), L_X + j * 1024), tag="xw2", gapmin=OPT["wgap2"], lat=60, mark="xw2_%d" % j))
    for t in (1, 0):
        ls += [I("s_add_u32 s73, s%d, %d" % (sR, O_XB[l & 1] + t * 16384), after=["B%d" % (t + 1)]), I("s_lshl_b32 s72, s%d, 12" % sW)]
        for j in range(4):
            if l == 1:
                ls.append(I("s_add_u32 m0, s72, %d" % (L_X + (t & 1) * 16384), glue=True, gapmin=OPT["lgap"])); ls[-1].kind2 = "vmem"
            elif j == 0: ls.append(I("s_add_u32 m0, s72, %d" % (L_X + (t & 1) * 16384)))
            ls.append(I("buffer_load_dwordx4 v%d, %s, s73 offen offset:%d %s lds" % (vSW, WS, j * 1024, LD), tag="xs%d" % t, mark="xl%d" % t if j == 3 else None, gapmin=OPT["lgap"]))
    if l < 3:
        ls += [I("s_lshl_b32 s73, s%d, 16" % sHG, after=["B0"]), I("s_add_u32 s73, s73, %d" % (WOT_OFF + 64512)),
               I("s_mov_b32 m0, %d" % (L_WO[1] + 64512)),
               I("buffer_load_dwordx4 v%d, %s, s73 offen sc1 lds" % (vL16, WS), tag="hole", lat=700, mark="HOLE")]
    return ls, ws_

def finalize(S, SS, t1, rstd, nmean):
    return [
        "v_mul_f32 v%d, %s, v%d" % (S, fbits(1.0 / 512), S),
        "v_mul_f32 v%d, %s, v%d" % (SS, fbits(1.0 / 512), SS),
        "v_fma_f32 v%d, -v%d, v%d, v%d" % (SS, S, S, SS),
        "v_max_f32 v%d, 0, v%d" % (SS, SS),
        "v_cvt_pk_bf16_f32 v%d, v%d, -v%d" % (S, SS, S),
        "v_lshlrev_b32 v%d, 16, v%d" % (t1, S),
        "v_add_f32 v%d, %s, v%d" % (t1, fbits(1e-5), t1),
        "v_cvt_pk_bf16_f32 v%d, v%d, v%d" % (t1, t1, t1),
        "v_lshlrev_b32 v%d, 16, v%d" % (t1, t1),
        "v_sqrt_f32 v%d, v%d" % (t1, t1),
        "v_and_b32 v%d, 0xffff0000, v%d" % (nmean, S),
        "v_cvt_pk_bf16_f32 v%d, v%d, v%d" % (t1, t1, t1),
        "v_lshlrev_b32 v%d, 16, v%d" % (t1, t1),
        "v_rcp_f32 v%d, v%d" % (rstd, t1)]

def scratch(l): return (L_WO[0] if l == 3 else L_WO[1]) + 65536 - 512
def stats(l):
    R = 80; sc = scratch(l)
    loads = ["s_add_u32 s74, s%d, %d" % (sR, O_SB[l & 1]), "s_add_u32 s74, s74, s%d" % sW1K,
             "buffer_load_dwordx4 %s, v%d, %s, s74 offen %s" % (vr(R, 4), vL16, WS, LD)]
    adr = [I(x) for x in [
        "v_bfe_u32 v%d, v%d, 4, 4" % (vH, vL16), "v_lshlrev_b32 v%d, 3, v%d" % (vH, vH), "v_and_b32 v%d, 0x18, v%d" % (vH + 1, vH),
        "v_add_u32 v%d, %d, v%d" % (vH, sc, vH),
        "v_lshrrev_b32 v%d, 8, v%d" % (R + 5, vL16), "v_lshl_add_u32 v%d, v%d, 5, v%d" % (vH + 1, R + 5, vH + 1), "v_add_u32 v%d, %d, v%d" % (vH + 1, sc, vH + 1),
        "s_lshl_b32 s75, s%d, 7" % sW, "s_add_u32 s75, s75, %d" % sc,
        "v_lshrrev_b32 v%d, 6, v%d" % (R + 5, vL16), "v_lshl_add_u32 v%d, v%d, 3, s75" % (R + 5, R + 5)]]
    s = adr + [I(loads[0]), I(loads[1]), I(loads[2], tag="sl", delay=("B3", OPT["s0d"]), gapmin=OPT["lgap2"], mark="sll")]
    chk = ["v_max_u32 v%d, v%d, v%d" % (T[5], R + 1, R + 3), "v_cmp_eq_u32 vcc, -1, v%d" % T[5]]
    s += checked(loads, W(("vm", "sl")), None, None, chk=chk)
    for o in (0, 1): s.append(I("v_add_f32 v%d, v%d, v%d" % (R + o, R + o, R + 2 + o)))
    for o in (0, 1): s.append(I("v_add_f32_dpp v%d, v%d, v%d quad_perm:[1,0,3,2] row_mask:0xf bank_mask:0xf" % (R + 2 + o, R + o, R + o)))
    for o in (0, 1): s.append(I("v_add_f32_dpp v%d, v%d, v%d quad_perm:[2,3,0,1] row_mask:0xf bank_mask:0xf" % (R + o, R + 2 + o, R + 2 + o)))
    s += [I(x) for x in finalize(R, R + 1, R + 4, R + 2, R + 3)]
    s.append(I("ds_write_b64 v%d, %s" % (R + 5, vr(R + 2, 2)), tag="sw", mark="SW", gapmin=1, lat=60))
    return s
def statreads(t, after=None):
    s = [I("ds_read_b64 %s, v%d offset:%d" % (vr(N.rs(t), 2), vH, t * 128), tag="st%d" % t, after=after, gapmin=1),
         I("ds_read_b64 %s, v%d offset:%d" % (vr(N.rs2(t), 2), vH + 1, t * 128), tag="st%d" % t, gapmin=1, mark="SR%d" % t)]
    return s

def pubstats_stream(l):
    R, G, O = 104, 108, 96
    out = [I("v_mov_b32 v%d, 0x3f803f80" % (O + i)) for i in range(4)]
    for k in range(2):
        x = vr(vXOLD[k], 4)
        out.append(I("%s %s, %s, %s, %s" % (MF32, vr(G, 4), x, x, vr(G, 4) if k else "0")))
    for k in range(2):
        out.append(I("%s %s, %s, %s, %s" % (MF32, vr(R, 4), vr(O, 4), vr(vXOLD[k], 4), vr(R, 4) if k else "0")))
    out[-1].mark = "PSM"
    st = stmp()
    out.append(I("s_add_u32 s%d, s%d, %d" % (st, sR, O_SB[l & 1])))
    out += sel4(G, G)
    out.append(I("v_min_u32 v%d, -2, v%d" % (R + 1, G)))
    out.append(I("buffer_store_dwordx2 %s, v%d, %s, s%d offen %s" % (vr(R, 2), vSS, WS, st, ST), tag="sst", mark="PS", gapmin=1))
    return out

def bslot(i):
    if i == 5: return 12288
    if i == 6: return 0
    return L_WO[1] + 12288 * (i if i < 5 else (i - 7) % 5)
def bchunk(i, gap=None):
    s = [I("s_add_u32 s76, s%d, %d" % (sROT, i)), I("s_and_b32 s76, s76, 15"), I("s_mul_i32 s76, s76, 98304"),
         I("s_add_u32 m0, s%d, %d" % (sW3K, bslot(i)))]
    s += [I("buffer_load_dwordx4 v%d, %s, s76 offen offset:%d lds" % (vBV, sr(sWA, 4), j * 1024), tag="bc%d" % i, lat=OPT["blat"], gapmin=gap) for j in range(3)]
    s[-1].mark = "BC%d" % i
    return s
def breads(i, low=None):
    a, base = (low, bslot(i)) if bslot(i) < L_WO[1] else (vBT, bslot(i) - L_WO[1])
    s = [I("ds_read_b64_tr_b16 %s, v%d offset:%d" % (wreg(1, 3 * i + j, e2), a, base + j * 1024 + e2 * 512), tag="br%d" % i, gapmin=8) for j in range(3) for e2 in range(2)]
    s[-1].mark = "BR%d" % i
    return s
def wobdma(q, gap):
    s = [I("s_add_u32 s76, s%d, %d" % (sWOT, q * 4096))]
    for j in range(4):
        if q == 3 and j == 3:
            s += [I("s_cmp_eq_u32 s%d, 3" % sW, glue=True), I("s_cselect_b32 m0, %d, m0" % 0x2f000, glue=True)] if False else []
        s += [I("s_add_u32 m0, s%d, %d" % (sWL if not (q == 3 and j == 3) else sWL2, L_WO[1] + q * 4096), glue=True, gapmin=gap),
              I("buffer_load_dwordx4 v%d, %s, s76 offen offset:%d sc1 lds" % (vL16, WS, j * 1024), tag="wo", lat=1)]
        s[-2].kind2 = "vmem"
    return s

def fill2k(sbase, add, q, flav, gap=None):
    st = stmp()
    s = [I("s_add_u32 s%d, s%d, %d" % (st, sbase, add & 0xffffffff))]
    s += [I("buffer_store_dwordx4 %s, v%d, %s, s%d offen offset:%d %s" % (vr(q, 4), vL16, WS, st, k * 1024, flav), tag="init", gapmin=gap) for k in range(2)]
    return s
def touch2k(sbase, add, gap=None, dst=vDUM):
    st = stmp()
    return [I("s_add_u32 s%d, s%d, %d" % (st, sbase, add & 0xffffffff)),
            I("buffer_load_dword v%d, v%d, %s, s%d offen sc1" % (dst, vSL, WS, st), tag="touch", gapmin=gap)]
def fillsb(add, q, flav, gap=None):
    st = stmp()
    return [I("s_add_u32 s%d, s%d, %d" % (st, sR, add & 0xffffffff)),
            I("buffer_store_dwordx2 %s, v%d, %s, s%d offen %s" % (vr(q, 2), vSS, WS, st, flav), tag="init", gapmin=gap)]
def touchsb(add, gap=None, dst=vDUM):
    st = stmp()
    return [I("s_add_u32 s%d, s%d, %d" % (st, sR, add & 0xffffffff)),
            I("buffer_load_dword v%d, v%d, %s, s%d offen sc1" % (dst, vSS, WS, st), tag="touch", gapmin=gap)]
def fillkv(add, q, gap=None):
    st = stmp()
    return [I("s_add_u32 s%d, s%d, %d" % (st, sKVO, add & 0xffffffff)),
            I("buffer_store_dwordx4 %s, v%d, %s, s%d offen sc1" % (vr(q, 4), vL16, WS, st), tag="kvinit", gapmin=gap)]
def ones_q(q): return [I("v_mov_b32 v%d, -1" % (q + i)) for i in range(4)]

def xread(reg, t, ks, tag):
    return I("ds_read_b128 %s, v%d offset:%d" % (vr(reg, 4), vL16, L_X + (t & 1) * 16384 + ks * 1024), tag=tag)

RING6 = [40, 44, 48, 52, 112, 116]
def p1_main(typ, jit):
    uses = [(t, ks) for t in (3, 2, 1, 0) for ks in range(16)]
    free = list(RING6); reg = {}
    nxt = 0; waited = -1
    def rd():
        nonlocal nxt
        reg[nxt] = free.pop(0)
        i = xread(reg[nxt], uses[nxt][0], uses[nxt][1], "f%d" % nxt); nxt += 1
        return i
    first = [rd() for _ in range(3)]
    opened = 3
    steps = [[], [], [], []]; late = []
    for n, (t, ks) in enumerate(uses):
        a = vACC[t & 1]; fr = vr(reg[n], 4)
        g_ = []
        for j in (1, 0, 2):
            w = wreg(typ, ks * 3 + j)
            A, B = (w, fr) if j < 2 else (fr, w)
            g_.append((I("%s %s, %s, %s, %s" % (MF32, vr(a + 4 * j, 4), A, B, vr(a + 4 * j, 4) if ks else "0")), []))
        if n == 48: free += [24, 28, 32]
        defer = n >= 64 - OPT["vdef"]
        if defer: late.append(g_.pop())
        if jit and t == 3: g_ += [(m, []) for m in cs_mfma(typ, ks, vACC[0], 88)]
        for k in range(2):
            if nxt < len(uses) and free and uses[nxt][0] >= opened: g_[k][1].append(rd())
        last = g_[-1][1]
        if t > 0 and ks == (OPT["bks3"] if t == 3 else OPT["bks"]):
            if t == 3:
                w_ = W(("lg", "f%d" % (n + 15 - ks)), ("lg", "xw2"), ("lg", "sw")); w_.need = ["xw2_3", "SW"]
            else:
                w_ = W(("lg", "f%d" % (n + 15 - ks)), ("vm", "xs%d" % (t - 1))); w_.need = ["xl%d" % (t - 1)]
                if t == 1: w_.waitspec.append(("lg", "st0")); w_.need.append("SR0")
            assert nxt > n + 15 - ks
            last += [w_, I("s_barrier", mark="B%d" % (t - 1))]
            waited = n + 15 - ks; opened = t - 1
        if n + 1 < len(uses):
            spec = []
            if waited < n + 1:
                waited = min(n + (2 if nxt - n > 5 else 1), nxt - 1)
                assert waited >= n + 1
                spec.append(("lg", "f%d" % waited))
            nd = []
            if jit and t == 3 and 7 <= ks + 1 < 16: spec.append(("lg", "br%d" % (ks + 1))); nd = ["BR%d" % (ks + 1)]
            if spec:
                w_ = W(*spec); w_.need = nd; last.append(w_)
        if not defer: free.append(reg[n])
        steps[n // 16] += g_
    kq = steps[3][-1][0] if late else steps[3][-2][0]
    steps[3] += late
    kq.mark = "KQ0"
    for k, t in enumerate((3, 2, 1, 0)):
        steps[k][0][0].mark = "S%d" % t; steps[k][-1][0].mark = "G%d" % t
    return first, steps

def oloads(l, j):
    st = stmp()
    L = ["s_add_u32 s%d, s%d, %d" % (st, sOL, O_OB[l & 1] + j * 4096)]
    L += ["buffer_load_dwordx4 %s, v%d, %s, s%d offen offset:%d %s" % (vr(vOBUF[j] + 4 * i, 4), vL16, WS, st, i * 1024, LD) for i in range(4)]
    return L
def emit_oloads(l, j):
    for x in oloads(l, j): e(x, tag="og%d" % j)

def resid():
    return [I("%s %s, %s, %s, 0" % (MF16, vr(vPACC + 4 * u, 4), vr(vID, 2), vr(vXOLD[u >> 1] + 2 * (u & 1), 2))) for u in range(4)]

def s3loads(l):
    return ["s_add_u32 s73, s%d, %d" % (sR, O_XB[l & 1] + 3 * 16384)] + \
        ["buffer_load_dwordx4 %s, v%d, %s, s73 offen offset:%d %s" % (vr(40 + 4 * j, 4), vSW, WS, j * 1024, LD) for j in range(4)]
def s3finish(l):
    loads = s3loads(l)
    for p in range(2):
        chk = ["v_max_u32 v%d, v%d, v%d" % (T[4], 40 + 8 * p + 3, 40 + 8 * p + 7), "v_cmp_eq_u32 vcc, -1, v%d" % T[4]]
        emit_all(checked(loads if p == 0 else loads[3:5], W(("vm", "xs3_%d" % p)), None, None, chk=chk))
        if p == 0: lstamp(7)
        for j in (2 * p, 2 * p + 1):
            e("ds_write_b128 v%d, %s offset:%d" % (vSW, vr(40 + 4 * j, 4), L_X + 16384 + j * 1024), tag="xw3")

WRING = [80, 84, 96, 72, 76, 88, 92, 100]
def word(n): return I("ds_read_b128 %s, v%d offset:%d" % (vr(WRING[n % 8], 4), vL16b, n * 1024), tag="w%d" % n, gapmin=1)
def p2_early(l):
    rs = resid(); rs[0].after = ["V0"]
    w = [I("v_add_u32 v%d, %d, v%d" % (vL16b, L_WO[l & 1], vL16), after=["F0", "F1"])] + [word(n) for n in range(3)]
    return rs, w
def p2(l, cls, extra=None):
    def ocheck(j, js):
        regs = [vOBUF[j] + 4 * i + 3 for i in range(4)]
        re_ = [x for jj in js for x in oloads(l, jj)]
        return checked(re_, W(("vm", "og%d" % j)), regs, T[4], retry_wait=0 if cls else 4 * (len(js) - 1), mark="OK%d" % j)
    if cls is None:
        rs, w = p2_early(l)
        emit_all([w[0], rs[0], w[1], w[2], rs[1], w[3], rs[2], rs[3]])
    if cls == "lo":
        for n in range(3, 7): e.emit(word(n))
        e.emit(W(("vm", "ost")))
        emit_oloads(l, 0); emit_oloads(l, 1)
        lstamp(2)
    oc = ocheck(0, [0, 1, 2] if cls is None else [0])
    if cls == "lo": emit_all(oc)
    else:
        emit_all(oc[:-2])
        for n in range(3, 7): e.emit(word(n))
        emit_all(oc[-2:])
    lstamp(4)
    e.emit(W(("lg", "w0")))
    stamp("p2start")
    order = [(n // 4, n % 4) for n in range(56)] + [(14, 0), (14, 1), (15, 0), (15, 1), (14, 2), (14, 3), (15, 2), (15, 3)]
    main = []
    for n, (ks, u) in enumerate(order):
        j = n // 16
        m = I("%s %s, %s, %s, %s" % (MF32, vr(vPACC + 4 * u, 4), vr(WRING[n % 8], 4), vr(vOBUF[j] + 4 * (ks % 4), 4), vr(vPACC + 4 * u, 4)))
        att = []
        if n + 7 < 64:
            x = word(n + 7); k2, u2 = order[n + 7]
            x = I(x.text.rsplit("offset:", 1)[0] + "offset:%d" % ((4 * k2 + u2) * 1024), tag=x.tag)
            att.append(x)
        if n + 1 < 64 and n % 2 == 0: att.append(W(("lg", "w%d" % min(n + 2, 63))))
        if n % 16 == 0: m.need = ["OK%d" % j]
        if n % 16 == 15: m.mark = "PG%d" % j
        if n == 59: m.mark = "PH0"
        if extra and n == 13: att.append(I("s_barrier"))
        main.append((m, att))
    g2 = [I(x, tag="og2", gapmin=16, lat=420) for x in oloads(l, 2)] if cls else []
    g3 = [I(x, tag="og3", gapmin=16, lat=420) for x in oloads(l, 3)]
    for x in g2 + g3 + (extra or []): x.patience = 0
    g3[0].after = ["PG0"]; g3[-1].mark = "G3I"
    chain = g2 + ocheck(1, [1]) + g3 + ocheck(2, [2]) + ocheck(3, [3])
    extra = extra or []
    if extra: extra[0].after = ["G3I"]
    if cls == "lo" and l < 3:
        sl = [I(x, tag="xs3_%d" % max(0, (k - 1) // 2), gapmin=16) for k, x in enumerate(s3loads(l + 1))]
        for x in sl: x.patience = 0
        sl[0].after = ["PX"]; main[OPT["lox"]][0].mark = "PX"; sl[-1].mark = "XL3"; main[63][0].need = ["XL3"]
        chain += sl
    run(e, main, [chain, extra], drain=False, tol=OPT["p2tol"])
    assert not chain
    st = stmp()
    if l < 3: e("s_add_u32 s%d, s%d, %d" % (st, sXP, O_XB[(l + 1) & 1]))
    for k in range(2):
        for i in (3, 0, 1, 2):
            e("v_cvt_pk_bf16_f32 v%d, v%d, v%d" % (vXOLD[k] + i, vPACC + 8 * k + 2 * i, vPACC + 8 * k + 2 * i + 1))
        if l < 3:
            e("v_min_u32 v%d, -2, v%d" % (vXOLD[k] + 3, vXOLD[k] + 3))
            e("buffer_store_dwordx4 %s, v%d, %s, s%d offen offset:%d %s" % (vr(vXOLD[k], 4), vL16, WS, st, k * 1024, ST), tag="xst")
        else:
            e("buffer_store_dwordx4 %s, v%d, %s, 0 offen offset:%d" % (vr(vXOLD[k], 4), vXO, sr(sOUT, 4), 64 * k))
    stamp("xpub")
    lstamp(5)
    if l == 3: ldump(9)
    if l == 3:
        stamp("rt1", real=True)
        e(f"""
        s_or_b32 s72, s2, s{sW}
        s_cbranch_scc1 L_end
        v_mov_b32 v0, s{sN1}
        s_mov_b32 s72, {EPOCH}
        s_mov_b64 exec, 1
        buffer_store_dword v0, v{vL16}, {WS}, s72 offen sc1
        s_endpgm
        """)
        return
    if extra: flush(e, [extra])
    ps = pubstats_stream(l + 1)
    if cls == "lo":
        emit_all(ps[:8])
        s3finish(l + 1)
        emit_all(ps[8:-1])
        e("s_waitcnt vmcnt(0)")
        e.emit(ps[-1])
    else:
        emit_all(ps[:-1])
        e.emit(W(("vm", "xst")))
        for k, x in enumerate(s3loads(l + 1)): e(x, tag="xs3_%d" % max(0, (k - 1) // 2))
        e.emit(ps[-1])
        lstamp(6)
        s3finish(l + 1)
    e("s_waitcnt lgkmcnt(0)")
    lstamp(8)
    return extra

def p1(l, carry=None):
    typ = l & 1; a0, a1 = vACC
    e.marks = {}
    if l == 1: e.emit(W(("vm", "bc11")))
    e("s_barrier", mark="B3")
    stamp("B3")
    stamp("cnt")
    jit = l == 1
    first, steps = p1_main(typ, jit)
    emit_all(first)
    sld, stg = stage_streams(l)
    def ep(t, after): return [W(("lg", "st%d" % t), after=after)] + epi(N, typ, t)
    ch = stats(l) + statreads(3, ["B2"]) + statreads(2)
    if jit:
        c = cs_compact(1, a0); c[0].after = ["G3", "S2"]
        ch += c
    ch += ep(3, ["G3"]) + statreads(1) + kvpub(N, l, a1) + ep(2, ["G2"]) + statreads(0) + ep(1, ["G1", "A3"])
    [x for x in ch if x.tag == "kvst"][0].after = ["xl1"]
    if l < 3: ch.insert([i for i, x in enumerate(ch) if x.tag == "kvst"][0], W(("vm", "kvinit")))
    ch2 = epi_kq(N, typ, 0, after=["KQ0", "F2", "V1"])
    ch3 = epi_v(N, typ, 0, after=["G0", "PV2"])
    for x in ch3: x.lazy = True
    at = attn(N, l, 3, a0, T[0], ["K2"], ["Q2"], ["V2"]) + attn(N, l, 2, a1, T[2], ["K1"], ["Q1"], ["V1"])
    if l < 3: at.insert([i for i, x in enumerate(at) if x.tag == "ost"][0], W(("vm", "init")))
    at1 = attn(N, l, 1, a1, T[0], ["K0", "A2"], [], ["V0"])
    at0 = halo(N, l, ("S1", OPT["hd"])) + attn(N, l, 0, a0, T[2], ["K0"], ["Q0", "A2"], ["V0"])
    at0[0].after = ["xl0"]
    sides = [stg, sld, ch, at, ch2, at1, at0, ch3]
    emit_all(sld[:3] + ch[:5] + sld[3:4] + ch[5:13] + sld[4:5]); del sld[:5]; del ch[:13]
    e.t_mem["vmem"] = e.t
    if jit:
        for i in range(4): e("v_mov_b32 v%d, 0x3f803f80" % (88 + i))
        q = 92
        sv = breads(7) + breads(8) + [W(("lg", "br8")), I("s_barrier")] + bchunk(12, 16) + bchunk(13, 16) \
            + breads(9) + breads(10) + [W(("lg", "br10")), I("s_barrier")] + bchunk(14, 16) + bchunk(15, 16) + breads(11) \
            + [W(("vm", "bc13")), I("s_barrier")] + breads(12) + breads(13) + [W(("vm", "bc15")), I("s_barrier")] + breads(14) + breads(15) \
            + [W(("lg", "br15")), I("s_barrier", mark="BD")]
        for x in sv: x.patience = 0
        fl = ones_q(q) + fill2k(sXP, O_XB[0], q, ST) + fillsb(O_SB[0], q, ST) + fillkv(2 * 0x8000, q); fl[0].after = ["BC15"]
        f2 = ["s_lshl_b32 s77, s%d, 9" % sHG, "s_add_u32 s77, s77, %d" % FL2, "v_lshrrev_b32 v94, 1, v%d" % vL16,
              "buffer_load_dwordx2 v[92:93], v94, %s, s77 offen sc1" % WS]
        c2 = ["v_xor_b32 v94, s%d, v92" % sN1, "v_xor_b32 v95, s%d, v93" % sN2, "v_lshrrev_b32 v95, 8, v95", "v_or_b32 v94, v94, v95", "v_cmp_ne_u32 vcc, 0, v94"]
        fl[-1].mark = "S2"
        fl = [I(x, tag="f2", lat=600, after=["xl2"]) for x in f2] + checked(f2, W(("vm", "f2")), None, None, chk=c2) + fl
        tc = touch2k(sOI, O_OB[1], dst=vSTG) + touch2k(sXP, O_XB[0], dst=vSTG) + touchsb(O_SB[0], dst=vSTG); tc[0].after = ["B2"]
        wd = wobdma(0, 40) + wobdma(1, 40) + wobdma(2, 40) + wobdma(3, 40); wd[0].after = ["BD"]
        ex = fl + wd + tc
        ex[-1].mark = "WOB"
        sides.insert(2, sv)
        sides.append(ex)
        [x for x in sld if x.after == ["B1"]][0].after = ["B1", "WOB"]
        [x for x in sld if x.after == ["B2"]][0].after = ["B2", "BC15"]
    if l == 2:
        q = 0
        du = ones_q(q) + fillkv(3 * 0x8000, q) + fill2k(sXP, O_XB[1], q, ST) + fillsb(O_SB[1], q, ST)
        du[4].after = ["xl2", "sll"]; du[6].after = ["KVP"]; du[-1].mark = "DU"
        sides.append(du)
        [x for x in ch if x.waitspec and ("vm", "kvinit") in x.waitspec][0].after = ["DK"]; du[5].mark = "DK"
        at[0].after = at[0].after + ["DU"]
    if l < 3:
        ra = ones_q(36) + fill2k(sOI, O_OB[(l + 1) & 1], 36, ST)
        for x in ra: x.tag = "rearm" if x.tag else None
        ra[0].after = ["B2"]; ra[4].after = ["KVP"]; ra[-1].mark = "RA"
        sides.append(ra)
    e.emit(W(("lg", "f0")))
    steps[1][0][0].need = ["CS"] if jit else []
    steps[2][0][0].need = ["KVP"]
    steps[3][0][0].need = ["A3"]
    cut = OPT["cut"]
    steps[3][cut - 1][0].need = ["H"] + (["HOLE", "RA"] if l < 3 else [])
    for k, nm in enumerate(("s3", "s2", "s1", None)):
        run(e, steps[k] if k < 3 else steps[3][:cut], sides, drain=False, memgap=OPT["lgap"], tol=float(OPT["tol"].split("/")[k]))
        if nm: stamp(nm)
    assert not any(x.kind == "label" for s_ in sides for x in s_)
    return steps[3][cut:], sides

def tail(l, cls, mainB, sides):
    rs, w = p2_early(l)
    pf = []
    if cls == "hi":
        pf = [I(x, tag="og%d" % j, gapmin=OPT["pgap"]) for j in (0, 1) for x in oloads(l, j)]
        pf[0].delay = ("A2", OPT["pfd"]); pf[0].after = ["G0"]
    run(e, mainB, [pf] + sides, drain=False, memgap=OPT["lgap"], tol=float(OPT["tol"].split("/")[4]))
    for x in rs + w: x.lazy = True
    for x in pf: x.soft = True
    flush(e, [pf] + sides, until="Q0")
    flush(e, [pf] + sides + [rs, w], longest=True, first=pf)

def layer(l, carry=None):
    CURL[0] = l
    mainB, sides = p1(l, carry)
    lhi, ljoin = lab("hi"), lab("join")
    e("s_cmp_lt_u32 s%d, 2" % sW)
    e("s_cbranch_scc0 " + lhi)
    snap = (list(e.vm), list(e.lg), dict(e.marks), e.t, e.t_valu, e.t_mfma, dict(e.t_mem), e.vcc_pending)
    ctx = e.out[-30:]
    work = copy.deepcopy((mainB, sides))
    ns = len(stamp_names)
    main_out = e.out
    e.out = list(ctx)
    e(lhi + ":")
    tail(l, "hi", *work)
    stamp("E"); lstamp(0)
    p2(l, "hi")
    if l < 3: e("s_branch " + ljoin)
    o = Emitter(); o.out = e.out[len(ctx):]
    ool.append(o.text(OPT["times"]))
    del stamp_names[ns:]
    e.out = main_out
    e.vm, e.lg, e.marks, e.t, e.t_valu, e.t_mfma, e.t_mem, e.vcc_pending = snap
    tail(l, "lo", mainB, sides)
    stamp("E"); lstamp(0)
    p2(l, "lo")
    if l < 3:
        e(ljoin + ":")
        e.vm = []; e.lg = []

def wchunk(i, after=None):
    s = [I("s_add_u32 s72, s%d, %d" % (sROT, i), after=after), I("s_and_b32 s72, s72, 15"), I("s_mul_i32 s72, s72, 98304"),
         I("s_add_u32 m0, s%d, %d" % (sW3K, slot(i)))]
    s += [I("buffer_load_dwordx4 v%d, %s, s72 offen offset:%d lds" % (zWV, sr(sWA, 4), j * 1024), tag="wc%d" % i, lat=1) for j in range(3)]
    s[-1].mark = "WC%d" % i
    return s
def xslab(sl):
    s = [I("s_lshl_b32 s73, s%d, 6" % sROT), I("s_add_u32 s73, s73, %d" % (256 * sl)), I("s_and_b32 s73, s73, 1023"),
         I("s_add_u32 s73, s73, s%d" % sXBASE)]
    for t in range(4):
        s += [I("s_add_u32 m0, s%d, %d" % (sW1K, L_WO[1] + sl * 16384 + t * 4096)),
              I("buffer_load_dwordx4 v%d, %s, s73 offen lds" % (zXV, sr(sX, 4)), tag="xl%d" % sl, lat=1)]
        if t < 3: s.append(I("s_add_u32 s73, s73, 32768"))
    s[-1].mark = "XL%d" % sl
    return s
def stream(text):
    L = [x.strip() for x in text.strip().split("\n")]
    L = [I(x) for x in L if x and not x.startswith(";")]
    for a, b in zip(L, L[1:]):
        if b.mn.startswith("s_cselect"): a.glue = True
    return L

def prologue():
    rot = {0: "s_mov_b32 s%d, 0" % sROT,
           1: "s_lshl_b32 s%d, s3, 2" % sROT,
           2: "s_and_b32 s94, s2, 3\n s_lshl_b32 s%d, s94, 2" % sROT,
           3: "s_and_b32 s94, s3, 1\n s_lshl_b32 s94, s94, 1\n s_add_u32 s94, s94, s2\n s_and_b32 s94, s94, 3\n s_lshl_b32 s%d, s94, 2" % sROT,
           }[OPT["rot"]]
    e(f"""
    s_load_dwordx4 s[76:79], s[0:1], 0
    s_load_dwordx2 s[82:83], s[0:1], 64
    s_load_dwordx2 s[80:81], s[0:1], 16
    s_load_dwordx4 s[84:87], s[0:1], 32
    s_load_dwordx2 s[88:89], s[0:1], 48
    s_cmp_ge_u32 s2, 256
    s_cbranch_scc1 L_end
    v_lshrrev_b32 v1, 6, v0
    v_and_b32 v0, 63, v0
    v_readfirstlane_b32 s{sW}, v1
    s_lshr_b32 s3, s2, 3
    s_getpc_b64 s[96:97]
    L_pc:
    s_mov_b32 s98, L_slow-L_pc
    s_mov_b32 s99, 0x00020000
    s_lshl_b32 s94, s3, 11
    s_cmp_eq_u32 s{sW}, 2
    s_cbranch_scc0 L_nocp
    """)
    e.begin_cond()
    e(f"""
    v_lshlrev_b32 v1, 5, v0
    buffer_load_dword v{vDUM}, v1, s[96:99], s94 offen
    """)
    e.end_cond()
    e(f"""
    L_nocp:
    s_add_u32 s{sHG}, s3, {OPT['hgo']}
    s_and_b32 s{sHG}, s{sHG}, 7
    s_lshr_b32 s3, s3, 3
    s_and_b32 s{sC}, s2, 7
    s_lshl_b32 s{sC}, s{sC}, 2
    s_add_u32 s{sC}, s{sC}, s3
    s_and_b32 s{sB}, s{sC}, 15
    {rot}
    v_and_b32 v2, 15, v0
    v_lshrrev_b32 v3, 4, v0
    v_lshlrev_b32 v{vL16}, 4, v0
    ; ---- x0 DMA voffset: i = 4w + g ; i*2048 + ((n ^ i) << 4)
    s_lshl_b32 s94, s{sW}, 2
    v_add_u32 v1, s94, v3
    v_xor_b32 v4, v1, v2
    v_lshlrev_b32 v4, 4, v4
    v_lshl_add_u32 v{zXV}, v1, 11, v4
    s_lshl_b32 s{sXBASE}, s{sB}, 7
    s_lshr_b32 s95, s{sC}, 4
    s_add_u32 s{sXBASE}, s{sXBASE}, s95
    s_lshl_b32 s{sXBASE}, s{sXBASE}, 10
    s_lshl_b32 s94, s{sW}, 3
    v_lshrrev_b32 v1, 3, v0
    v_add_u32 v{zUV}, s94, v1
    v_and_b32 v4, 1, v3
    v_lshlrev_b32 v4, 1, v4
    s_and_b32 s94, s{sW}, 1
    s_lshl_b32 s94, s94, 2
    v_or_b32 v4, s94, v4
    v_and_b32 v5, 7, v0
    v_xor_b32 v4, v4, v5
    v_lshlrev_b32 v4, 4, v4
    s_lshl_b32 s95, s{sHG}, 7
    v_mul_u32_u24 v{zWV}, 3072, v{zUV}
    v_add3_u32 v{zWV}, v{zWV}, v4, s95
    s_mul_i32 s{sW3K}, s{sW}, 3072
    s_lshl_b32 s{sW1K}, s{sW}, 10
    v_lshlrev_b32 v1, 11, v1
    v_lshl_add_u32 v1, v5, 7, v1
    s_lshl_b32 s94, s{sHG}, 14
    s_add_u32 s94, s94, s{sXBASE}
    s_mov_b32 s{sX+2}, 0x200000
    s_mov_b32 s{sX+3}, 0x00020000
    s_mov_b32 s{sWA+2}, 0x180000
    s_mov_b32 s{sWA+3}, 0x00020000
    s_mov_b32 s{sWS+2}, {0x2100000 if OPT['stamps'] else WS_SIZE}
    s_mov_b32 s{sWS+3}, 0x00020000
    s_mov_b32 s{sOUT+2}, 0x200000
    s_mov_b32 s{sOUT+3}, 0x00020000
    s_waitcnt lgkmcnt(0)
    s_mov_b64 {sr(sX,2)}, s[76:77]
    s_mov_b64 {sr(sWA,2)}, s[78:79]
    s_mov_b64 {sr(sWS,2)}, s[82:83]
    """)
    if OPT["stamps"]:
        e(f"""
        s_lshl_b32 s92, s2, 2
        s_add_u32 s92, s92, s{sW}
        s_lshl_b32 s92, s92, 8
        s_add_u32 s92, s92, {STAMP_OFF}
        """)
        stamp("rt0", real=True)
        stamp("start")
    emit_all(xslab(0) + wchunk(0))
    e(f"""
    s_cmp_eq_u32 s{sW}, 3
    s_cbranch_scc0 L_noxt
    """)
    e.begin_cond()
    e("buffer_load_dword v%d, v1, %s, s94 offen" % (vDUM, sr(sX, 4)))
    e.end_cond()
    e(f"""
    L_noxt:
    s_cmp_eq_u32 s{sW}, {1 if OPT["h3"] else 7}
    s_cbranch_scc0 L_noh3
    """)
    e.begin_cond()
    e(f"""
    ; the column group whose lines sit at 3 mod 8 streams slowly from beyond L2: every CU pulls a share of it in early
    s_lshr_b32 s94, s78, 7
    s_sub_u32 s94, 3, s94
    s_and_b32 s94, s94, 7
    s_lshl_b32 s94, s94, 7
    s_lshr_b32 s95, s2, 3
    s_mul_i32 s95, s95, 49152
    s_add_u32 s94, s94, s95
    v_lshlrev_b32 v1, 10, v0
    s_mov_b32 exec_hi, 0xffff
    buffer_load_dword v{vDUM}, v1, {sr(sWA,4)}, s94 offen
    s_mov_b32 exec_hi, -1
    """)
    e.end_cond()
    e(f"""
    L_noh3:
    s_add_u32 s82, s82, {EPOCH}
    s_addc_u32 s83, s83, 0
    s_load_dword s{sN1}, s[82:83], 0
    """)
    emit_all(wchunk(1))
    e(f"""
    s_mov_b64 {sr(sOUT,2)}, s[88:89]
    s_mov_b64 {sr(sU1,2)}, s[86:87]
    s_mov_b32 s{sU1+2}, 0x80000
    s_mov_b32 s{sU1+3}, 0x00020000
    s_mov_b64 {sr(sWOA,2)}, s[80:81]
    s_mov_b32 s{sWOA+2}, 0x80000
    s_mov_b32 s{sWOA+3}, 0x00020000
    s_mov_b64 {sr(sWBP,2)}, s[84:85]
    v_lshlrev_b32 v1, 8, v2
    v_add_u32 v1, {L_WO[1]}, v1
    s_lshl_b32 s3, s{sW}, 12
    """)
    for m in range(4):
        e(f"""
        v_or_b32 v4, {4*m}, v3
        v_xor_b32 v4, v4, v2
        v_lshl_add_u32 v{zA+m}, v4, 4, v1
        v_add_u32 v{zAO+m}, s3, v{zA+m}
        v_mov_b32 v{zONE+m}, 0x3f803f80
        """)
    e(f"""
    v_bfe_u32 v1, v0, 2, 2
    v_lshrrev_b32 v4, 1, v1
    v_and_b32 v5, 1, v3
    v_lshl_or_b32 v4, v5, 1, v4
    v_xor_b32 v4, s{sW}, v4
    v_lshlrev_b32 v4, 5, v4
    v_and_b32 v5, 3, v0
    v_lshl_add_u32 v4, v5, 3, v4
    v_lshl_add_u32 v4, v1, 7, v4
    v_mul_u32_u24 v{zTR}, 3072, v3
    v_add_u32 v{zTR}, v4, v{zTR}
    v_add_u32 v{zTR+1}, 49152, v{zTR}
    """)
    e("s_waitcnt lgkmcnt(0)")
    C = consts()
    c0 = OPT["c0"]
    while C[c0 - 1].glue: c0 += 1
    emit_all(C[:c0]); emit_all(wchunk(2)); emit_all(C[c0:]); emit_all(wchunk(3))
    stamp("issued")

def consts():
    t = f"""
    s_mul_i32 s{sR}, s{sC}, {CS}
    s_add_u32 s{sR}, s{sR}, {HB}
    s_lshl_b32 s{sWL}, s{sW}, 14
    s_add_u32 s{sOL}, s{sR}, s{sWL}
    s_lshl_b32 s3, s{sHG}, 1
    s_sub_u32 s74, s3, s{sROT}
    s_and_b32 s74, s74, 15
    s_lshl_b32 s74, s74, 10
    s_add_u32 s{sXP}, s{sOL}, s74
    s_lshl_b32 s3, s3, 10
    s_add_u32 s{sOI}, s{sOL}, s3
    s_lshl_b32 s74, s{sHG}, 3
    s_add_u32 s3, s{sW1K}, s74
    v_lshlrev_b32 v1, 6, v2
    v_add_u32 v1, s3, v1
    v_mov_b32 v4, 0x7ffffff0
    s_mov_b32 s74, 0x00f0000f
    s_mov_b32 s75, 0xf0000f00
    v_cndmask_b32 v{vSS}, v4, v1, s[74:75]
    v_mov_b32 v{vACC[0]}, -1
    v_mov_b32 v{vACC[0]+1}, -1
    v_mov_b32 v{vACC[0]+2}, -1
    v_mov_b32 v{vACC[0]+3}, -1
    """
    a = stream(t); a[-1].mark = "C1"
    a2 = stream(f"""
    s_mul_i32 s{sN1}, s{sN1}, 0x9e3779b1
    s_add_u32 s{sN1}, s{sN1}, 0x7f4a7c15
    s_mul_i32 s{sN2}, s{sN1}, 0x85ebca6b
    s_and_b32 s{sN2}, s{sN2}, 0xffffff00
    s_getreg_b32 s3, hwreg(HW_REG_XCC_ID, 0, 4)
    s_or_b32 s{sN2}, s{sN2}, s3
    v_mov_b32 v{zFL}, s{sN1}
    v_mov_b32 v{zFL+1}, s{sN2}
    s_lshl_b32 s{sFO1}, s{sC}, 3
    s_add_u32 s{sFO1}, s{sFO1}, s{sHG}
    s_lshl_b32 s{sFO1}, s{sFO1}, 4
    s_add_u32 s{sFO1}, s{sFO1}, {FL1}
    s_cmp_eq_u32 s{sW}, 3
    s_cselect_b32 s{sFO1}, s{sFO1}, 0x7f000000
    v_and_b32 v{zST+3}, 0x70, v{vL16}
    """); a2[-1].mark = "CF"
    t = f"""
    v_mov_b32 v4, 0x3f80
    v_and_b32 v1, 1, v0
    v_lshlrev_b32 v1, 4, v1
    v_lshlrev_b32 v1, v1, v4
    s_and_b32 s76, s74, 0x33333333
    s_and_b32 s77, s75, 0x33333333
    v_cndmask_b32 v{vID}, 0, v1, s[76:77]
    s_xor_b64 s[76:77], s[76:77], s[74:75]
    v_cndmask_b32 v{vID+1}, 0, v1, s[76:77]
    """
    b0 = stream(t)
    t = f"""
    ; ---- wo DMA voffset: (lane>>3)*1024 + hg*128 + ((lane&7) ^ ((g&1)<<2))*16
    v_and_b32 v1, 1, v3
    v_lshlrev_b32 v1, 2, v1
    v_and_b32 v4, 7, v0
    v_xor_b32 v1, v1, v4
    v_lshlrev_b32 v1, 4, v1
    v_lshrrev_b32 v4, 3, v0
    v_lshlrev_b32 v4, 10, v4
    s_lshl_b32 s3, s{sHG}, 7
    v_add3_u32 v{zOV}, v4, v1, s3
    v_bfe_u32 v1, v0, 2, 2
    v_lshl_add_u32 v1, v3, 3, v1
    v_lshlrev_b32 v1, 7, v1
    v_and_b32 v4, 3, v0
    v_lshl_add_u32 v1, v4, 4, v1
    v_bfe_u32 v4, v0, 3, 1
    v_lshl_add_u32 v1, v4, 6, v1
    s_lshl_b32 s3, s{sW}, 12
    v_add_u32 v{vSW}, s3, v{vL16}
    s_add_u32 s3, s3, {L_WO[0]}
    v_add_u32 v{zTA}, s3, v1
    v_xor_b32 v{zTA+1}, 64, v{zTA}
    v_add_u32 v{zTA+2}, {L_WO[0]}, v{vSW}
    s_lshr_b32 s3, s{sW}, 1
    s_lshl_b32 s3, s3, 6
    s_and_b32 s74, s{sW}, 1
    s_lshl_b32 s75, s74, 3
    v_and_b32 v4, 1, v3
    v_xor_b32 v4, 1, v4
    v_lshlrev_b32 v4, 14, v4
    v_lshl_add_u32 v4, v2, 4, v4
    v_lshrrev_b32 v5, 1, v3
    v_lshl_add_u32 v4, v5, 8, v4
    s_lshl_b32 s76, s74, 9
    v_add_u32 v{vOS}, s76, v4
    s_add_u32 s3, s3, s75
    v_xor_b32 v{zUA}, s3, v1
    s_lshl_b32 s{sUS}, s{sB}, 2
    s_add_u32 s{sUS}, s{sUS}, s{sW}
    s_lshl_b32 s{sUD}, s{sHG}, 6
    s_add_u32 s{sUD}, s{sUD}, s{sUS}
    s_lshl_b32 s{sUS}, s{sUS}, 13
    s_lshl_b32 s{sFO2}, s{sUD}, 3
    s_add_u32 s{sFO2}, s{sFO2}, {FL2}
    s_lshl_b32 s{sUD}, s{sUD}, 10
    s_lshr_b32 s3, s{sC}, 4
    s_lshr_b32 s75, s{sW}, 1
    s_cmp_eq_u32 s3, s75
    s_cselect_b32 s{sUD}, s{sUD}, 0x7f000000
    s_cselect_b32 s{sFO2}, s{sFO2}, 0x7f000000
    s_lshl_b32 s{sF2}, s74, 13
    s_add_u32 s{sF}, s{sR}, s{sF2}
    s_mov_b32 s{sBUD}, 0x20000
    s_mov_b32 s{sSCALE}, {fbits(0.25 * 1.4426950408889634)}
    s_lshl_b32 s74, s{sHG}, 2
    s_add_u32 s74, s74, s{sW}
    s_lshl_b32 s75, s74, 10
    s_add_u32 s{sKVO}, s{sR}, s75
    s_add_u32 s{sKVO}, s{sKVO}, {O_KV}
    s_cmp_eq_u32 s{sB}, 0
    s_cselect_b32 s{sHBIAS}, 0xff800000, 0
    s_cselect_b32 s3, 0, {CS}
    s_sub_u32 s{sKVI}, s{sKVO}, s3
    s_lshr_b32 s3, s74, 1
    s_lshl_b32 s3, s3, 10
    s_add_u32 s{sOP}, s{sR}, s3
    s_cmp_eq_u32 s{sW}, 3
    s_cselect_b32 s{sWL2}, 0x10000, s{sWL}
    s_lshl_b32 s{sWOT}, s{sHG}, 16
    s_add_u32 s{sWOT}, s{sWOT}, s{sWL}
    s_lshl_b32 s3, s{sW}, 15
    s_add_u32 s3, s3, s{sXBASE}
    s_lshl_b32 s74, s{sHG}, 7
    s_add_u32 s3, s3, s74
    v_lshlrev_b32 v1, 11, v2
    v_lshlrev_b32 v4, 4, v3
    v_add3_u32 v{vXO}, v1, v4, s3
    v_and_b32 v1, 31, v0
    v_lshrrev_b32 v4, 5, v0
    v_lshlrev_b32 v1, 6, v1
    v_lshl_add_u32 v{vSL}, v4, 5, v1
    """
    c = stream(t); c[-1].mark = "C3"
    t = f"""
    v_lshlrev_b32 v1, 2, v3
    v_sub_u32 v1, v2, v1
    v_mov_b32 v5, 0xff800000
    v_mov_b32 v{vONES}, 0x3f803f80
    v_mov_b32 v{vONES+1}, 0x3f803f80
    """
    for r in range(4):
        t += f"""
        v_cmp_le_i32 {sr(sM+2*r,2)}, {r}, v1
        v_subrev_u32 v4, {r}, v1
        v_cmp_gt_u32 s[74:75], 8, v4
        v_cmp_gt_i32 s[76:77], -8, v4
        s_or_b64 s[74:75], s[76:77], s[74:75]
        v_cndmask_b32_e64 v{vBIAS+r}, v5, 0, s[74:75]
        """
    t += f"""
    v_mov_b32 v4, 0xffff
    v_mov_b32 v5, 0xffff0000
    v_cndmask_b32 v{vPM}, 0, v4, {sr(sM,2)}
    v_cndmask_b32 v1, 0, v5, {sr(sM+2,2)}
    v_or_b32 v{vPM}, v{vPM}, v1
    v_cndmask_b32 v{vPM+1}, 0, v4, {sr(sM+4,2)}
    v_cndmask_b32 v1, 0, v5, {sr(sM+6,2)}
    v_or_b32 v{vPM+1}, v{vPM+1}, v1
    ; layer-0 halo messages: tags and zero fill
    v_mov_b32 v74, s{sN1}
    v_mov_b32 v75, s{sN1}
    v_mov_b32 v76, s{sN1}
    v_mov_b32 v77, s{sN1}
    v_mov_b32 v80, 0
    v_mov_b32 v81, 0
    v_mov_b32 v82, s{sN1}
    v_mov_b32 v84, s{sN1}
    v_mov_b32 v86, 0
    v_mov_b32 v87, 0
    ; statistics exchange addresses
    v_lshlrev_b32 v{zST}, 3, v2
    s_lshl_b32 s3, s{sW}, 7
    v_add_u32 v{zST+1}, s3, v{zST}
    v_and_b32 v4, 0x18, v{zST}
    v_lshl_add_u32 v{zST+2}, v3, 5, v4
    v_mov_b32 v{vBV}, v{zWV}
    v_add_u32 v{vBT}, {L_WO[1]}, v{zTR}
    v_mov_b32 v2, v{zTR}
    """
    d = stream(t); d[-1].mark = "C4"
    return a + b0 + a2 + c + d
zST = 68

def reads0(i):
    s = []
    a = zTR + (1 if slot(i) >= 49152 else 0); base = slot(i) - (49152 if slot(i) >= 49152 else 0)
    xb = zXB[i & 1]
    for j in range(3):
        for e2 in range(2):
            s.append(I("ds_read_b64_tr_b16 %s, v%d offset:%d" % (wreg(0, 3 * i + j, e2), a, base + j * 1024 + e2 * 512), tag="r%d" % i))
    for t in range(4):
        s.append(I("ds_read_b128 %s, v%d offset:%d" % (vr(xb + 4 * t, 4), zA + (i & 3), t * 4096 + (i >> 2) * 16384), tag="r%d" % i))
    s.append(I("ds_read_b128 %s, v%d offset:%d" % (vr(xb + 16, 4), zAO + (i & 3), (i >> 2) * 16384), tag="r%d" % i))
    if i >= 2: s[6].after = ["M%d" % (i - 2)]
    return s
def mfmas0(i):
    xb = zXB[i & 1]; out = []
    def acc(a): return vr(a, 4) if i else "0"
    out += cs_mfma(0, i, zCS, zONE)
    for t in range(4):
        for j in range(3):
            w = wreg(0, 3 * i + j); x = vr(xb + 4 * t, 4); a = Z.acc(t) + 4 * j
            A, B = (w, x) if j < 2 else (x, w)
            out.append(I("%s %s, %s, %s, %s" % (MF32, vr(a, 4), A, B, acc(a))))
    x = vr(xb + 16, 4)
    out.append(I("%s %s, %s, %s, %s" % (MF32, vr(zG, 4), x, x, acc(zG))))
    out.append(I("%s %s, %s, %s, %s" % (MF32, vr(zR, 4), vr(zONE, 4), x, acc(zR))))
    out[0].need = ["R%d" % i]; out[-1].mark = "M%d" % i
    return [(m, []) for m in out]

def f1load(): return ["s_lshl_b32 s72, s%d, 7" % sC, "s_add_u32 s72, s72, %d" % FL1,
                      "buffer_load_dwordx2 %s, v%d, %s, s72 offen sc1" % (vr(zF1, 2), zST + 3, WS)]
def f2load(): return ["s_lshl_b32 s75, s%d, 10" % sHG, "s_add_u32 s75, s75, %d" % FL2,
                      "buffer_load_dwordx4 %s, v%d, %s, s75 offen sc1" % (vr(zF2, 4), vL16, WS)]
def lane0_store(sreg, **kw):
    return [I("s_mov_b64 exec, 1", glue=True, **kw),
            I("buffer_store_dwordx2 %s, v%d, %s, s%d offen sc1" % (vr(zFL, 2), vL16, WS, sreg), tag="fst", glue=True),
            I("s_mov_b64 exec, -1")]
def gemm0():
    q = vACC[0]; U = vSTG
    e.emit(W(("vm", "wc0")))
    e("s_barrier")
    stamp("x0")
    emit_all(reads0(0))
    emit_all(wchunk(4) + xslab(1))
    def groups(L):
        out = [[]]
        for x in L:
            out[-1].append(x)
            if x.kind in ("vmem", "ds") and not getattr(x, "glue", False): out.append([])
        tail = out.pop()
        if tail: out[-1] += tail
        return out
    ex = {i: [] for i in range(1, 18)}
    LA = OPT["la"]
    for c in range(5, 16):
        i = max(1, c - LA)
        ex[i] += wchunk(c)
        if c % 4 == 0: ex[i] += xslab(c // 4)
    ex[OPT["initat"]] = fill2k(sOI, O_OB[0], q, "") + fill2k(sXP, O_XB[1], q, "") + fillsb(O_SB[1], q, "") + ex[OPT["initat"]]
    ex[OPT["initat"] + LA] += lane0_store(sFO1)
    UA = OPT["uat"]
    ex[UA] = [I("s_mov_b32 m0, s%d" % sW1K), I("buffer_load_dwordx4 v%d, %s, s%d offen lds" % (zOV, sr(sU1, 4), sUS), tag="tdma")] + ex[UA]
    ex[UA + LA] += [I("ds_read_b64_tr_b16 %s, v%d offset:%d" % (vr(zF2 + 2 * e2, 2), zUA, e2 * 512), tag="ur") for e2 in range(2)]
    ex[OPT["tcat"]] += [I("buffer_load_dwordx4 %s, v%d, %s, 0 offen offset:%d" % (vr(vXOLD[k], 4), vXO, sr(sX, 4), 64 * k), tag="xin") for k in range(2)] \
        + touch2k(sOI, O_OB[0]) + touch2k(sXP, O_XB[1]) + touchsb(O_SB[1])
    for k, qq in enumerate((3, 2, 1, 0)):
        L = [I("s_lshl_b32 s72, s%d, 15" % sW), I("s_add_u32 s72, s72, %d" % (qq * 131072)), I("s_lshl_b32 s73, s%d, 12" % sW)]
        for j in range(4):
            L += [I("s_add_u32 m0, s73, %d" % (L_WO[0] + qq * 16384 + j * 1024)),
                  I("buffer_load_dwordx4 v%d, %s, s72 offen lds" % (zOV, sr(sWOA, 4)), tag="woa%d" % qq, lat=1)]
            if j < 3: L.append(I("s_add_u32 s72, s72, 8192"))
        ex[12 + k] += L
    ex[OPT["flat"]] += [I(x, tag="f1") for x in f1load()]
    ex[16] += [W(("lg", "ur")), I("buffer_store_dwordx4 %s, v%d, %s, s%d offen sc1" % (vr(zF2, 4), vL16, WS, sUD), tag="tst")] + fillkv(0x8000, q) \
        + [I("s_mov_b64 %s, %s" % (sr(sWA, 2), sr(sWBP, 2)))] + bchunk(0) + bchunk(1)
    for i in range(1, 17):
        e.emit(W(("lg", "r%d" % (i - 1))))
        G = []
        if i < 16:
            spec = ("vm", "xl%d" % (i // 4)) if i % 4 == 0 else ("vm", "wc%d" % i)
            G = groups([W(spec), I("s_barrier")] + reads0(i))
        X = groups(ex[i]) if ex[i] else []
        M = [m for m, _ in mfmas0(i - 1)]
        slots = len(M) - 1
        allg = G + X
        per = [[] for _ in M]
        k = 1; over = max(0, len(allg) - slots)
        gi = 0
        while gi < len(allg):
            per[min(k, len(M) - 1)] += allg[gi]; gi += 1
            if over and gi < len(allg): per[min(k, len(M) - 1)] += allg[gi]; gi += 1; over -= 1
            k += 1
        for m, p in zip(M, per):
            e.emit(m); emit_all(p)
        if OPT["g0st"] and i % 2 == 0 and i < 16: stamp("k%d" % i)
    stamp("gemm0")
    emit_all(sel4_masks() + sel4(zG, zG))
    fin = [I(x) for x in finalize(zR, zG, zG + 1, zR + 2, zR + 3)]
    chk = ["v_xor_b32 v%d, v%d, v%d" % (T[4], zF1, zFL), "v_xor_b32 v%d, v%d, v%d" % (T[3], zF1 + 1, zFL + 1),
           "v_lshrrev_b32 v%d, 8, v%d" % (T[5], T[3]), "v_or_b32 v%d, v%d, v%d" % (T[4], T[4], T[5]), "v_cmp_ne_u32 vcc, 0, v%d" % T[4]]
    flush(e, [fin, cs_compact(0, zCS)])
    e(f"""
    s_mov_b32 exec_lo, 0x00f0000f
    s_mov_b32 exec_hi, 0xf0000f00
    ds_write_b64 v{zST+1}, {vr(zR+2,2)} offset:{L_ST0}
    s_mov_b64 exec, -1
    """)
    emit_all(checked(f1load(), W(("vm", "f1")), None, None, chk=chk))
    e(f"""
    v_and_b32 v{T[3]}, 15, v{T[3]}
    v_cmp_ne_u32 vcc, 0, v{T[3]}
    s_waitcnt lgkmcnt(0)
    """)
    e("s_barrier", mark="G0E")
    for t in (3, 2, 1, 0):
        e("ds_read_b64 %s, v%d offset:%d" % (vr(Z.rs(t), 2), zST, L_ST0 + t * 128), tag="st%d" % t)
        e("ds_read_b64 %s, v%d offset:%d" % (vr(Z.rs2(t), 2), zST + 2, L_ST0 + t * 128), tag="st%d" % t)
    if OPT["force"] == "slow": e("s_branch L_slow")
    elif OPT["force"] != "fast": e("s_cbranch_vccnz L_slow")
    e.vcc_pending = False

def layer0_rest():
    stamp("flags")
    if OPT["stamps"]: e("s_mov_b32 s52, 0")
    q = vACC[0]
    M = Z
    def at(t): return attn(M, 0, t, M.acc(t), 254 - 2 * t, ["V%d" % t] + (["K%d" % (t - 1)] if t else []), [], ["V%d" % (t - 1)] if t else [])
    def ep(t): return [W(("lg", "st%d" % t))] + epi(M, 0, t)
    KM, VM = "0xff00ff00", None
    def masked(op, kq, vq, sbase):
        return ["s_add_u32 s73, s%d, 0x20000" % sbase, "s_mov_b32 exec_lo, 0xff00ff00", "s_mov_b32 exec_hi, 0xff00ff00",
                "buffer_%s_dwordx4 %s, v%d, %s, s%d offen sc1" % (op, vr(kq, 4), vL16, WS, sbase),
                "s_mov_b32 exec_lo, 0", "s_mov_b32 exec_hi, -1",
                "buffer_%s_dwordx4 %s, v%d, %s, s73 offen sc1" % (op, vr(vq, 4), vL16, WS),
                "s_mov_b32 exec_lo, -1"]
    def glued(L, tag, **kw):
        out = [I(x, tag=tag, glue=True, lat=kw.get("lat")) for x in L]; out[-1].glue = False
        return out
    kv = [I("v_mov_b32 v78, v%d" % M.v(3)), I("v_mov_b32 v79, v%d" % (M.v(3) + 1))] + [W(("vm", "kvinit"))] + glued(masked("store", 72, 76, sKVO), "kvst", lat=1)
    kv[-1].mark = "KVP"
    hl = masked("load", 80, 84, sKVI)
    hchk = ["v_xor_b32 v%d, v82, v74" % T[4], "v_xor_b32 v%d, v84, v74" % T[3], "v_or_b32 v%d, v%d, v%d" % (T[4], T[4], T[3]), "v_cmp_ne_u32 vcc, 0, v%d" % T[4]]
    hs = glued(hl, "halo", lat=600); hs[0].delay = ("KVP", OPT["h0d"])
    hs += checked(hl, W(("vm", "halo")), None, None, chk=hchk, mark="H")
    bg = []
    for i in range(2, 7): bg += bchunk(i, OPT["pace"])
    tp = []
    for k, qq in enumerate((3, 2, 1, 0)):
        R = 24 + 16 * (k & 1)
        tp.append(W(("vm", "woa%d" % qq)))
        for u in range(4):
            for e2 in range(2):
                tp.append(I("ds_read_b64_tr_b16 %s, v%d offset:%d" % (vr(R + 4 * u + 2 * e2, 2), zTA + (u >> 1), qq * 16384 + e2 * 512 + (u & 1) * 8), tag="tr%d" % qq, gapmin=OPT["trg"]))
        tp.append(W(("lg", "tr%d" % qq)))
        for u in range(4):
            tp.append(I("ds_write_b128 v%d, %s offset:%d" % (zTA + 2, vr(R + 4 * u, 4), qq * 16384 + u * 1024), tag="trw", gapmin=OPT["twg"]))
    tp[0].after = ["KVP"]
    f2 = lane0_store(sFO2, after=["KVP"])
    sides = [bg, tp, ep(3) + kv + fill2k(sOI, O_OB[1], q, ST) + ep(2), f2, at(3), ep(1), at(2), ep(0), at(1), hs, at(0)]
    flush(e, sides, until="A0")
    flush(e, sides[2:])
    stamp("E")
    for x in bg + tp: x.gapmin = 1
    flush(e, [bg, tp])
    e.emit(W(("lg", "trw")))
    for j in range(3): emit_oloads(0, j)
    e.emit(W(("vm", "bc6")))
    e("s_barrier")
    stamp("wotr")
    for i in range(7): emit_all(breads(i, low=2))
    ex = []
    for i in range(7, 12): ex += bchunk(i, 30)
    return p2(0, None, extra=ex)

def bench():
    e("s_waitcnt vmcnt(0) lgkmcnt(0)")
    for r in list(range(24, 128)): e("v_mov_b32 v%d, 0" % r)
    e("s_mov_b32 s3, 0")
    e("L_bl:")
    e("s_cmp_eq_u32 s3, 1")
    e("s_cbranch_scc0 L_bn")
    e("s_memtime s[90:91]")
    e("s_waitcnt lgkmcnt(0)")
    e("L_bn:")
    t0 = e.t; n0 = len(e.out)
    tail(2, 'hi', *p1(2))
    print("model cycles", e.t - t0, file=sys.stderr)
    bd = OPT["bdrop"].split(",")
    new = []
    for i in e.out[n0:]:
        rep = None
        if "bar" in bd and i.kind == "barrier": rep = "s_nop 0"
        if "dsw" in bd and i.mn.startswith("ds_write"): rep = "ds_read_b32 v96, v6"
        if "vmw" in bd and i.kind == "wait" and "vmcnt" in i.text: rep = "s_nop 0"
        if "valu" in bd and i.is_valu and "vcc" not in i.writes: rep = ""
        if "valu4" in bd and i.is_valu and "vcc" not in i.writes: rep = "v_mov_b32 v96, v97"
        if "ld" in bd and i.kind == "vmem" and "load" in i.mn: rep = "s_nop 0"
        if "st" in bd and i.kind == "vmem" and "store" in i.mn: rep = "s_nop 0"
        if "br" in bd and i.mn == "s_cbranch_vccnz": rep = "s_nop 0"
        if "lgw" in bd and i.kind == "wait" and "lgkmcnt" in i.text: rep = "s_nop 0"
        if rep is None: new.append(i)
        elif rep: new.append(Ins(rep))
    e.out[n0:] = new
    e("s_nop 7")
    e("s_add_u32 s3, s3, 1")
    e("s_cmp_lt_u32 s3, 21")
    e("s_cbranch_scc1 L_bl")
    e("s_waitcnt lgkmcnt(0)")
    e("s_memtime s[72:73]")
    e("s_waitcnt lgkmcnt(0) vmcnt(0)")
    e("s_sub_u32 s72, s72, s90")
    e("v_mov_b32 v0, s72")
    e("s_lshl_b32 s73, s2, 2")
    e("s_add_u32 s73, s73, s%d" % sW)
    e("s_lshl_b32 s73, s73, 2")
    e("s_mov_b64 exec, 1")
    e("buffer_store_dword v0, v%d, %s, s73 offen" % (vL16, sr(sOUT, 4)))

def rest():
    if OPT["bench"]:
        if ST != "sc1": bench()
        else: e("s_endpgm")
        return
    carry = layer0_rest()
    layer(1, carry); layer(2); layer(3)

prologue()
gemm0()
snap = (list(e.vm), list(e.lg), dict(e.marks), e.t, e.t_valu, e.t_mfma, dict(e.t_mem))
ST = STF
rest()
fast_ool = list(ool); ool.clear()
e("L_end:")
e("s_endpgm")
fast_text = e.text(OPT["times"]); nfast = len(e.out); tfast = e.t
e.out = []
e.vm, e.lg, e.marks, e.t, e.t_valu, e.t_mfma, e.t_mem = snap
ST = "sc1"; LD = "sc1"
e("L_slow:")
q = vACC[0]
emit_all(fill2k(sOI, O_OB[0], q, ST) + fill2k(sXP, O_XB[1], q, ST) + fillsb(O_SB[1], q, ST))
e(f"""
v_or_b32 v{zFL+1}, 0x40, v{zFL+1}
s_waitcnt vmcnt(0)
s_barrier
""")
emit_all(lane0_store(sFO1))
e("L_slowpoll:")
for x in f1load(): e(x)
e(f"""
s_sub_u32 s{sBUD}, s{sBUD}, 1
s_cbranch_scc1 L_end
s_waitcnt vmcnt(0)
v_and_b32 v{T[4]}, 0x40, v{zF1+1}
v_cmp_eq_u32 vcc, 0, v{T[4]}
s_cbranch_vccnz L_slowpoll
""")
rest()

hdr = open("cdna_kernels/%s.s.ref" % NAME).read().split("; Override")[0]
out = hdr + "; Persistent fused kernel: 32 clusters of 8 workgroups x 64 same-parity rows; generated by a script.\n"
out += "; @launch grid=(256,1,1) block=(256,1,1) lds=%d\n" % LDS_BYTES
out += '.amdgcn_target "amdgcn-amd-amdhsa--gfx950"\n.text\n.globl %s\n.p2align 8\n.type %s,@function\n%s:\n' % (KN, KN, KN)
out += fast_text + "".join(fast_ool) + e.text() + "".join(ool)
out += """.section .rodata,"a"
.p2align 6
.amdhsa_kernel %s
  .amdhsa_next_free_vgpr 512
  .amdhsa_next_free_sgpr 102
  .amdhsa_accum_offset 256
  .amdhsa_group_segment_fixed_size 0
  .amdhsa_kernarg_size 72
  .amdhsa_user_sgpr_count 2
  .amdhsa_user_sgpr_kernarg_segment_ptr 1
  .amdhsa_system_sgpr_workgroup_id_x 1
  .amdhsa_float_denorm_mode_32 3
.end_amdhsa_kernel
""" % KN
open(sys.argv[1], "w").write(out)
print("fast instrs", nfast, "model cycles", int(tfast), "nop states", e.nops, "stamps", len(stamp_names), " ".join(stamp_names), file=sys.stderr)
```

```python
import sys, struct, copy
from asmlib3 import *

NAME = "interleave_layers__sliding_local_dilated__sliding_local_dilated__prompt"
KN = NAME + "_kernel"
OPT = dict(stamps=False, force="", rot=2, bench="", hgo=0, only="", g0st=0, bdrop="", drop="", times=False, w64=0, pace=90, g0gap=40, g0tol=4, initat=3, uat=6, tcat=9, flat=13, la=4, h3=1, c0=60, blat=700, trg=24, twg=60, h0d=500, wbx=11, x1d=560, wgap=64, wgap2=40, lgap=64, lgap2=30, bks=12, bks3=12, cut=30, lox=50, vdef=8, hd=550, pgap=30, pfd=420, p2tol=1, tol="1/1/1/1/1", s0d=120)
for a in sys.argv[2:]:
    k, v = a.split("=", 1)
    OPT[k] = {"True": True, "False": False}.get(v, int(v) if v.lstrip("-").isdigit() else v)
LD = OPT.get("ld", "sc1").replace("+", " ")
STF = OPT.get("stf", "").replace("+", " ")
ST = ""

WOT_OFF = 0; FL1 = 0x80000; FL2 = 0x82000; EPOCH = 0x84000; HB = 0x88000
O_XB = [0, 0x10000]; O_OB = [0x20000, 0x30000]; O_KV = 0x40000; O_SB = [0x68000, 0x69000]; CS = 0x6a000
WS_SIZE = HB + 32 * CS
STAMP_OFF = 0x2000000
L_X = 0; L_WO = [32768, 98304]; LDS_BYTES = 163840; L_ST0 = 24576
def slot(i): return (7 - ((i + 5) % 7)) * 12288
T = [0, 1, 2, 3, 4, 5]
vL16, vSW, vOS, vSL, vSS, vXO, vID = 6, 7, 8, 9, 10, 11, 14
vL16b = 5; vDUM = 96
vCS = [(12, 13, 120), (121, 122, 123)]
vBIAS = 16; vPM = 20; vONES = 22
vSTG = 24; vRING = 40; vACC = [56, 68]
vH = 98
vXOLD = [100, 124]
vOBUF = [24, 40, 56, 24]; vWR = 72; vPACC = 104
class RM: pass
N = RM()
N.acc = lambda t: vACC[t & 1]
N.q = lambda t: 80 + 2 * (t & 1); N.k = lambda t: 88 if t < 0 else 84 + 2 * (t & 1)
N.v = lambda t: 92 + 2 * (t & 1); N.c = lambda t: 96 + (t & 1)
N.kh = 88
N.rs = lambda t: 104 + 4 * (t & 1); N.nm = lambda t: 105 + 4 * (t & 1); N.rs2 = lambda t: 106 + 4 * (t & 1); N.nm2 = lambda t: 107 + 4 * (t & 1)
N.va = lambda t: (92, True) if t == 2 else ((90, False) if t == 0 else (92, False))
Z = RM()
Z.acc = lambda t: 128 + 12 * t
Z.q = lambda t: 216 + 2 * t; Z.k = lambda t: 80 if t < 0 else (72 if t == 3 else 224 + 2 * t)
Z.v = lambda t: 88 + 2 * t; Z.c = lambda t: 244 + t
Z.rs = lambda t: 176 + 4 * t; Z.nm = lambda t: 177 + 4 * t; Z.rs2 = lambda t: 178 + 4 * t; Z.nm2 = lambda t: 179 + 4 * t
Z.va = lambda t: (86 + 2 * t, False)
zXB = [176, 196]; zCS = 216; zG = 228; zR = 232; zONE = 236; zA = 240; zAO = 244; zTR = 248; zXV = 250; zUV = 251; zUA = 252; zOV = 253; zWV = 254
zTA = 97
vBV, vBT = 0, 1
zFL = 60; zF1 = 62; zF2 = 64
sWS, sOUT, sX, sWA, sM = 8, 12, 16, 20, 28
sW, sHG, sC, sB, sROT, sBUD, sHBIAS, sSCALE = 36, 37, 38, 39, 40, 41, 42, 43
sU1, sWOA, sWBP = 44, 24, 50
sXBASE, sUS, sUD, sW3K, sW1K, sN1, sN2, sFO1, sFO2 = 52, 53, 56, 59, 4, 5, 6, 7, 93
sR, sKVI, sKVO, sXP, sOI, sOP, sOL, sF, sF2, sWB, sWOT, sWL = range(60, 72)
sWL2 = 69
sTMP = list(range(78, 90)) + list(range(94, 102))
_st = [0]
def stmp():
    _st[0] = (_st[0] + 1) % len(sTMP)
    return sTMP[_st[0]]

def vr(b, n): return "v[%d:%d]" % (b, b + n - 1)
def sr(b, n): return "s[%d:%d]" % (b, b + n - 1)
WS = sr(sWS, 4)
def wreg(typ, f, half=None):
    if typ == 0: p, b = "a", 4 * f
    elif f < 16: p, b = "a", 192 + 4 * f
    else: p, b = "v", 128 + 4 * (f - 16)
    if half is None: return "%s[%d:%d]" % (p, b, b + 3)
    return "%s[%d:%d]" % (p, b + 2 * half, b + 2 * half + 1)
def fbits(x): return "0x%08x" % struct.unpack("<I", struct.pack("<f", x))[0]
MF32 = "v_mfma_f32_16x16x32_bf16"; MF16 = "v_mfma_f32_16x16x16_bf16"

e = Emitter()
_drop = [d for d in OPT["drop"].split(",") if d]
e.drop = lambda ins: ins.kind == "vmem" and ins.tag in _drop
ool = []
_lab = [0]
def lab(p):
    _lab[0] += 1
    return "L_%s_%d" % (p, _lab[0])
def emit_all(L):
    for i in L: e.emit(i)

stamp_names = []
def stamp(name="", real=False):
    if not OPT["stamps"]: return
    if OPT["only"] and name not in OPT["only"].split(","): return
    if ST != "sc1": stamp_names.append(name)
    if name == "cnt": e("s_mov_b32 s90, s52"); e("s_mov_b32 s52, 0")
    else: e("s_memrealtime s[90:91]" if real else "s_memtime s[90:91]")
    e("s_waitcnt lgkmcnt(0)")
    e("v_writelane_b32 v%d, s90, 0" % vSL)
    e("s_mov_b64 exec, 1")
    if OPT.get("dbgst"):
        e("v_mov_b32 v%d, s92" % vL16)
        e("global_store_dword v%d, v%d, s[0:1]" % (vL16, vSL), tag="stamp")
        e("v_mov_b32 v%d, 0" % vL16)
    else:
        e("buffer_store_dword v%d, v%d, %s, s92 offen" % (vSL, vL16, WS), tag="stamp")
    e("s_mov_b64 exec, -1")
    e("s_add_u32 s92, s92, 4")
    e("s_nop 1")
    e("v_writelane_b32 v%d, 0, 0" % vSL)
    e.vm.pop()

LREG = [24, 26, 52, 54, 56, 16, 18, 20, 22]
CURL = [0]
def lstamp(i):
    if OPT["stamps"] and OPT.get("light") and CURL[0] == 2: e("s_memtime s[%d:%d]" % (LREG[i], LREG[i] + 1))
def ldump(n):
    if not (OPT["stamps"] and OPT.get("light") and CURL[0] == 3): return
    e("s_waitcnt lgkmcnt(0)")
    for i in range(n):
        if ST != "sc1": stamp_names.append("l%d" % i)
        e("v_writelane_b32 v%d, s%d, 0" % (vSL, LREG[i]))
        e("s_mov_b64 exec, 1")
        e("buffer_store_dword v%d, v%d, %s, s92 offen" % (vSL, vL16, WS), tag="stamp")
        e("s_mov_b64 exec, -1")
        e("s_add_u32 s92, s92, 4")
        e("s_nop 1")
        e.vm.pop()
    e("v_writelane_b32 v%d, 0, 0" % vSL)

def maxchain(dst, regs):
    out = []; regs = list(regs)
    out.append("v_max3_u32 v%d, v%d, v%d, v%d" % (dst, regs[0], regs[1], regs[2])); regs = regs[3:]
    while len(regs) >= 2:
        out.append("v_max3_u32 v%d, v%d, v%d, v%d" % (dst, dst, regs[0], regs[1])); regs = regs[2:]
    if regs: out.append("v_max_u32 v%d, v%d, v%d" % (dst, dst, regs[0]))
    return out

def checked(loads, waitins, chk_regs, tmp, retry_wait=0, chk=None, **kw):
    lr, lb = lab("retry"), lab("back")
    if chk is None:
        if len(chk_regs) == 1: chk = []; src = chk_regs[0]
        else: chk = maxchain(tmp, chk_regs); src = tmp
        chk = chk + ["v_cmp_eq_u32 vcc, -1, v%d" % src]
    s = [waitins] + [I(c) for c in chk] + [I("s_cbranch_vccnz " + lr), I(lb + ":", **kw)]
    o = Emitter()
    o(lr + ":")
    for l in loads: o(l)
    if OPT["stamps"] and not OPT.get("light"):
        tg = waitins.waitspec[0][1]
        k = {"og0": 0, "og1": 1, "og2": 1, "og3": 1, "xs3_0": 2, "xs3_1": 6, "xs3_2": 6, "xs3_3": 6, "xs2": 3, "xs1": 3, "xs0": 3, "sl": 4, "halo": 5}.get(tg, 6)
        o("s_add_u32 s52, s52, %d" % (1 << (4 * k)) if k < 7 else "")
    o("s_sub_u32 s%d, s%d, 1" % (sBUD, sBUD))
    o("s_cbranch_scc1 L_end")
    o("s_waitcnt vmcnt(%d)" % retry_wait)
    for c in chk: o(c)
    o("s_cbranch_vccnz " + lr)
    o("s_branch " + lb)
    ool.append(o.text())
    return s

BC = "row_newbcast:%d row_mask:0xf bank_mask:0xf"
def epi_kq(M, typ, t, after=None):
    a = M.acc(t); q, k = a, a + 4; cq, ck, cv = vCS[typ]
    s = []
    for r in range(4): s.append(I("v_fmac_f32_dpp v%d, v%d, v%d %s" % (k + r, ck, M.nm(t), BC % r), after=after if r == 0 else None))
    for r in range(4): s.append(I("v_mul_f32 v%d, v%d, v%d" % (k + r, M.rs(t), k + r)))
    s.append(I("v_cvt_pk_bf16_f32 v%d, v%d, v%d" % (M.k(t), k, k + 1)))
    s.append(I("v_cvt_pk_bf16_f32 v%d, v%d, v%d" % (M.k(t) + 1, k + 2, k + 3), mark="K%d" % t))
    for r in range(4): s.append(I("v_fmac_f32_dpp v%d, v%d, v%d %s" % (q + r, cq, M.nm(t), BC % r)))
    s.append(I("v_cvt_pk_bf16_f32 v%d, v%d, v%d" % (M.q(t), q, q + 1)))
    s.append(I("v_cvt_pk_bf16_f32 v%d, v%d, v%d" % (M.q(t) + 1, q + 2, q + 3)))
    s.append(I("v_mul_f32 v%d, s%d, v%d" % (M.c(t), sSCALE, M.rs(t)), mark="Q%d" % t))
    return s
def epi_v(M, typ, t, after=None):
    v = M.acc(t) + 8; cv = vCS[typ][2]
    s = []
    for r in range(4): s.append(I("v_fmac_f32_dpp v%d, v%d, v%d %s" % (v + r, M.nm2(t), cv, BC % r), after=after if r == 0 else None))
    for r in range(4): s.append(I("v_mul_f32_dpp v%d, v%d, v%d %s" % (v + r, M.rs2(t), v + r, BC % r)))
    s.append(I("v_cvt_pk_bf16_f32 v%d, v%d, v%d" % (M.v(t), v, v + 1)))
    s.append(I("v_cvt_pk_bf16_f32 v%d, v%d, v%d" % (M.v(t) + 1, v + 2, v + 3), mark="V%d" % t))
    return s
def epi(M, typ, t, after=None): return epi_kq(M, typ, t, after) + epi_v(M, typ, t)

def sel4(dst, a):
    return [I("v_cndmask_b32 v%d, v%d, v%d, s[44:45]" % (dst, a, a + 1)), I("v_cndmask_b32 v%d, v%d, v%d, s[46:47]" % (dst, dst, a + 2)),
            I("v_cndmask_b32 v%d, v%d, v%d, s[48:49]" % (dst, dst, a + 3))]
def sel4_masks():
    return [I("s_mov_b32 s44, 0x22222222"), I("s_mov_b32 s45, s44"), I("s_lshl_b64 s[46:47], s[44:45], 1"), I("s_lshl_b64 s[48:49], s[44:45], 2")]
def cs_compact(typ, a):
    return sel4(vCS[typ][0], a) + sel4(vCS[typ][1], a + 4) + [I("v_mov_b32 v%d, v%d" % (vCS[typ][2], a + 8), mark="CS")]
def cs_mfma(typ, ks, a, ones):
    out = []
    for j in range(3):
        w = wreg(typ, 3 * ks + j); A, B = (w, vr(ones, 4)) if j < 2 else (vr(ones, 4), w)
        out.append(I("%s %s, %s, %s, %s" % (MF32, vr(a + 4 * j, 4), A, B, vr(a + 4 * j, 4) if ks else "0")))
    return out

def attn(M, l, t, a, ta, depS_p, depS_c, depV):
    sc, sp, lsum = a, a + 4, a + 8
    c = M.c(t); kprev = M.k(t - 1)
    s = []
    if t == 0:
        for r in range(4):
            s.append(I("v_add_f32 v%d, s%d, v%d" % (sp + r, sHBIAS, vBIAS + r), after=depS_p if r == 0 else None))
        s.append(I("%s %s, %s, %s, %s" % (MF16, vr(sc, 4), vr(M.k(t), 2), vr(M.q(t), 2), vr(vBIAS, 4)), after=depS_c))
        s.append(I("%s %s, %s, %s, %s" % (MF16, vr(sp, 4), vr(kprev, 2), vr(M.q(t), 2), vr(sp, 4)), after=["H"]))
    else:
        s.append(I("%s %s, %s, %s, %s" % (MF16, vr(sp, 4), vr(kprev, 2), vr(M.q(t), 2), vr(vBIAS, 4)), after=depS_p))
        s.append(I("%s %s, %s, %s, %s" % (MF16, vr(sc, 4), vr(M.k(t), 2), vr(M.q(t), 2), vr(vBIAS, 4)), after=depS_c))
    for r in range(4):
        s.append(I("v_cndmask_b32 v%d, v%d, v%d, %s" % (sc + r, sp + r, sc + r, sr(sM + 2 * r, 2))))
    s.append(I("v_max3_f32 v%d, v%d, v%d, v%d" % (sp, sc, sc + 1, sc + 2)))
    s.append(I("v_max_f32 v%d, v%d, v%d" % (sp + 1, sp, sc + 3)))
    s.append(I("v_max_f32 v%d, v%d, v%d" % (sp, sp, sc + 3)))
    s.append(I("v_permlane32_swap_b32 v%d, v%d" % (sp, sp + 1)))
    s.append(I("v_max_f32 v%d, v%d, v%d" % (sp + 2, sp, sp + 1)))
    s.append(I("v_max_f32 v%d, v%d, v%d" % (sp, sp, sp + 1)))
    s.append(I("v_permlane16_swap_b32 v%d, v%d" % (sp, sp + 2)))
    s.append(I("v_max_f32 v%d, v%d, v%d" % (sp, sp, sp + 2)))
    s.append(I("v_mul_f32 v%d, -v%d, v%d" % (sp, sp, c)))
    for r in range(4): s.append(I("v_fma_f32 v%d, v%d, v%d, v%d" % (sc + r, sc + r, c, sp)))
    s[-1].mark = "F%d" % t
    for r in range(4): s.append(I("v_exp_f32 v%d, v%d" % (sc + r, sc + r)))
    s.append(I("v_cvt_pk_bf16_f32 v%d, v%d, v%d" % (ta, sc, sc + 1)))
    s.append(I("v_cvt_pk_bf16_f32 v%d, v%d, v%d" % (ta + 1, sc + 2, sc + 3)))
    va, curfirst = M.va(t)
    pc, pp = (sp, sp + 2) if curfirst else (sp + 2, sp)
    s.append(I("v_and_b32 v%d, v%d, v%d" % (pc, ta, vPM)))
    s.append(I("v_and_b32 v%d, v%d, v%d" % (pc + 1, ta + 1, vPM + 1)))
    s.append(I("%s %s, %s, %s, 0" % (MF16, vr(sc, 4), vr(vONES, 2), vr(ta, 2))))
    s.append(I("v_xor_b32 v%d, v%d, v%d" % (pp, ta, pc)))
    s.append(I("v_xor_b32 v%d, v%d, v%d" % (pp + 1, ta + 1, pc + 1)))
    st = stmp()
    if t % 2 == 0: s.append(I("s_add_u32 s%d, s%d, %d" % (st, sOP, O_OB[l & 1] + t * 16384)))
    s.append(I("%s %s, %s, %s, 0" % (MF32, vr(lsum, 4), vr(va, 4), vr(sp, 4)), after=depV, mark="PV%d" % t))
    s.append(I("v_rcp_f32 v%d, v%d" % (sc, sc)))
    for r in range(4): s.append(I("v_mul_f32 v%d, v%d, v%d" % (lsum + r, sc, lsum + r)))
    s.append(I("v_cvt_pk_bf16_f32 v%d, v%d, v%d" % (ta + 1, lsum + 2, lsum + 3)))
    s.append(I("v_cvt_pk_bf16_f32 v%d, v%d, v%d" % (ta, lsum, lsum + 1)))
    if t % 2: s[-1].mark = "A%d" % t
    else:
        s.append(I("v_permlane16_swap_b32 v%d, v%d" % (ta - 1, ta + 1), after=["A%d" % (t + 1)]))
        s.append(I("v_permlane16_swap_b32 v%d, v%d" % (ta - 2, ta)))
        s.append(I("v_min_u32 v%d, -2, v%d" % (ta + 1, ta + 1)))
        s.append(I("buffer_store_dwordx4 %s, v%d, %s, s%d offen %s" % (vr(ta - 2, 4), vOS, WS, st, ST), tag="ost", mark="A%d" % t, gapmin=1))
    return s

def kvpub(M, l, q):
    st = stmp()
    return [I("v_mov_b32 v%d, v%d" % (q, M.k(3)), after=["V3"]), I("v_mov_b32 v%d, v%d" % (q + 1, M.k(3) + 1)),
            I("s_add_u32 s%d, s%d, %d" % (st, sKVO, l * 0x8000)),
            I("v_mov_b32 v%d, v%d" % (q + 2, M.v(3))), I("v_min_u32 v%d, -2, v%d" % (q + 3, M.v(3) + 1)),
            I("buffer_store_dwordx4 %s, v%d, %s, s%d offen sc1" % (vr(q, 4), vL16, WS, st), tag="kvst", mark="KVP", gapmin=1, lat=1000)]
def halo(M, l, delay, lat=900):
    st = 75
    hl = ["s_add_u32 s%d, s%d, %d" % (st, sKVI, l * 0x8000),
          "buffer_load_dwordx4 %s, v%d, %s, s%d offen sc1" % (vr(M.kh, 4), vL16, WS, st)]
    return [I(hl[0], delay=delay), I(hl[1], tag="halo", lat=lat)] + checked(hl, W(("vm", "halo")), [M.kh + 3], None, mark="H")

def stage_loads(l, t):
    st = 73
    loads = ["s_add_u32 s%d, s%d, %d" % (st, sR, O_XB[l & 1] + t * 16384)]
    loads += ["buffer_load_dwordx4 %s, v%d, %s, s%d offen offset:%d %s" % (vr(vSTG + 4 * j, 4), vSW, WS, st, j * 1024, LD) for j in range(4)]
    return loads
def stage_streams(l):
    loads = stage_loads(l, 2)
    ls = [I(loads[0])] + [I(loads[1 + j], tag="xs2", gapmin=OPT["lgap2"], mark="xl2" if j == 3 else None) for j in range(4)]
    ws_ = checked(loads, W(("vm", "xs2"), after=["xl2"]), [vSTG + 4 * j + 3 for j in range(4)], T[4])
    for j in range(4):
        ws_.append(I("ds_write_b128 v%d, %s offset:%d" % (vSW, vr(vSTG + 4 * j, 4), L_X + j * 1024), tag="xw2", gapmin=OPT["wgap2"], lat=60, mark="xw2_%d" % j))
    for t in (1, 0):
        ls += [I("s_add_u32 s73, s%d, %d" % (sR, O_XB[l & 1] + t * 16384), after=["B%d" % (t + 1)]), I("s_lshl_b32 s72, s%d, 12" % sW)]
        for j in range(4):
            if l == 1:
                ls.append(I("s_add_u32 m0, s72, %d" % (L_X + (t & 1) * 16384), glue=True, gapmin=OPT["lgap"])); ls[-1].kind2 = "vmem"
            elif j == 0: ls.append(I("s_add_u32 m0, s72, %d" % (L_X + (t & 1) * 16384)))
            ls.append(I("buffer_load_dwordx4 v%d, %s, s73 offen offset:%d %s lds" % (vSW, WS, j * 1024, LD), tag="xs%d" % t, mark="xl%d" % t if j == 3 else None, gapmin=OPT["lgap"]))
    if l < 3:
        ls += [I("s_lshl_b32 s73, s%d, 16" % sHG, after=["B0"]), I("s_add_u32 s73, s73, %d" % (WOT_OFF + 64512)),
               I("s_mov_b32 m0, %d" % (L_WO[1] + 64512)),
               I("buffer_load_dwordx4 v%d, %s, s73 offen sc1 lds" % (vL16, WS), tag="hole", lat=700, mark="HOLE")]
    return ls, ws_

def finalize(S, SS, t1, rstd, nmean):
    return [
        "v_mul_f32 v%d, %s, v%d" % (S, fbits(1.0 / 512), S),
        "v_mul_f32 v%d, %s, v%d" % (SS, fbits(1.0 / 512), SS),
        "v_fma_f32 v%d, -v%d, v%d, v%d" % (SS, S, S, SS),
        "v_max_f32 v%d, 0, v%d" % (SS, SS),
        "v_cvt_pk_bf16_f32 v%d, v%d, -v%d" % (S, SS, S),
        "v_lshlrev_b32 v%d, 16, v%d" % (t1, S),
        "v_add_f32 v%d, %s, v%d" % (t1, fbits(1e-5), t1),
        "v_cvt_pk_bf16_f32 v%d, v%d, v%d" % (t1, t1, t1),
        "v_lshlrev_b32 v%d, 16, v%d" % (t1, t1),
        "v_sqrt_f32 v%d, v%d" % (t1, t1),
        "v_and_b32 v%d, 0xffff0000, v%d" % (nmean, S),
        "v_cvt_pk_bf16_f32 v%d, v%d, v%d" % (t1, t1, t1),
        "v_lshlrev_b32 v%d, 16, v%d" % (t1, t1),
        "v_rcp_f32 v%d, v%d" % (rstd, t1)]

def scratch(l): return (L_WO[0] if l == 3 else L_WO[1]) + 65536 - 512
def stats(l):
    R = 80; sc = scratch(l)
    loads = ["s_add_u32 s74, s%d, %d" % (sR, O_SB[l & 1]), "s_add_u32 s74, s74, s%d" % sW1K,
             "buffer_load_dwordx4 %s, v%d, %s, s74 offen %s" % (vr(R, 4), vL16, WS, LD)]
    adr = [I(x) for x in [
        "v_bfe_u32 v%d, v%d, 4, 4" % (vH, vL16), "v_lshlrev_b32 v%d, 3, v%d" % (vH, vH), "v_and_b32 v%d, 0x18, v%d" % (vH + 1, vH),
        "v_add_u32 v%d, %d, v%d" % (vH, sc, vH),
        "v_lshrrev_b32 v%d, 8, v%d" % (R + 5, vL16), "v_lshl_add_u32 v%d, v%d, 5, v%d" % (vH + 1, R + 5, vH + 1), "v_add_u32 v%d, %d, v%d" % (vH + 1, sc, vH + 1),
        "s_lshl_b32 s75, s%d, 7" % sW, "s_add_u32 s75, s75, %d" % sc,
        "v_lshrrev_b32 v%d, 6, v%d" % (R + 5, vL16), "v_lshl_add_u32 v%d, v%d, 3, s75" % (R + 5, R + 5)]]
    s = adr + [I(loads[0]), I(loads[1]), I(loads[2], tag="sl", delay=("B3", OPT["s0d"]), gapmin=OPT["lgap2"], mark="sll")]
    chk = ["v_max_u32 v%d, v%d, v%d" % (T[5], R + 1, R + 3), "v_cmp_eq_u32 vcc, -1, v%d" % T[5]]
    s += checked(loads, W(("vm", "sl")), None, None, chk=chk)
    for o in (0, 1): s.append(I("v_add_f32 v%d, v%d, v%d" % (R + o, R + o, R + 2 + o)))
    for o in (0, 1): s.append(I("v_add_f32_dpp v%d, v%d, v%d quad_perm:[1,0,3,2] row_mask:0xf bank_mask:0xf" % (R + 2 + o, R + o, R + o)))
    for o in (0, 1): s.append(I("v_add_f32_dpp v%d, v%d, v%d quad_perm:[2,3,0,1] row_mask:0xf bank_mask:0xf" % (R + o, R + 2 + o, R + 2 + o)))
    s += [I(x) for x in finalize(R, R + 1, R + 4, R + 2, R + 3)]
    s.append(I("ds_write_b64 v%d, %s" % (R + 5, vr(R + 2, 2)), tag="sw", mark="SW", gapmin=1, lat=60))
    return s
def statreads(t, after=None):
    s = [I("ds_read_b64 %s, v%d offset:%d" % (vr(N.rs(t), 2), vH, t * 128), tag="st%d" % t, after=after, gapmin=1),
         I("ds_read_b64 %s, v%d offset:%d" % (vr(N.rs2(t), 2), vH + 1, t * 128), tag="st%d" % t, gapmin=1, mark="SR%d" % t)]
    return s

def pubstats_stream(l):
    R, G, O = 104, 108, 96
    out = [I("v_mov_b32 v%d, 0x3f803f80" % (O + i)) for i in range(4)]
    for k in range(2):
        x = vr(vXOLD[k], 4)
        out.append(I("%s %s, %s, %s, %s" % (MF32, vr(G, 4), x, x, vr(G, 4) if k else "0")))
    for k in range(2):
        out.append(I("%s %s, %s, %s, %s" % (MF32, vr(R, 4), vr(O, 4), vr(vXOLD[k], 4), vr(R, 4) if k else "0")))
    out[-1].mark = "PSM"
    st = stmp()
    out.append(I("s_add_u32 s%d, s%d, %d" % (st, sR, O_SB[l & 1])))
    out += sel4(G, G)
    out.append(I("v_min_u32 v%d, -2, v%d" % (R + 1, G)))
    out.append(I("buffer_store_dwordx2 %s, v%d, %s, s%d offen %s" % (vr(R, 2), vSS, WS, st, ST), tag="sst", mark="PS", gapmin=1))
    return out

def bslot(i):
    if i == 5: return 12288
    if i == 6: return 0
    return L_WO[1] + 12288 * (i if i < 5 else (i - 7) % 5)
def bchunk(i, gap=None):
    s = [I("s_add_u32 s76, s%d, %d" % (sROT, i)), I("s_and_b32 s76, s76, 15"), I("s_mul_i32 s76, s76, 98304"),
         I("s_add_u32 m0, s%d, %d" % (sW3K, bslot(i)))]
    s += [I("buffer_load_dwordx4 v%d, %s, s76 offen offset:%d lds" % (vBV, sr(sWA, 4), j * 1024), tag="bc%d" % i, lat=OPT["blat"], gapmin=gap) for j in range(3)]
    s[-1].mark = "BC%d" % i
    return s
def breads(i, low=None):
    a, base = (low, bslot(i)) if bslot(i) < L_WO[1] else (vBT, bslot(i) - L_WO[1])
    s = [I("ds_read_b64_tr_b16 %s, v%d offset:%d" % (wreg(1, 3 * i + j, e2), a, base + j * 1024 + e2 * 512), tag="br%d" % i, gapmin=8) for j in range(3) for e2 in range(2)]
    s[-1].mark = "BR%d" % i
    return s
def wobdma(q, gap):
    s = [I("s_add_u32 s76, s%d, %d" % (sWOT, q * 4096))]
    for j in range(4):
        if q == 3 and j == 3:
            s += [I("s_cmp_eq_u32 s%d, 3" % sW, glue=True), I("s_cselect_b32 m0, %d, m0" % 0x2f000, glue=True)] if False else []
        s += [I("s_add_u32 m0, s%d, %d" % (sWL if not (q == 3 and j == 3) else sWL2, L_WO[1] + q * 4096), glue=True, gapmin=gap),
              I("buffer_load_dwordx4 v%d, %s, s76 offen offset:%d sc1 lds" % (vL16, WS, j * 1024), tag="wo", lat=1)]
        s[-2].kind2 = "vmem"
    return s

def fill2k(sbase, add, q, flav, gap=None):
    st = stmp()
    s = [I("s_add_u32 s%d, s%d, %d" % (st, sbase, add & 0xffffffff))]
    s += [I("buffer_store_dwordx4 %s, v%d, %s, s%d offen offset:%d %s" % (vr(q, 4), vL16, WS, st, k * 1024, flav), tag="init", gapmin=gap) for k in range(2)]
    return s
def touch2k(sbase, add, gap=None, dst=vDUM):
    st = stmp()
    return [I("s_add_u32 s%d, s%d, %d" % (st, sbase, add & 0xffffffff)),
            I("buffer_load_dword v%d, v%d, %s, s%d offen sc1" % (dst, vSL, WS, st), tag="touch", gapmin=gap)]
def fillsb(add, q, flav, gap=None):
    st = stmp()
    return [I("s_add_u32 s%d, s%d, %d" % (st, sR, add & 0xffffffff)),
            I("buffer_store_dwordx2 %s, v%d, %s, s%d offen %s" % (vr(q, 2), vSS, WS, st, flav), tag="init", gapmin=gap)]
def touchsb(add, gap=None, dst=vDUM):
    st = stmp()
    return [I("s_add_u32 s%d, s%d, %d" % (st, sR, add & 0xffffffff)),
            I("buffer_load_dword v%d, v%d, %s, s%d offen sc1" % (dst, vSS, WS, st), tag="touch", gapmin=gap)]
def fillkv(add, q, gap=None):
    st = stmp()
    return [I("s_add_u32 s%d, s%d, %d" % (st, sKVO, add & 0xffffffff)),
            I("buffer_store_dwordx4 %s, v%d, %s, s%d offen sc1" % (vr(q, 4), vL16, WS, st), tag="kvinit", gapmin=gap)]
def ones_q(q): return [I("v_mov_b32 v%d, -1" % (q + i)) for i in range(4)]

def xread(reg, t, ks, tag):
    return I("ds_read_b128 %s, v%d offset:%d" % (vr(reg, 4), vL16, L_X + (t & 1) * 16384 + ks * 1024), tag=tag)

RING6 = [40, 44, 48, 52, 112, 116]
def p1_main(typ, jit):
    uses = [(t, ks) for t in (3, 2, 1, 0) for ks in range(16)]
    free = list(RING6); reg = {}
    nxt = 0; waited = -1
    def rd():
        nonlocal nxt
        reg[nxt] = free.pop(0)
        i = xread(reg[nxt], uses[nxt][0], uses[nxt][1], "f%d" % nxt); nxt += 1
        return i
    first = [rd() for _ in range(3)]
    opened = 3
    steps = [[], [], [], []]; late = []
    for n, (t, ks) in enumerate(uses):
        a = vACC[t & 1]; fr = vr(reg[n], 4)
        g_ = []
        for j in (1, 0, 2):
            w = wreg(typ, ks * 3 + j)
            A, B = (w, fr) if j < 2 else (fr, w)
            g_.append((I("%s %s, %s, %s, %s" % (MF32, vr(a + 4 * j, 4), A, B, vr(a + 4 * j, 4) if ks else "0")), []))
        if n == 48: free += [24, 28, 32]
        defer = n >= 64 - OPT["vdef"]
        if defer: late.append(g_.pop())
        if jit and t == 3: g_ += [(m, []) for m in cs_mfma(typ, ks, vACC[0], 88)]
        for k in range(2):
            if nxt < len(uses) and free and uses[nxt][0] >= opened: g_[k][1].append(rd())
        last = g_[-1][1]
        if t > 0 and ks == (OPT["bks3"] if t == 3 else OPT["bks"]):
            if t == 3:
                w_ = W(("lg", "f%d" % (n + 15 - ks)), ("lg", "xw2"), ("lg", "sw")); w_.need = ["xw2_3", "SW"]
            else:
                w_ = W(("lg", "f%d" % (n + 15 - ks)), ("vm", "xs%d" % (t - 1))); w_.need = ["xl%d" % (t - 1)]
                if t == 1: w_.waitspec.append(("lg", "st0")); w_.need.append("SR0")
            assert nxt > n + 15 - ks
            last += [w_, I("s_barrier", mark="B%d" % (t - 1))]
            waited = n + 15 - ks; opened = t - 1
        if n + 1 < len(uses):
            spec = []
            if waited < n + 1:
                waited = min(n + (2 if nxt - n > 5 else 1), nxt - 1)
                assert waited >= n + 1
                spec.append(("lg", "f%d" % waited))
            nd = []
            if jit and t == 3 and 7 <= ks + 1 < 16: spec.append(("lg", "br%d" % (ks + 1))); nd = ["BR%d" % (ks + 1)]
            if spec:
                w_ = W(*spec); w_.need = nd; last.append(w_)
        if not defer: free.append(reg[n])
        steps[n // 16] += g_
    kq = steps[3][-1][0] if late else steps[3][-2][0]
    steps[3] += late
    kq.mark = "KQ0"
    for k, t in enumerate((3, 2, 1, 0)):
        steps[k][0][0].mark = "S%d" % t; steps[k][-1][0].mark = "G%d" % t
    return first, steps

def oloads(l, j):
    st = stmp()
    L = ["s_add_u32 s%d, s%d, %d" % (st, sOL, O_OB[l & 1] + j * 4096)]
    L += ["buffer_load_dwordx4 %s, v%d, %s, s%d offen offset:%d %s" % (vr(vOBUF[j] + 4 * i, 4), vL16, WS, st, i * 1024, LD) for i in range(4)]
    return L
def emit_oloads(l, j):
    for x in oloads(l, j): e(x, tag="og%d" % j)

def resid():
    return [I("%s %s, %s, %s, 0" % (MF16, vr(vPACC + 4 * u, 4), vr(vID, 2), vr(vXOLD[u >> 1] + 2 * (u & 1), 2))) for u in range(4)]

def s3loads(l):
    return ["s_add_u32 s73, s%d, %d" % (sR, O_XB[l & 1] + 3 * 16384)] + \
        ["buffer_load_dwordx4 %s, v%d, %s, s73 offen offset:%d %s" % (vr(40 + 4 * j, 4), vSW, WS, j * 1024, LD) for j in range(4)]
def s3finish(l):
    loads = s3loads(l)
    for p in range(2):
        chk = ["v_max_u32 v%d, v%d, v%d" % (T[4], 40 + 8 * p + 3, 40 + 8 * p + 7), "v_cmp_eq_u32 vcc, -1, v%d" % T[4]]
        emit_all(checked(loads if p == 0 else loads[3:5], W(("vm", "xs3_%d" % p)), None, None, chk=chk))
        if p == 0: lstamp(7)
        for j in (2 * p, 2 * p + 1):
            e("ds_write_b128 v%d, %s offset:%d" % (vSW, vr(40 + 4 * j, 4), L_X + 16384 + j * 1024), tag="xw3")

WRING = [80, 84, 96, 72, 76, 88, 92, 100]
def word(n): return I("ds_read_b128 %s, v%d offset:%d" % (vr(WRING[n % 8], 4), vL16b, n * 1024), tag="w%d" % n, gapmin=1)
def p2_early(l):
    rs = resid(); rs[0].after = ["V0"]
    w = [I("v_add_u32 v%d, %d, v%d" % (vL16b, L_WO[l & 1], vL16), after=["F0", "F1"])] + [word(n) for n in range(3)]
    return rs, w
def p2(l, cls, extra=None):
    def ocheck(j, js):
        regs = [vOBUF[j] + 4 * i + 3 for i in range(4)]
        re_ = [x for jj in js for x in oloads(l, jj)]
        return checked(re_, W(("vm", "og%d" % j)), regs, T[4], retry_wait=0 if cls else 4 * (len(js) - 1), mark="OK%d" % j)
    if cls is None:
        rs, w = p2_early(l)
        emit_all([w[0], rs[0], w[1], w[2], rs[1], w[3], rs[2], rs[3]])
    if cls == "lo":
        for n in range(3, 7): e.emit(word(n))
        e.emit(W(("vm", "ost")))
        emit_oloads(l, 0); emit_oloads(l, 1)
        lstamp(2)
    oc = ocheck(0, [0, 1, 2] if cls is None else [0])
    if cls == "lo": emit_all(oc)
    else:
        emit_all(oc[:-2])
        for n in range(3, 7): e.emit(word(n))
        emit_all(oc[-2:])
    lstamp(4)
    e.emit(W(("lg", "w0")))
    stamp("p2start")
    order = [(n // 4, n % 4) for n in range(56)] + [(14, 0), (14, 1), (15, 0), (15, 1), (14, 2), (14, 3), (15, 2), (15, 3)]
    main = []
    for n, (ks, u) in enumerate(order):
        j = n // 16
        m = I("%s %s, %s, %s, %s" % (MF32, vr(vPACC + 4 * u, 4), vr(WRING[n % 8], 4), vr(vOBUF[j] + 4 * (ks % 4), 4), vr(vPACC + 4 * u, 4)))
        att = []
        if n + 7 < 64:
            x = word(n + 7); k2, u2 = order[n + 7]
            x = I(x.text.rsplit("offset:", 1)[0] + "offset:%d" % ((4 * k2 + u2) * 1024), tag=x.tag)
            att.append(x)
        if n + 1 < 64 and n % 2 == 0: att.append(W(("lg", "w%d" % min(n + 2, 63))))
        if n % 16 == 0: m.need = ["OK%d" % j]
        if n % 16 == 15: m.mark = "PG%d" % j
        if n == 59: m.mark = "PH0"
        if extra and n == 13: att.append(I("s_barrier"))
        main.append((m, att))
    g2 = [I(x, tag="og2", gapmin=16, lat=420) for x in oloads(l, 2)] if cls else []
    g3 = [I(x, tag="og3", gapmin=16, lat=420) for x in oloads(l, 3)]
    for x in g2 + g3 + (extra or []): x.patience = 0
    g3[0].after = ["PG0"]; g3[-1].mark = "G3I"
    chain = g2 + ocheck(1, [1]) + g3 + ocheck(2, [2]) + ocheck(3, [3])
    extra = extra or []
    if extra: extra[0].after = ["G3I"]
    if cls == "lo" and l < 3:
        sl = [I(x, tag="xs3_%d" % max(0, (k - 1) // 2), gapmin=16) for k, x in enumerate(s3loads(l + 1))]
        for x in sl: x.patience = 0
        sl[0].after = ["PX"]; main[OPT["lox"]][0].mark = "PX"; sl[-1].mark = "XL3"; main[63][0].need = ["XL3"]
        chain += sl
    run(e, main, [chain, extra], drain=False, tol=OPT["p2tol"])
    assert not chain
    st = stmp()
    if l < 3: e("s_add_u32 s%d, s%d, %d" % (st, sXP, O_XB[(l + 1) & 1]))
    for k in range(2):
        for i in (3, 0, 1, 2):
            e("v_cvt_pk_bf16_f32 v%d, v%d, v%d" % (vXOLD[k] + i, vPACC + 8 * k + 2 * i, vPACC + 8 * k + 2 * i + 1))
        if l < 3:
            e("v_min_u32 v%d, -2, v%d" % (vXOLD[k] + 3, vXOLD[k] + 3))
            e("buffer_store_dwordx4 %s, v%d, %s, s%d offen offset:%d %s" % (vr(vXOLD[k], 4), vL16, WS, st, k * 1024, ST), tag="xst")
        else:
            e("buffer_store_dwordx4 %s, v%d, %s, 0 offen offset:%d" % (vr(vXOLD[k], 4), vXO, sr(sOUT, 4), 64 * k))
    stamp("xpub")
    lstamp(5)
    if l == 3: ldump(9)
    if l == 3:
        stamp("rt1", real=True)
        e(f"""
        s_or_b32 s72, s2, s{sW}
        s_cbranch_scc1 L_end
        v_mov_b32 v0, s{sN1}
        s_mov_b32 s72, {EPOCH}
        s_mov_b64 exec, 1
        buffer_store_dword v0, v{vL16}, {WS}, s72 offen sc1
        s_endpgm
        """)
        return
    if extra: flush(e, [extra])
    ps = pubstats_stream(l + 1)
    if cls == "lo":
        emit_all(ps[:8])
        s3finish(l + 1)
        emit_all(ps[8:-1])
        e("s_waitcnt vmcnt(0)")
        e.emit(ps[-1])
    else:
        emit_all(ps[:-1])
        e.emit(W(("vm", "xst")))
        for k, x in enumerate(s3loads(l + 1)): e(x, tag="xs3_%d" % max(0, (k - 1) // 2))
        e.emit(ps[-1])
        lstamp(6)
        s3finish(l + 1)
    e("s_waitcnt lgkmcnt(0)")
    lstamp(8)
    return extra

def p1(l, carry=None):
    typ = l & 1; a0, a1 = vACC
    e.marks = {}
    if l == 1: e.emit(W(("vm", "bc11")))
    e("s_barrier", mark="B3")
    stamp("B3")
    stamp("cnt")
    jit = l == 1
    first, steps = p1_main(typ, jit)
    emit_all(first)
    sld, stg = stage_streams(l)
    def ep(t, after): return [W(("lg", "st%d" % t), after=after)] + epi(N, typ, t)
    ch = stats(l) + statreads(3, ["B2"]) + statreads(2)
    if jit:
        c = cs_compact(1, a0); c[0].after = ["G3", "S2"]
        ch += c
    ch += ep(3, ["G3"]) + statreads(1) + kvpub(N, l, a1) + ep(2, ["G2"]) + statreads(0) + ep(1, ["G1", "A3"])
    [x for x in ch if x.tag == "kvst"][0].after = ["xl1"]
    if l < 3: ch.insert([i for i, x in enumerate(ch) if x.tag == "kvst"][0], W(("vm", "kvinit")))
    ch2 = epi_kq(N, typ, 0, after=["KQ0", "F2", "V1"])
    ch3 = epi_v(N, typ, 0, after=["G0", "PV2"])
    for x in ch3: x.lazy = True
    at = attn(N, l, 3, a0, T[0], ["K2"], ["Q2"], ["V2"]) + attn(N, l, 2, a1, T[2], ["K1"], ["Q1"], ["V1"])
    if l < 3: at.insert([i for i, x in enumerate(at) if x.tag == "ost"][0], W(("vm", "init")))
    at1 = attn(N, l, 1, a1, T[0], ["K0", "A2"], [], ["V0"])
    at0 = halo(N, l, ("S1", OPT["hd"])) + attn(N, l, 0, a0, T[2], ["K0"], ["Q0", "A2"], ["V0"])
    at0[0].after = ["xl0"]
    sides = [stg, sld, ch, at, ch2, at1, at0, ch3]
    emit_all(sld[:3] + ch[:5] + sld[3:4] + ch[5:13] + sld[4:5]); del sld[:5]; del ch[:13]
    e.t_mem["vmem"] = e.t
    if jit:
        for i in range(4): e("v_mov_b32 v%d, 0x3f803f80" % (88 + i))
        q = 92
        sv = breads(7) + breads(8) + [W(("lg", "br8")), I("s_barrier")] + bchunk(12, 16) + bchunk(13, 16) \
            + breads(9) + breads(10) + [W(("lg", "br10")), I("s_barrier")] + bchunk(14, 16) + bchunk(15, 16) + breads(11) \
            + [W(("vm", "bc13")), I("s_barrier")] + breads(12) + breads(13) + [W(("vm", "bc15")), I("s_barrier")] + breads(14) + breads(15) \
            + [W(("lg", "br15")), I("s_barrier", mark="BD")]
        for x in sv: x.patience = 0
        fl = ones_q(q) + fill2k(sXP, O_XB[0], q, ST) + fillsb(O_SB[0], q, ST) + fillkv(2 * 0x8000, q); fl[0].after = ["BC15"]
        f2 = ["s_lshl_b32 s77, s%d, 9" % sHG, "s_add_u32 s77, s77, %d" % FL2, "v_lshrrev_b32 v94, 1, v%d" % vL16,
              "buffer_load_dwordx2 v[92:93], v94, %s, s77 offen sc1" % WS]
        c2 = ["v_xor_b32 v94, s%d, v92" % sN1, "v_xor_b32 v95, s%d, v93" % sN2, "v_lshrrev_b32 v95, 8, v95", "v_or_b32 v94, v94, v95", "v_cmp_ne_u32 vcc, 0, v94"]
        fl[-1].mark = "S2"
        fl = [I(x, tag="f2", lat=600, after=["xl2"]) for x in f2] + checked(f2, W(("vm", "f2")), None, None, chk=c2) + fl
        tc = touch2k(sOI, O_OB[1], dst=vSTG) + touch2k(sXP, O_XB[0], dst=vSTG) + touchsb(O_SB[0], dst=vSTG); tc[0].after = ["B2"]
        wd = wobdma(0, 40) + wobdma(1, 40) + wobdma(2, 40) + wobdma(3, 40); wd[0].after = ["BD"]
        ex = fl + wd + tc
        ex[-1].mark = "WOB"
        sides.insert(2, sv)
        sides.append(ex)
        [x for x in sld if x.after == ["B1"]][0].after = ["B1", "WOB"]
        [x for x in sld if x.after == ["B2"]][0].after = ["B2", "BC15"]
    if l == 2:
        q = 0
        du = ones_q(q) + fillkv(3 * 0x8000, q) + fill2k(sXP, O_XB[1], q, ST) + fillsb(O_SB[1], q, ST)
        du[4].after = ["xl2", "sll"]; du[6].after = ["KVP"]; du[-1].mark = "DU"
        sides.append(du)
        [x for x in ch if x.waitspec and ("vm", "kvinit") in x.waitspec][0].after = ["DK"]; du[5].mark = "DK"
        at[0].after = at[0].after + ["DU"]
    if l < 3:
        ra = ones_q(36) + fill2k(sOI, O_OB[(l + 1) & 1], 36, ST)
        for x in ra: x.tag = "rearm" if x.tag else None
        ra[0].after = ["B2"]; ra[4].after = ["KVP"]; ra[-1].mark = "RA"
        sides.append(ra)
    e.emit(W(("lg", "f0")))
    steps[1][0][0].need = ["CS"] if jit else []
    steps[2][0][0].need = ["KVP"]
    steps[3][0][0].need = ["A3"]
    cut = OPT["cut"]
    steps[3][cut - 1][0].need = ["H"] + (["HOLE", "RA"] if l < 3 else [])
    for k, nm in enumerate(("s3", "s2", "s1", None)):
        run(e, steps[k] if k < 3 else steps[3][:cut], sides, drain=False, memgap=OPT["lgap"], tol=float(OPT["tol"].split("/")[k]))
        if nm: stamp(nm)
    assert not any(x.kind == "label" for s_ in sides for x in s_)
    return steps[3][cut:], sides

def tail(l, cls, mainB, sides):
    rs, w = p2_early(l)
    pf = []
    if cls == "hi":
        pf = [I(x, tag="og%d" % j, gapmin=OPT["pgap"]) for j in (0, 1) for x in oloads(l, j)]
        pf[0].delay = ("A2", OPT["pfd"]); pf[0].after = ["G0"]
    run(e, mainB, [pf] + sides, drain=False, memgap=OPT["lgap"], tol=float(OPT["tol"].split("/")[4]))
    for x in rs + w: x.lazy = True
    for x in pf: x.soft = True
    flush(e, [pf] + sides, until="Q0")
    flush(e, [pf] + sides + [rs, w], longest=True, first=pf)

def layer(l, carry=None):
    CURL[0] = l
    mainB, sides = p1(l, carry)
    lhi, ljoin = lab("hi"), lab("join")
    e("s_cmp_lt_u32 s%d, 2" % sW)
    e("s_cbranch_scc0 " + lhi)
    snap = (list(e.vm), list(e.lg), dict(e.marks), e.t, e.t_valu, e.t_mfma, dict(e.t_mem), e.vcc_pending)
    ctx = e.out[-30:]
    work = copy.deepcopy((mainB, sides))
    ns = len(stamp_names)
    main_out = e.out
    e.out = list(ctx)
    e(lhi + ":")
    tail(l, "hi", *work)
    stamp("E"); lstamp(0)
    p2(l, "hi")
    if l < 3: e("s_branch " + ljoin)
    o = Emitter(); o.out = e.out[len(ctx):]
    ool.append(o.text(OPT["times"]))
    del stamp_names[ns:]
    e.out = main_out
    e.vm, e.lg, e.marks, e.t, e.t_valu, e.t_mfma, e.t_mem, e.vcc_pending = snap
    tail(l, "lo", mainB, sides)
    stamp("E"); lstamp(0)
    p2(l, "lo")
    if l < 3:
        e(ljoin + ":")
        e.vm = []; e.lg = []

def wchunk(i, after=None):
    s = [I("s_add_u32 s72, s%d, %d" % (sROT, i), after=after), I("s_and_b32 s72, s72, 15"), I("s_mul_i32 s72, s72, 98304"),
         I("s_add_u32 m0, s%d, %d" % (sW3K, slot(i)))]
    s += [I("buffer_load_dwordx4 v%d, %s, s72 offen offset:%d lds" % (zWV, sr(sWA, 4), j * 1024), tag="wc%d" % i, lat=1) for j in range(3)]
    s[-1].mark = "WC%d" % i
    return s
def xslab(sl):
    s = [I("s_lshl_b32 s73, s%d, 6" % sROT), I("s_add_u32 s73, s73, %d" % (256 * sl)), I("s_and_b32 s73, s73, 1023"),
         I("s_add_u32 s73, s73, s%d" % sXBASE)]
    for t in range(4):
        s += [I("s_add_u32 m0, s%d, %d" % (sW1K, L_WO[1] + sl * 16384 + t * 4096)),
              I("buffer_load_dwordx4 v%d, %s, s73 offen lds" % (zXV, sr(sX, 4)), tag="xl%d" % sl, lat=1)]
        if t < 3: s.append(I("s_add_u32 s73, s73, 32768"))
    s[-1].mark = "XL%d" % sl
    return s
def stream(text):
    L = [x.strip() for x in text.strip().split("\n")]
    L = [I(x) for x in L if x and not x.startswith(";")]
    for a, b in zip(L, L[1:]):
        if b.mn.startswith("s_cselect"): a.glue = True
    return L

def prologue():
    rot = {0: "s_mov_b32 s%d, 0" % sROT,
           1: "s_lshl_b32 s%d, s3, 2" % sROT,
           2: "s_and_b32 s94, s2, 3\n s_lshl_b32 s%d, s94, 2" % sROT,
           3: "s_and_b32 s94, s3, 1\n s_lshl_b32 s94, s94, 1\n s_add_u32 s94, s94, s2\n s_and_b32 s94, s94, 3\n s_lshl_b32 s%d, s94, 2" % sROT,
           }[OPT["rot"]]
    e(f"""
    s_load_dwordx4 s[76:79], s[0:1], 0
    s_load_dwordx2 s[82:83], s[0:1], 64
    s_load_dwordx2 s[80:81], s[0:1], 16
    s_load_dwordx4 s[84:87], s[0:1], 32
    s_load_dwordx2 s[88:89], s[0:1], 48
    s_cmp_ge_u32 s2, 256
    s_cbranch_scc1 L_end
    v_lshrrev_b32 v1, 6, v0
    v_and_b32 v0, 63, v0
    v_readfirstlane_b32 s{sW}, v1
    s_lshr_b32 s3, s2, 3
    s_getpc_b64 s[96:97]
    L_pc:
    s_mov_b32 s98, L_slow-L_pc
    s_mov_b32 s99, 0x00020000
    s_lshl_b32 s94, s3, 11
    s_cmp_eq_u32 s{sW}, 2
    s_cbranch_scc0 L_nocp
    """)
    e.begin_cond()
    e(f"""
    v_lshlrev_b32 v1, 5, v0
    buffer_load_dword v{vDUM}, v1, s[96:99], s94 offen
    """)
    e.end_cond()
    e(f"""
    L_nocp:
    s_add_u32 s{sHG}, s3, {OPT['hgo']}
    s_and_b32 s{sHG}, s{sHG}, 7
    s_lshr_b32 s3, s3, 3
    s_and_b32 s{sC}, s2, 7
    s_lshl_b32 s{sC}, s{sC}, 2
    s_add_u32 s{sC}, s{sC}, s3
    s_and_b32 s{sB}, s{sC}, 15
    {rot}
    v_and_b32 v2, 15, v0
    v_lshrrev_b32 v3, 4, v0
    v_lshlrev_b32 v{vL16}, 4, v0
    ; ---- x0 DMA voffset: i = 4w + g ; i*2048 + ((n ^ i) << 4)
    s_lshl_b32 s94, s{sW}, 2
    v_add_u32 v1, s94, v3
    v_xor_b32 v4, v1, v2
    v_lshlrev_b32 v4, 4, v4
    v_lshl_add_u32 v{zXV}, v1, 11, v4
    s_lshl_b32 s{sXBASE}, s{sB}, 7
    s_lshr_b32 s95, s{sC}, 4
    s_add_u32 s{sXBASE}, s{sXBASE}, s95
    s_lshl_b32 s{sXBASE}, s{sXBASE}, 10
    s_lshl_b32 s94, s{sW}, 3
    v_lshrrev_b32 v1, 3, v0
    v_add_u32 v{zUV}, s94, v1
    v_and_b32 v4, 1, v3
    v_lshlrev_b32 v4, 1, v4
    s_and_b32 s94, s{sW}, 1
    s_lshl_b32 s94, s94, 2
    v_or_b32 v4, s94, v4
    v_and_b32 v5, 7, v0
    v_xor_b32 v4, v4, v5
    v_lshlrev_b32 v4, 4, v4
    s_lshl_b32 s95, s{sHG}, 7
    v_mul_u32_u24 v{zWV}, 3072, v{zUV}
    v_add3_u32 v{zWV}, v{zWV}, v4, s95
    s_mul_i32 s{sW3K}, s{sW}, 3072
    s_lshl_b32 s{sW1K}, s{sW}, 10
    v_lshlrev_b32 v1, 11, v1
    v_lshl_add_u32 v1, v5, 7, v1
    s_lshl_b32 s94, s{sHG}, 14
    s_add_u32 s94, s94, s{sXBASE}
    s_mov_b32 s{sX+2}, 0x200000
    s_mov_b32 s{sX+3}, 0x00020000
    s_mov_b32 s{sWA+2}, 0x180000
    s_mov_b32 s{sWA+3}, 0x00020000
    s_mov_b32 s{sWS+2}, {0x2100000 if OPT['stamps'] else WS_SIZE}
    s_mov_b32 s{sWS+3}, 0x00020000
    s_mov_b32 s{sOUT+2}, 0x200000
    s_mov_b32 s{sOUT+3}, 0x00020000
    s_waitcnt lgkmcnt(0)
    s_mov_b64 {sr(sX,2)}, s[76:77]
    s_mov_b64 {sr(sWA,2)}, s[78:79]
    s_mov_b64 {sr(sWS,2)}, s[82:83]
    """)
    if OPT["stamps"]:
        e(f"""
        s_lshl_b32 s92, s2, 2
        s_add_u32 s92, s92, s{sW}
        s_lshl_b32 s92, s92, 8
        s_add_u32 s92, s92, {STAMP_OFF}
        """)
        if OPT.get("dbgst"):
            e(f"""
            s_load_dwordx2 s[100:101], s[0:1], 56
            s_waitcnt lgkmcnt(0)
            s_lshl_b32 s95, s2, 2
            s_add_u32 s95, s95, s{sW}
            s_mov_b64 s[0:1], s[82:83]
            s_cmp_eq_u32 s95, {4 * OPT["dbgst"]}
            s_cselect_b64 s[0:1], s[100:101], s[0:1]
            s_cselect_b32 s92, 0, s92
            s_cmp_eq_u32 s95, {4 * OPT["dbgs2"]}
            s_cselect_b64 s[0:1], s[100:101], s[0:1]
            s_cselect_b32 s92, 32, s92
            """)
        stamp("rt0", real=True)
        stamp("start")
    emit_all(xslab(0) + wchunk(0))
    e(f"""
    s_cmp_eq_u32 s{sW}, 3
    s_cbranch_scc0 L_noxt
    """)
    e.begin_cond()
    e("buffer_load_dword v%d, v1, %s, s94 offen" % (vDUM, sr(sX, 4)))
    e.end_cond()
    e(f"""
    L_noxt:
    s_cmp_eq_u32 s{sW}, {1 if OPT["h3"] else 7}
    s_cbranch_scc0 L_noh3
    """)
    e.begin_cond()
    e(f"""
    ; the column group whose lines sit at 3 mod 8 streams slowly from beyond L2: every CU pulls a share of it in early
    s_lshr_b32 s94, s78, 7
    s_sub_u32 s94, 3, s94
    s_and_b32 s94, s94, 7
    s_lshl_b32 s94, s94, 7
    s_lshr_b32 s95, s2, 3
    s_mul_i32 s95, s95, 49152
    s_add_u32 s94, s94, s95
    v_lshlrev_b32 v1, 10, v0
    s_mov_b32 exec_hi, 0xffff
    buffer_load_dword v{vDUM}, v1, {sr(sWA,4)}, s94 offen
    s_mov_b32 exec_hi, -1
    """)
    e.end_cond()
    e(f"""
    L_noh3:
    s_add_u32 s82, s82, {EPOCH}
    s_addc_u32 s83, s83, 0
    s_load_dword s{sN1}, s[82:83], 0
    """)
    emit_all(wchunk(1))
    e(f"""
    s_mov_b64 {sr(sOUT,2)}, s[88:89]
    s_mov_b64 {sr(sU1,2)}, s[86:87]
    s_mov_b32 s{sU1+2}, 0x80000
    s_mov_b32 s{sU1+3}, 0x00020000
    s_mov_b64 {sr(sWOA,2)}, s[80:81]
    s_mov_b32 s{sWOA+2}, 0x80000
    s_mov_b32 s{sWOA+3}, 0x00020000
    s_mov_b64 {sr(sWBP,2)}, s[84:85]
    v_lshlrev_b32 v1, 8, v2
    v_add_u32 v1, {L_WO[1]}, v1
    s_lshl_b32 s3, s{sW}, 12
    """)
    for m in range(4):
        e(f"""
        v_or_b32 v4, {4*m}, v3
        v_xor_b32 v4, v4, v2
        v_lshl_add_u32 v{zA+m}, v4, 4, v1
        v_add_u32 v{zAO+m}, s3, v{zA+m}
        v_mov_b32 v{zONE+m}, 0x3f803f80
        """)
    e(f"""
    v_bfe_u32 v1, v0, 2, 2
    v_lshrrev_b32 v4, 1, v1
    v_and_b32 v5, 1, v3
    v_lshl_or_b32 v4, v5, 1, v4
    v_xor_b32 v4, s{sW}, v4
    v_lshlrev_b32 v4, 5, v4
    v_and_b32 v5, 3, v0
    v_lshl_add_u32 v4, v5, 3, v4
    v_lshl_add_u32 v4, v1, 7, v4
    v_mul_u32_u24 v{zTR}, 3072, v3
    v_add_u32 v{zTR}, v4, v{zTR}
    v_add_u32 v{zTR+1}, 49152, v{zTR}
    """)
    e("s_waitcnt lgkmcnt(0)")
    C = consts()
    c0 = OPT["c0"]
    while C[c0 - 1].glue: c0 += 1
    emit_all(C[:c0]); emit_all(wchunk(2)); emit_all(C[c0:]); emit_all(wchunk(3))
    stamp("issued")

def consts():
    t = f"""
    s_mul_i32 s{sR}, s{sC}, {CS}
    s_add_u32 s{sR}, s{sR}, {HB}
    s_lshl_b32 s{sWL}, s{sW}, 14
    s_add_u32 s{sOL}, s{sR}, s{sWL}
    s_lshl_b32 s3, s{sHG}, 1
    s_sub_u32 s74, s3, s{sROT}
    s_and_b32 s74, s74, 15
    s_lshl_b32 s74, s74, 10
    s_add_u32 s{sXP}, s{sOL}, s74
    s_lshl_b32 s3, s3, 10
    s_add_u32 s{sOI}, s{sOL}, s3
    s_lshl_b32 s74, s{sHG}, 3
    s_add_u32 s3, s{sW1K}, s74
    v_lshlrev_b32 v1, 6, v2
    v_add_u32 v1, s3, v1
    v_mov_b32 v4, 0x7ffffff0
    s_mov_b32 s74, 0x00f0000f
    s_mov_b32 s75, 0xf0000f00
    v_cndmask_b32 v{vSS}, v4, v1, s[74:75]
    v_mov_b32 v{vACC[0]}, -1
    v_mov_b32 v{vACC[0]+1}, -1
    v_mov_b32 v{vACC[0]+2}, -1
    v_mov_b32 v{vACC[0]+3}, -1
    """
    a = stream(t); a[-1].mark = "C1"
    a2 = stream(f"""
    s_mul_i32 s{sN1}, s{sN1}, 0x9e3779b1
    s_add_u32 s{sN1}, s{sN1}, 0x7f4a7c15
    s_mul_i32 s{sN2}, s{sN1}, 0x85ebca6b
    s_and_b32 s{sN2}, s{sN2}, 0xffffff00
    s_getreg_b32 s3, hwreg(HW_REG_XCC_ID, 0, 4)
    s_or_b32 s{sN2}, s{sN2}, s3
    v_mov_b32 v{zFL}, s{sN1}
    v_mov_b32 v{zFL+1}, s{sN2}
    s_lshl_b32 s{sFO1}, s{sC}, 3
    s_add_u32 s{sFO1}, s{sFO1}, s{sHG}
    s_lshl_b32 s{sFO1}, s{sFO1}, 4
    s_add_u32 s{sFO1}, s{sFO1}, {FL1}
    s_cmp_eq_u32 s{sW}, 3
    s_cselect_b32 s{sFO1}, s{sFO1}, 0x7f000000
    v_and_b32 v{zST+3}, 0x70, v{vL16}
    """); a2[-1].mark = "CF"
    t = f"""
    v_mov_b32 v4, 0x3f80
    v_and_b32 v1, 1, v0
    v_lshlrev_b32 v1, 4, v1
    v_lshlrev_b32 v1, v1, v4
    s_and_b32 s76, s74, 0x33333333
    s_and_b32 s77, s75, 0x33333333
    v_cndmask_b32 v{vID}, 0, v1, s[76:77]
    s_xor_b64 s[76:77], s[76:77], s[74:75]
    v_cndmask_b32 v{vID+1}, 0, v1, s[76:77]
    """
    b0 = stream(t)
    t = f"""
    ; ---- wo DMA voffset: (lane>>3)*1024 + hg*128 + ((lane&7) ^ ((g&1)<<2))*16
    v_and_b32 v1, 1, v3
    v_lshlrev_b32 v1, 2, v1
    v_and_b32 v4, 7, v0
    v_xor_b32 v1, v1, v4
    v_lshlrev_b32 v1, 4, v1
    v_lshrrev_b32 v4, 3, v0
    v_lshlrev_b32 v4, 10, v4
    s_lshl_b32 s3, s{sHG}, 7
    v_add3_u32 v{zOV}, v4, v1, s3
    v_bfe_u32 v1, v0, 2, 2
    v_lshl_add_u32 v1, v3, 3, v1
    v_lshlrev_b32 v1, 7, v1
    v_and_b32 v4, 3, v0
    v_lshl_add_u32 v1, v4, 4, v1
    v_bfe_u32 v4, v0, 3, 1
    v_lshl_add_u32 v1, v4, 6, v1
    s_lshl_b32 s3, s{sW}, 12
    v_add_u32 v{vSW}, s3, v{vL16}
    s_add_u32 s3, s3, {L_WO[0]}
    v_add_u32 v{zTA}, s3, v1
    v_xor_b32 v{zTA+1}, 64, v{zTA}
    v_add_u32 v{zTA+2}, {L_WO[0]}, v{vSW}
    s_lshr_b32 s3, s{sW}, 1
    s_lshl_b32 s3, s3, 6
    s_and_b32 s74, s{sW}, 1
    s_lshl_b32 s75, s74, 3
    v_and_b32 v4, 1, v3
    v_xor_b32 v4, 1, v4
    v_lshlrev_b32 v4, 14, v4
    v_lshl_add_u32 v4, v2, 4, v4
    v_lshrrev_b32 v5, 1, v3
    v_lshl_add_u32 v4, v5, 8, v4
    s_lshl_b32 s76, s74, 9
    v_add_u32 v{vOS}, s76, v4
    s_add_u32 s3, s3, s75
    v_xor_b32 v{zUA}, s3, v1
    s_lshl_b32 s{sUS}, s{sB}, 2
    s_add_u32 s{sUS}, s{sUS}, s{sW}
    s_lshl_b32 s{sUD}, s{sHG}, 6
    s_add_u32 s{sUD}, s{sUD}, s{sUS}
    s_lshl_b32 s{sUS}, s{sUS}, 13
    s_lshl_b32 s{sFO2}, s{sUD}, 3
    s_add_u32 s{sFO2}, s{sFO2}, {FL2}
    s_lshl_b32 s{sUD}, s{sUD}, 10
    s_lshr_b32 s3, s{sC}, 4
    s_lshr_b32 s75, s{sW}, 1
    s_cmp_eq_u32 s3, s75
    s_cselect_b32 s{sUD}, s{sUD}, 0x7f000000
    s_cselect_b32 s{sFO2}, s{sFO2}, 0x7f000000
    s_lshl_b32 s{sF2}, s74, 13
    s_add_u32 s{sF}, s{sR}, s{sF2}
    s_mov_b32 s{sBUD}, 0x20000
    s_mov_b32 s{sSCALE}, {fbits(0.25 * 1.4426950408889634)}
    s_lshl_b32 s74, s{sHG}, 2
    s_add_u32 s74, s74, s{sW}
    s_lshl_b32 s75, s74, 10
    s_add_u32 s{sKVO}, s{sR}, s75
    s_add_u32 s{sKVO}, s{sKVO}, {O_KV}
    s_cmp_eq_u32 s{sB}, 0
    s_cselect_b32 s{sHBIAS}, 0xff800000, 0
    s_cselect_b32 s3, 0, {CS}
    s_sub_u32 s{sKVI}, s{sKVO}, s3
    s_lshr_b32 s3, s74, 1
    s_lshl_b32 s3, s3, 10
    s_add_u32 s{sOP}, s{sR}, s3
    s_cmp_eq_u32 s{sW}, 3
    s_cselect_b32 s{sWL2}, 0x10000, s{sWL}
    s_lshl_b32 s{sWOT}, s{sHG}, 16
    s_add_u32 s{sWOT}, s{sWOT}, s{sWL}
    s_lshl_b32 s3, s{sW}, 15
    s_add_u32 s3, s3, s{sXBASE}
    s_lshl_b32 s74, s{sHG}, 7
    s_add_u32 s3, s3, s74
    v_lshlrev_b32 v1, 11, v2
    v_lshlrev_b32 v4, 4, v3
    v_add3_u32 v{vXO}, v1, v4, s3
    v_and_b32 v1, 31, v0
    v_lshrrev_b32 v4, 5, v0
    v_lshlrev_b32 v1, 6, v1
    v_lshl_add_u32 v{vSL}, v4, 5, v1
    """
    c = stream(t); c[-1].mark = "C3"
    t = f"""
    v_lshlrev_b32 v1, 2, v3
    v_sub_u32 v1, v2, v1
    v_mov_b32 v5, 0xff800000
    v_mov_b32 v{vONES}, 0x3f803f80
    v_mov_b32 v{vONES+1}, 0x3f803f80
    """
    for r in range(4):
        t += f"""
        v_cmp_le_i32 {sr(sM+2*r,2)}, {r}, v1
        v_subrev_u32 v4, {r}, v1
        v_cmp_gt_u32 s[74:75], 8, v4
        v_cmp_gt_i32 s[76:77], -8, v4
        s_or_b64 s[74:75], s[76:77], s[74:75]
        v_cndmask_b32_e64 v{vBIAS+r}, v5, 0, s[74:75]
        """
    t += f"""
    v_mov_b32 v4, 0xffff
    v_mov_b32 v5, 0xffff0000
    v_cndmask_b32 v{vPM}, 0, v4, {sr(sM,2)}
    v_cndmask_b32 v1, 0, v5, {sr(sM+2,2)}
    v_or_b32 v{vPM}, v{vPM}, v1
    v_cndmask_b32 v{vPM+1}, 0, v4, {sr(sM+4,2)}
    v_cndmask_b32 v1, 0, v5, {sr(sM+6,2)}
    v_or_b32 v{vPM+1}, v{vPM+1}, v1
    ; layer-0 halo messages: tags and zero fill
    v_mov_b32 v74, s{sN1}
    v_mov_b32 v75, s{sN1}
    v_mov_b32 v76, s{sN1}
    v_mov_b32 v77, s{sN1}
    v_mov_b32 v80, 0
    v_mov_b32 v81, 0
    v_mov_b32 v82, s{sN1}
    v_mov_b32 v84, s{sN1}
    v_mov_b32 v86, 0
    v_mov_b32 v87, 0
    ; statistics exchange addresses
    v_lshlrev_b32 v{zST}, 3, v2
    s_lshl_b32 s3, s{sW}, 7
    v_add_u32 v{zST+1}, s3, v{zST}
    v_and_b32 v4, 0x18, v{zST}
    v_lshl_add_u32 v{zST+2}, v3, 5, v4
    v_mov_b32 v{vBV}, v{zWV}
    v_add_u32 v{vBT}, {L_WO[1]}, v{zTR}
    v_mov_b32 v2, v{zTR}
    """
    d = stream(t); d[-1].mark = "C4"
    return a + b0 + a2 + c + d
zST = 68

def reads0(i):
    s = []
    a = zTR + (1 if slot(i) >= 49152 else 0); base = slot(i) - (49152 if slot(i) >= 49152 else 0)
    xb = zXB[i & 1]
    for j in range(3):
        for e2 in range(2):
            s.append(I("ds_read_b64_tr_b16 %s, v%d offset:%d" % (wreg(0, 3 * i + j, e2), a, base + j * 1024 + e2 * 512), tag="r%d" % i))
    for t in range(4):
        s.append(I("ds_read_b128 %s, v%d offset:%d" % (vr(xb + 4 * t, 4), zA + (i & 3), t * 4096 + (i >> 2) * 16384), tag="r%d" % i))
    s.append(I("ds_read_b128 %s, v%d offset:%d" % (vr(xb + 16, 4), zAO + (i & 3), (i >> 2) * 16384), tag="r%d" % i))
    if i >= 2: s[6].after = ["M%d" % (i - 2)]
    return s
def mfmas0(i):
    xb = zXB[i & 1]; out = []
    def acc(a): return vr(a, 4) if i else "0"
    out += cs_mfma(0, i, zCS, zONE)
    for t in range(4):
        for j in range(3):
            w = wreg(0, 3 * i + j); x = vr(xb + 4 * t, 4); a = Z.acc(t) + 4 * j
            A, B = (w, x) if j < 2 else (x, w)
            out.append(I("%s %s, %s, %s, %s" % (MF32, vr(a, 4), A, B, acc(a))))
    x = vr(xb + 16, 4)
    out.append(I("%s %s, %s, %s, %s" % (MF32, vr(zG, 4), x, x, acc(zG))))
    out.append(I("%s %s, %s, %s, %s" % (MF32, vr(zR, 4), vr(zONE, 4), x, acc(zR))))
    out[0].need = ["R%d" % i]; out[-1].mark = "M%d" % i
    return [(m, []) for m in out]

def f1load(): return ["s_lshl_b32 s72, s%d, 7" % sC, "s_add_u32 s72, s72, %d" % FL1,
                      "buffer_load_dwordx2 %s, v%d, %s, s72 offen sc1" % (vr(zF1, 2), zST + 3, WS)]
def f2load(): return ["s_lshl_b32 s75, s%d, 10" % sHG, "s_add_u32 s75, s75, %d" % FL2,
                      "buffer_load_dwordx4 %s, v%d, %s, s75 offen sc1" % (vr(zF2, 4), vL16, WS)]
def lane0_store(sreg, **kw):
    return [I("s_mov_b64 exec, 1", glue=True, **kw),
            I("buffer_store_dwordx2 %s, v%d, %s, s%d offen sc1" % (vr(zFL, 2), vL16, WS, sreg), tag="fst", glue=True),
            I("s_mov_b64 exec, -1")]
def gemm0():
    q = vACC[0]; U = vSTG
    e.emit(W(("vm", "wc0")))
    e("s_barrier")
    stamp("x0")
    emit_all(reads0(0))
    emit_all(wchunk(4) + xslab(1))
    def groups(L):
        out = [[]]
        for x in L:
            out[-1].append(x)
            if x.kind in ("vmem", "ds") and not getattr(x, "glue", False): out.append([])
        tail = out.pop()
        if tail: out[-1] += tail
        return out
    ex = {i: [] for i in range(1, 18)}
    LA = OPT["la"]
    for c in range(5, 16):
        i = max(1, c - LA)
        ex[i] += wchunk(c)
        if c % 4 == 0: ex[i] += xslab(c // 4)
    ex[OPT["initat"]] = fill2k(sOI, O_OB[0], q, "") + fill2k(sXP, O_XB[1], q, "") + fillsb(O_SB[1], q, "") + ex[OPT["initat"]]
    ex[OPT["initat"] + LA] += lane0_store(sFO1)
    UA = OPT["uat"]
    ex[UA] = [I("s_mov_b32 m0, s%d" % sW1K), I("buffer_load_dwordx4 v%d, %s, s%d offen lds" % (zOV, sr(sU1, 4), sUS), tag="tdma")] + ex[UA]
    ex[UA + LA] += [I("ds_read_b64_tr_b16 %s, v%d offset:%d" % (vr(zF2 + 2 * e2, 2), zUA, e2 * 512), tag="ur") for e2 in range(2)]
    ex[OPT["tcat"]] += [I("buffer_load_dwordx4 %s, v%d, %s, 0 offen offset:%d" % (vr(vXOLD[k], 4), vXO, sr(sX, 4), 64 * k), tag="xin") for k in range(2)] \
        + touch2k(sOI, O_OB[0]) + touch2k(sXP, O_XB[1]) + touchsb(O_SB[1])
    for k, qq in enumerate((3, 2, 1, 0)):
        L = [I("s_lshl_b32 s72, s%d, 15" % sW), I("s_add_u32 s72, s72, %d" % (qq * 131072)), I("s_lshl_b32 s73, s%d, 12" % sW)]
        for j in range(4):
            L += [I("s_add_u32 m0, s73, %d" % (L_WO[0] + qq * 16384 + j * 1024)),
                  I("buffer_load_dwordx4 v%d, %s, s72 offen lds" % (zOV, sr(sWOA, 4)), tag="woa%d" % qq, lat=1)]
            if j < 3: L.append(I("s_add_u32 s72, s72, 8192"))
        ex[12 + k] += L
    ex[OPT["flat"]] += [I(x, tag="f1") for x in f1load()]
    ex[16] += [W(("lg", "ur")), I("buffer_store_dwordx4 %s, v%d, %s, s%d offen sc1" % (vr(zF2, 4), vL16, WS, sUD), tag="tst")] + fillkv(0x8000, q) \
        + [I("s_mov_b64 %s, %s" % (sr(sWA, 2), sr(sWBP, 2)))] + bchunk(0) + bchunk(1)
    for i in range(1, 17):
        e.emit(W(("lg", "r%d" % (i - 1))))
        G = []
        if i < 16:
            spec = ("vm", "xl%d" % (i // 4)) if i % 4 == 0 else ("vm", "wc%d" % i)
            G = groups([W(spec), I("s_barrier")] + reads0(i))
        X = groups(ex[i]) if ex[i] else []
        M = [m for m, _ in mfmas0(i - 1)]
        slots = len(M) - 1
        allg = G + X
        per = [[] for _ in M]
        k = 1; over = max(0, len(allg) - slots)
        gi = 0
        while gi < len(allg):
            per[min(k, len(M) - 1)] += allg[gi]; gi += 1
            if over and gi < len(allg): per[min(k, len(M) - 1)] += allg[gi]; gi += 1; over -= 1
            k += 1
        for m, p in zip(M, per):
            e.emit(m); emit_all(p)
        if OPT["g0st"] and i % 2 == 0 and i < 16: stamp("k%d" % i)
    stamp("gemm0")
    emit_all(sel4_masks() + sel4(zG, zG))
    fin = [I(x) for x in finalize(zR, zG, zG + 1, zR + 2, zR + 3)]
    chk = ["v_xor_b32 v%d, v%d, v%d" % (T[4], zF1, zFL), "v_xor_b32 v%d, v%d, v%d" % (T[3], zF1 + 1, zFL + 1),
           "v_lshrrev_b32 v%d, 8, v%d" % (T[5], T[3]), "v_or_b32 v%d, v%d, v%d" % (T[4], T[4], T[5]), "v_cmp_ne_u32 vcc, 0, v%d" % T[4]]
    flush(e, [fin, cs_compact(0, zCS)])
    e(f"""
    s_mov_b32 exec_lo, 0x00f0000f
    s_mov_b32 exec_hi, 0xf0000f00
    ds_write_b64 v{zST+1}, {vr(zR+2,2)} offset:{L_ST0}
    s_mov_b64 exec, -1
    """)
    emit_all(checked(f1load(), W(("vm", "f1")), None, None, chk=chk))
    e(f"""
    v_and_b32 v{T[3]}, 15, v{T[3]}
    v_cmp_ne_u32 vcc, 0, v{T[3]}
    s_waitcnt lgkmcnt(0)
    """)
    e("s_barrier", mark="G0E")
    for t in (3, 2, 1, 0):
        e("ds_read_b64 %s, v%d offset:%d" % (vr(Z.rs(t), 2), zST, L_ST0 + t * 128), tag="st%d" % t)
        e("ds_read_b64 %s, v%d offset:%d" % (vr(Z.rs2(t), 2), zST + 2, L_ST0 + t * 128), tag="st%d" % t)
    if OPT["force"] == "slow": e("s_branch L_slow")
    elif OPT["force"] != "fast": e("s_cbranch_vccnz L_slow")
    e.vcc_pending = False

def layer0_rest():
    stamp("flags")
    if OPT["stamps"]: e("s_mov_b32 s52, 0")
    q = vACC[0]
    M = Z
    def at(t): return attn(M, 0, t, M.acc(t), 254 - 2 * t, ["V%d" % t] + (["K%d" % (t - 1)] if t else []), [], ["V%d" % (t - 1)] if t else [])
    def ep(t): return [W(("lg", "st%d" % t))] + epi(M, 0, t)
    KM, VM = "0xff00ff00", None
    def masked(op, kq, vq, sbase):
        return ["s_add_u32 s73, s%d, 0x20000" % sbase, "s_mov_b32 exec_lo, 0xff00ff00", "s_mov_b32 exec_hi, 0xff00ff00",
                "buffer_%s_dwordx4 %s, v%d, %s, s%d offen sc1" % (op, vr(kq, 4), vL16, WS, sbase),
                "s_mov_b32 exec_lo, 0", "s_mov_b32 exec_hi, -1",
                "buffer_%s_dwordx4 %s, v%d, %s, s73 offen sc1" % (op, vr(vq, 4), vL16, WS),
                "s_mov_b32 exec_lo, -1"]
    def glued(L, tag, **kw):
        out = [I(x, tag=tag, glue=True, lat=kw.get("lat")) for x in L]; out[-1].glue = False
        return out
    kv = [I("v_mov_b32 v78, v%d" % M.v(3)), I("v_mov_b32 v79, v%d" % (M.v(3) + 1))] + [W(("vm", "kvinit"))] + glued(masked("store", 72, 76, sKVO), "kvst", lat=1)
    kv[-1].mark = "KVP"
    hl = masked("load", 80, 84, sKVI)
    hchk = ["v_xor_b32 v%d, v82, v74" % T[4], "v_xor_b32 v%d, v84, v74" % T[3], "v_or_b32 v%d, v%d, v%d" % (T[4], T[4], T[3]), "v_cmp_ne_u32 vcc, 0, v%d" % T[4]]
    hs = glued(hl, "halo", lat=600); hs[0].delay = ("KVP", OPT["h0d"])
    hs += checked(hl, W(("vm", "halo")), None, None, chk=hchk, mark="H")
    bg = []
    for i in range(2, 7): bg += bchunk(i, OPT["pace"])
    tp = []
    for k, qq in enumerate((3, 2, 1, 0)):
        R = 24 + 16 * (k & 1)
        tp.append(W(("vm", "woa%d" % qq)))
        for u in range(4):
            for e2 in range(2):
                tp.append(I("ds_read_b64_tr_b16 %s, v%d offset:%d" % (vr(R + 4 * u + 2 * e2, 2), zTA + (u >> 1), qq * 16384 + e2 * 512 + (u & 1) * 8), tag="tr%d" % qq, gapmin=OPT["trg"]))
        tp.append(W(("lg", "tr%d" % qq)))
        for u in range(4):
            tp.append(I("ds_write_b128 v%d, %s offset:%d" % (zTA + 2, vr(R + 4 * u, 4), qq * 16384 + u * 1024), tag="trw", gapmin=OPT["twg"]))
    tp[0].after = ["KVP"]
    f2 = lane0_store(sFO2, after=["KVP"])
    sides = [bg, tp, ep(3) + kv + fill2k(sOI, O_OB[1], q, ST) + ep(2), f2, at(3), ep(1), at(2), ep(0), at(1), hs, at(0)]
    flush(e, sides, until="A0")
    flush(e, sides[2:])
    stamp("E")
    for x in bg + tp: x.gapmin = 1
    flush(e, [bg, tp])
    e.emit(W(("lg", "trw")))
    for j in range(3): emit_oloads(0, j)
    e.emit(W(("vm", "bc6")))
    e("s_barrier")
    stamp("wotr")
    for i in range(7): emit_all(breads(i, low=2))
    ex = []
    for i in range(7, 12): ex += bchunk(i, 30)
    return p2(0, None, extra=ex)

def bench():
    e("s_waitcnt vmcnt(0) lgkmcnt(0)")
    for r in list(range(24, 128)): e("v_mov_b32 v%d, 0" % r)
    e("s_mov_b32 s3, 0")
    e("L_bl:")
    e("s_cmp_eq_u32 s3, 1")
    e("s_cbranch_scc0 L_bn")
    e("s_memtime s[90:91]")
    e("s_waitcnt lgkmcnt(0)")
    e("L_bn:")
    t0 = e.t; n0 = len(e.out)
    tail(2, 'hi', *p1(2))
    print("model cycles", e.t - t0, file=sys.stderr)
    bd = OPT["bdrop"].split(",")
    new = []
    for i in e.out[n0:]:
        rep = None
        if "bar" in bd and i.kind == "barrier": rep = "s_nop 0"
        if "dsw" in bd and i.mn.startswith("ds_write"): rep = "ds_read_b32 v96, v6"
        if "vmw" in bd and i.kind == "wait" and "vmcnt" in i.text: rep = "s_nop 0"
        if "valu" in bd and i.is_valu and "vcc" not in i.writes: rep = ""
        if "valu4" in bd and i.is_valu and "vcc" not in i.writes: rep = "v_mov_b32 v96, v97"
        if "ld" in bd and i.kind == "vmem" and "load" in i.mn: rep = "s_nop 0"
        if "st" in bd and i.kind == "vmem" and "store" in i.mn: rep = "s_nop 0"
        if "br" in bd and i.mn == "s_cbranch_vccnz": rep = "s_nop 0"
        if "lgw" in bd and i.kind == "wait" and "lgkmcnt" in i.text: rep = "s_nop 0"
        if rep is None: new.append(i)
        elif rep: new.append(Ins(rep))
    e.out[n0:] = new
    e("s_nop 7")
    e("s_add_u32 s3, s3, 1")
    e("s_cmp_lt_u32 s3, 21")
    e("s_cbranch_scc1 L_bl")
    e("s_waitcnt lgkmcnt(0)")
    e("s_memtime s[72:73]")
    e("s_waitcnt lgkmcnt(0) vmcnt(0)")
    e("s_sub_u32 s72, s72, s90")
    e("v_mov_b32 v0, s72")
    e("s_lshl_b32 s73, s2, 2")
    e("s_add_u32 s73, s73, s%d" % sW)
    e("s_lshl_b32 s73, s73, 2")
    e("s_mov_b64 exec, 1")
    e("buffer_store_dword v0, v%d, %s, s73 offen" % (vL16, sr(sOUT, 4)))

def rest():
    if OPT["bench"]:
        if ST != "sc1": bench()
        else: e("s_endpgm")
        return
    carry = layer0_rest()
    layer(1, carry); layer(2); layer(3)

prologue()
gemm0()
snap = (list(e.vm), list(e.lg), dict(e.marks), e.t, e.t_valu, e.t_mfma, dict(e.t_mem))
ST = STF
rest()
fast_ool = list(ool); ool.clear()
e("L_end:")
e("s_endpgm")
fast_text = e.text(OPT["times"]); nfast = len(e.out); tfast = e.t
e.out = []
e.vm, e.lg, e.marks, e.t, e.t_valu, e.t_mfma, e.t_mem = snap
ST = "sc1"; LD = "sc1"
e("L_slow:")
q = vACC[0]
emit_all(fill2k(sOI, O_OB[0], q, ST) + fill2k(sXP, O_XB[1], q, ST) + fillsb(O_SB[1], q, ST))
e(f"""
v_or_b32 v{zFL+1}, 0x40, v{zFL+1}
s_waitcnt vmcnt(0)
s_barrier
""")
emit_all(lane0_store(sFO1))
e("L_slowpoll:")
for x in f1load(): e(x)
e(f"""
s_sub_u32 s{sBUD}, s{sBUD}, 1
s_cbranch_scc1 L_end
s_waitcnt vmcnt(0)
v_and_b32 v{T[4]}, 0x40, v{zF1+1}
v_cmp_eq_u32 vcc, 0, v{T[4]}
s_cbranch_vccnz L_slowpoll
""")
rest()

hdr = open("cdna_kernels/%s.s.ref" % NAME).read().split("; Override")[0]
out = hdr + "; Persistent fused kernel: 32 clusters of 8 workgroups x 64 same-parity rows; generated by a script.\n"
out += "; @launch grid=(256,1,1) block=(256,1,1) lds=%d\n" % LDS_BYTES
out += '.amdgcn_target "amdgcn-amd-amdhsa--gfx950"\n.text\n.globl %s\n.p2align 8\n.type %s,@function\n%s:\n' % (KN, KN, KN)
out += fast_text + "".join(fast_ool) + e.text() + "".join(ool)
out += """.section .rodata,"a"
.p2align 6
.amdhsa_kernel %s
  .amdhsa_next_free_vgpr 512
  .amdhsa_next_free_sgpr 102
  .amdhsa_accum_offset 256
  .amdhsa_group_segment_fixed_size 0
  .amdhsa_kernarg_size 72
  .amdhsa_user_sgpr_count 2
  .amdhsa_user_sgpr_kernarg_segment_ptr 1
  .amdhsa_system_sgpr_workgroup_id_x 1
  .amdhsa_float_denorm_mode_32 3
.end_amdhsa_kernel
""" % KN
open(sys.argv[1], "w").write(out)
print("fast instrs", nfast, "model cycles", int(tfast), "nop states", e.nops, "stamps", len(stamp_names), " ".join(stamp_names), file=sys.stderr)
```

```python
import sys, struct, copy
from asmlib3 import *

NAME = "interleave_layers__sliding_local_dilated__sliding_local_dilated__prompt"
KN = NAME + "_kernel"
OPT = dict(stamps=False, force="", rot=2, bench="", hgo=0, only="", g0st=0, bdrop="", drop="", times=False, w64=0, pace=90, g0gap=40, g0tol=4, initat=3, uat=6, tcat=9, flat=13, la=4, h3b=1, tfirst=1, wsoff=0, c0=60, blat=700, trg=24, twg=60, h0d=500, wbx=11, x1d=560, wgap=64, wgap2=40, lgap=64, lgap2=30, bks=12, bks3=12, cut=30, lox=50, vdef=8, hd=550, pgap=30, pfd=420, p2tol=1, tol="1/1/1/1/1", s0d=120)
for a in sys.argv[2:]:
    k, v = a.split("=", 1)
    OPT[k] = {"True": True, "False": False}.get(v, int(v) if v.lstrip("-").isdigit() else v)
LD = OPT.get("ld", "sc1").replace("+", " ")
STF = OPT.get("stf", "").replace("+", " ")
ST = ""

WOT_OFF = 0; FL1 = 0x80000; FL2 = 0x82000; EPOCH = 0x84000; HB = 0x88000
O_XB = [0, 0x10000]; O_OB = [0x20000, 0x30000]; O_KV = 0x40000; O_SB = [0x68000, 0x69000]; CS = 0x6a000
WS_SIZE = HB + 32 * CS
STAMP_OFF = 0x2000000
L_X = 0; L_WO = [32768, 98304]; LDS_BYTES = 163840; L_ST0 = 24576
def slot(i): return (7 - ((i + 5) % 7)) * 12288
T = [0, 1, 2, 3, 4, 5]
vL16, vSW, vOS, vSL, vSS, vXO, vID = 6, 7, 8, 9, 10, 11, 14
vL16b = 5; vDUM = 96
vCS = [(12, 13, 120), (121, 122, 123)]
vBIAS = 16; vPM = 20; vONES = 22
vSTG = 24; vRING = 40; vACC = [56, 68]
vH = 98
vXOLD = [100, 124]
vOBUF = [24, 40, 56, 24]; vWR = 72; vPACC = 104
class RM: pass
N = RM()
N.acc = lambda t: vACC[t & 1]
N.q = lambda t: 80 + 2 * (t & 1); N.k = lambda t: 88 if t < 0 else 84 + 2 * (t & 1)
N.v = lambda t: 92 + 2 * (t & 1); N.c = lambda t: 96 + (t & 1)
N.kh = 88
N.rs = lambda t: 104 + 4 * (t & 1); N.nm = lambda t: 105 + 4 * (t & 1); N.rs2 = lambda t: 106 + 4 * (t & 1); N.nm2 = lambda t: 107 + 4 * (t & 1)
N.va = lambda t: (92, True) if t == 2 else ((90, False) if t == 0 else (92, False))
Z = RM()
Z.acc = lambda t: 128 + 12 * t
Z.q = lambda t: 216 + 2 * t; Z.k = lambda t: 80 if t < 0 else (72 if t == 3 else 224 + 2 * t)
Z.v = lambda t: 88 + 2 * t; Z.c = lambda t: 244 + t
Z.rs = lambda t: 176 + 4 * t; Z.nm = lambda t: 177 + 4 * t; Z.rs2 = lambda t: 178 + 4 * t; Z.nm2 = lambda t: 179 + 4 * t
Z.va = lambda t: (86 + 2 * t, False)
zXB = [176, 196]; zCS = 216; zG = 228; zR = 232; zONE = 236; zA = 240; zAO = 244; zTR = 248; zXV = 250; zUV = 251; zUA = 252; zOV = 253; zWV = 254
zTA = 97
vBV, vBT = 0, 1
zFL = 60; zF1 = 62; zF2 = 64
sWS, sOUT, sX, sWA, sM = 8, 12, 16, 20, 28
sW, sHG, sC, sB, sROT, sBUD, sHBIAS, sSCALE = 36, 37, 38, 39, 40, 41, 42, 43
sU1, sWOA, sWBP = 44, 24, 50
sXBASE, sUS, sUD, sW3K, sW1K, sN1, sN2, sFO1, sFO2 = 52, 53, 56, 59, 4, 5, 6, 7, 93
sR, sKVI, sKVO, sXP, sOI, sOP, sOL, sF, sF2, sWB, sWOT, sWL = range(60, 72)
sWL2 = 69
sTMP = list(range(78, 90)) + list(range(94, 102))
_st = [0]
def stmp():
    _st[0] = (_st[0] + 1) % len(sTMP)
    return sTMP[_st[0]]

def vr(b, n): return "v[%d:%d]" % (b, b + n - 1)
def sr(b, n): return "s[%d:%d]" % (b, b + n - 1)
WS = sr(sWS, 4)
def wreg(typ, f, half=None):
    if typ == 0: p, b = "a", 4 * f
    elif f < 16: p, b = "a", 192 + 4 * f
    else: p, b = "v", 128 + 4 * (f - 16)
    if half is None: return "%s[%d:%d]" % (p, b, b + 3)
    return "%s[%d:%d]" % (p, b + 2 * half, b + 2 * half + 1)
def fbits(x): return "0x%08x" % struct.unpack("<I", struct.pack("<f", x))[0]
MF32 = "v_mfma_f32_16x16x32_bf16"; MF16 = "v_mfma_f32_16x16x16_bf16"

e = Emitter()
_drop = [d for d in OPT["drop"].split(",") if d]
e.drop = lambda ins: ins.kind == "vmem" and ins.tag in _drop
ool = []
_lab = [0]
def lab(p):
    _lab[0] += 1
    return "L_%s_%d" % (p, _lab[0])
def emit_all(L):
    for i in L: e.emit(i)

stamp_names = []
CURL = [0]
_echo = [0]
def stamp(name="", real=False):
    if OPT.get("echo"):
        nm, _, occ = OPT["echo"].partition(":")
        if name == nm and (not occ or int(occ) == CURL[0]):
            e("s_memrealtime s[0:1]")
            e("s_waitcnt lgkmcnt(0)")
        return
    if not OPT["stamps"]: return
    if OPT["only"] and name not in OPT["only"].split(","): return
    if ST != "sc1": stamp_names.append(name)
    if name == "cnt": e("s_mov_b32 s90, s52"); e("s_mov_b32 s52, 0")
    else: e("s_memrealtime s[90:91]" if real else "s_memtime s[90:91]")
    e("s_waitcnt lgkmcnt(0)")
    e("v_writelane_b32 v%d, s90, 0" % vSL)
    e("s_mov_b64 exec, 1")
    if OPT.get("dbgst"):
        e("v_mov_b32 v%d, s92" % vL16)
        e("global_store_dword v%d, v%d, s[0:1]" % (vL16, vSL), tag="stamp")
        e("v_mov_b32 v%d, 0" % vL16)
    else:
        e("buffer_store_dword v%d, v%d, %s, s92 offen" % (vSL, vL16, WS), tag="stamp")
    e("s_mov_b64 exec, -1")
    e("s_add_u32 s92, s92, 4")
    e("s_nop 1")
    e("v_writelane_b32 v%d, 0, 0" % vSL)
    e.vm.pop()

LREG = [24, 26, 52, 54, 56, 16, 18, 20, 22]
def lstamp(i):
    if OPT["stamps"] and OPT.get("light") and CURL[0] == 2: e("s_memtime s[%d:%d]" % (LREG[i], LREG[i] + 1))
def ldump(n):
    if not (OPT["stamps"] and OPT.get("light") and CURL[0] == 3): return
    e("s_waitcnt lgkmcnt(0)")
    for i in range(n):
        if ST != "sc1": stamp_names.append("l%d" % i)
        e("v_writelane_b32 v%d, s%d, 0" % (vSL, LREG[i]))
        e("s_mov_b64 exec, 1")
        e("buffer_store_dword v%d, v%d, %s, s92 offen" % (vSL, vL16, WS), tag="stamp")
        e("s_mov_b64 exec, -1")
        e("s_add_u32 s92, s92, 4")
        e("s_nop 1")
        e.vm.pop()
    e("v_writelane_b32 v%d, 0, 0" % vSL)

def maxchain(dst, regs):
    out = []; regs = list(regs)
    out.append("v_max3_u32 v%d, v%d, v%d, v%d" % (dst, regs[0], regs[1], regs[2])); regs = regs[3:]
    while len(regs) >= 2:
        out.append("v_max3_u32 v%d, v%d, v%d, v%d" % (dst, dst, regs[0], regs[1])); regs = regs[2:]
    if regs: out.append("v_max_u32 v%d, v%d, v%d" % (dst, dst, regs[0]))
    return out

def checked(loads, waitins, chk_regs, tmp, retry_wait=0, chk=None, **kw):
    lr, lb = lab("retry"), lab("back")
    if chk is None:
        if len(chk_regs) == 1: chk = []; src = chk_regs[0]
        else: chk = maxchain(tmp, chk_regs); src = tmp
        chk = chk + ["v_cmp_eq_u32 vcc, -1, v%d" % src]
    s = [waitins] + [I(c) for c in chk] + [I("s_cbranch_vccnz " + lr), I(lb + ":", **kw)]
    o = Emitter()
    o(lr + ":")
    for l in loads: o(l)
    if OPT["stamps"] and not OPT.get("light"):
        tg = waitins.waitspec[0][1]
        k = {"og0": 0, "og1": 1, "og2": 1, "og3": 1, "xs3_0": 2, "xs3_1": 6, "xs3_2": 6, "xs3_3": 6, "xs2": 3, "xs1": 3, "xs0": 3, "sl": 4, "halo": 5}.get(tg, 6)
        o("s_add_u32 s52, s52, %d" % (1 << (4 * k)) if k < 7 else "")
    o("s_sub_u32 s%d, s%d, 1" % (sBUD, sBUD))
    o("s_cbranch_scc1 L_end")
    o("s_waitcnt vmcnt(%d)" % retry_wait)
    for c in chk: o(c)
    o("s_cbranch_vccnz " + lr)
    o("s_branch " + lb)
    ool.append(o.text())
    return s

BC = "row_newbcast:%d row_mask:0xf bank_mask:0xf"
def epi_kq(M, typ, t, after=None):
    a = M.acc(t); q, k = a, a + 4; cq, ck, cv = vCS[typ]
    s = []
    for r in range(4): s.append(I("v_fmac_f32_dpp v%d, v%d, v%d %s" % (k + r, ck, M.nm(t), BC % r), after=after if r == 0 else None))
    for r in range(4): s.append(I("v_mul_f32 v%d, v%d, v%d" % (k + r, M.rs(t), k + r)))
    s.append(I("v_cvt_pk_bf16_f32 v%d, v%d, v%d" % (M.k(t), k, k + 1)))
    s.append(I("v_cvt_pk_bf16_f32 v%d, v%d, v%d" % (M.k(t) + 1, k + 2, k + 3), mark="K%d" % t))
    for r in range(4): s.append(I("v_fmac_f32_dpp v%d, v%d, v%d %s" % (q + r, cq, M.nm(t), BC % r)))
    s.append(I("v_cvt_pk_bf16_f32 v%d, v%d, v%d" % (M.q(t), q, q + 1)))
    s.append(I("v_cvt_pk_bf16_f32 v%d, v%d, v%d" % (M.q(t) + 1, q + 2, q + 3)))
    s.append(I("v_mul_f32 v%d, s%d, v%d" % (M.c(t), sSCALE, M.rs(t)), mark="Q%d" % t))
    return s
def epi_v(M, typ, t, after=None):
    v = M.acc(t) + 8; cv = vCS[typ][2]
    s = []
    for r in range(4): s.append(I("v_fmac_f32_dpp v%d, v%d, v%d %s" % (v + r, M.nm2(t), cv, BC % r), after=after if r == 0 else None))
    for r in range(4): s.append(I("v_mul_f32_dpp v%d, v%d, v%d %s" % (v + r, M.rs2(t), v + r, BC % r)))
    s.append(I("v_cvt_pk_bf16_f32 v%d, v%d, v%d" % (M.v(t), v, v + 1)))
    s.append(I("v_cvt_pk_bf16_f32 v%d, v%d, v%d" % (M.v(t) + 1, v + 2, v + 3), mark="V%d" % t))
    return s
def epi(M, typ, t, after=None): return epi_kq(M, typ, t, after) + epi_v(M, typ, t)

def sel4(dst, a):
    return [I("v_cndmask_b32 v%d, v%d, v%d, s[44:45]" % (dst, a, a + 1)), I("v_cndmask_b32 v%d, v%d, v%d, s[46:47]" % (dst, dst, a + 2)),
            I("v_cndmask_b32 v%d, v%d, v%d, s[48:49]" % (dst, dst, a + 3))]
def sel4_masks():
    return [I("s_mov_b32 s44, 0x22222222"), I("s_mov_b32 s45, s44"), I("s_lshl_b64 s[46:47], s[44:45], 1"), I("s_lshl_b64 s[48:49], s[44:45], 2")]
def cs_compact(typ, a):
    return sel4(vCS[typ][0], a) + sel4(vCS[typ][1], a + 4) + [I("v_mov_b32 v%d, v%d" % (vCS[typ][2], a + 8), mark="CS")]
def cs_mfma(typ, ks, a, ones):
    out = []
    for j in range(3):
        w = wreg(typ, 3 * ks + j); A, B = (w, vr(ones, 4)) if j < 2 else (vr(ones, 4), w)
        out.append(I("%s %s, %s, %s, %s" % (MF32, vr(a + 4 * j, 4), A, B, vr(a + 4 * j, 4) if ks else "0")))
    return out

def attn(M, l, t, a, ta, depS_p, depS_c, depV):
    sc, sp, lsum = a, a + 4, a + 8
    c = M.c(t); kprev = M.k(t - 1)
    s = []
    if t == 0:
        for r in range(4):
            s.append(I("v_add_f32 v%d, s%d, v%d" % (sp + r, sHBIAS, vBIAS + r), after=depS_p if r == 0 else None))
        s.append(I("%s %s, %s, %s, %s" % (MF16, vr(sc, 4), vr(M.k(t), 2), vr(M.q(t), 2), vr(vBIAS, 4)), after=depS_c))
        s.append(I("%s %s, %s, %s, %s" % (MF16, vr(sp, 4), vr(kprev, 2), vr(M.q(t), 2), vr(sp, 4)), after=["H"]))
    else:
        s.append(I("%s %s, %s, %s, %s" % (MF16, vr(sp, 4), vr(kprev, 2), vr(M.q(t), 2), vr(vBIAS, 4)), after=depS_p))
        s.append(I("%s %s, %s, %s, %s" % (MF16, vr(sc, 4), vr(M.k(t), 2), vr(M.q(t), 2), vr(vBIAS, 4)), after=depS_c))
    for r in range(4):
        s.append(I("v_cndmask_b32 v%d, v%d, v%d, %s" % (sc + r, sp + r, sc + r, sr(sM + 2 * r, 2))))
    s.append(I("v_max3_f32 v%d, v%d, v%d, v%d" % (sp, sc, sc + 1, sc + 2)))
    s.append(I("v_max_f32 v%d, v%d, v%d" % (sp + 1, sp, sc + 3)))
    s.append(I("v_max_f32 v%d, v%d, v%d" % (sp, sp, sc + 3)))
    s.append(I("v_permlane32_swap_b32 v%d, v%d" % (sp, sp + 1)))
    s.append(I("v_max_f32 v%d, v%d, v%d" % (sp + 2, sp, sp + 1)))
    s.append(I("v_max_f32 v%d, v%d, v%d" % (sp, sp, sp + 1)))
    s.append(I("v_permlane16_swap_b32 v%d, v%d" % (sp, sp + 2)))
    s.append(I("v_max_f32 v%d, v%d, v%d" % (sp, sp, sp + 2)))
    s.append(I("v_mul_f32 v%d, -v%d, v%d" % (sp, sp, c)))
    for r in range(4): s.append(I("v_fma_f32 v%d, v%d, v%d, v%d" % (sc + r, sc + r, c, sp)))
    s[-1].mark = "F%d" % t
    for r in range(4): s.append(I("v_exp_f32 v%d, v%d" % (sc + r, sc + r)))
    s.append(I("v_cvt_pk_bf16_f32 v%d, v%d, v%d" % (ta, sc, sc + 1)))
    s.append(I("v_cvt_pk_bf16_f32 v%d, v%d, v%d" % (ta + 1, sc + 2, sc + 3)))
    va, curfirst = M.va(t)
    pc, pp = (sp, sp + 2) if curfirst else (sp + 2, sp)
    s.append(I("v_and_b32 v%d, v%d, v%d" % (pc, ta, vPM)))
    s.append(I("v_and_b32 v%d, v%d, v%d" % (pc + 1, ta + 1, vPM + 1)))
    s.append(I("%s %s, %s, %s, 0" % (MF16, vr(sc, 4), vr(vONES, 2), vr(ta, 2))))
    s.append(I("v_xor_b32 v%d, v%d, v%d" % (pp, ta, pc)))
    s.append(I("v_xor_b32 v%d, v%d, v%d" % (pp + 1, ta + 1, pc + 1)))
    st = stmp()
    if t % 2 == 0: s.append(I("s_add_u32 s%d, s%d, %d" % (st, sOP, O_OB[l & 1] + t * 16384)))
    s.append(I("%s %s, %s, %s, 0" % (MF32, vr(lsum, 4), vr(va, 4), vr(sp, 4)), after=depV, mark="PV%d" % t))
    s.append(I("v_rcp_f32 v%d, v%d" % (sc, sc)))
    for r in range(4): s.append(I("v_mul_f32 v%d, v%d, v%d" % (lsum + r, sc, lsum + r)))
    s.append(I("v_cvt_pk_bf16_f32 v%d, v%d, v%d" % (ta + 1, lsum + 2, lsum + 3)))
    s.append(I("v_cvt_pk_bf16_f32 v%d, v%d, v%d" % (ta, lsum, lsum + 1)))
    if t % 2: s[-1].mark = "A%d" % t
    else:
        s.append(I("v_permlane16_swap_b32 v%d, v%d" % (ta - 1, ta + 1), after=["A%d" % (t + 1)]))
        s.append(I("v_permlane16_swap_b32 v%d, v%d" % (ta - 2, ta)))
        s.append(I("v_min_u32 v%d, -2, v%d" % (ta + 1, ta + 1)))
        s.append(I("buffer_store_dwordx4 %s, v%d, %s, s%d offen %s" % (vr(ta - 2, 4), vOS, WS, st, ST), tag="ost", mark="A%d" % t, gapmin=1))
    return s

def kvpub(M, l, q):
    st = stmp()
    return [I("v_mov_b32 v%d, v%d" % (q, M.k(3)), after=["V3"]), I("v_mov_b32 v%d, v%d" % (q + 1, M.k(3) + 1)),
            I("s_add_u32 s%d, s%d, %d" % (st, sKVO, l * 0x8000)),
            I("v_mov_b32 v%d, v%d" % (q + 2, M.v(3))), I("v_min_u32 v%d, -2, v%d" % (q + 3, M.v(3) + 1)),
            I("buffer_store_dwordx4 %s, v%d, %s, s%d offen sc1" % (vr(q, 4), vL16, WS, st), tag="kvst", mark="KVP", gapmin=1, lat=1000)]
def halo(M, l, delay, lat=900):
    st = 75
    hl = ["s_add_u32 s%d, s%d, %d" % (st, sKVI, l * 0x8000),
          "buffer_load_dwordx4 %s, v%d, %s, s%d offen sc1" % (vr(M.kh, 4), vL16, WS, st)]
    return [I(hl[0], delay=delay), I(hl[1], tag="halo", lat=lat)] + checked(hl, W(("vm", "halo")), [M.kh + 3], None, mark="H")

def stage_loads(l, t):
    st = 73
    loads = ["s_add_u32 s%d, s%d, %d" % (st, sR, O_XB[l & 1] + t * 16384)]
    loads += ["buffer_load_dwordx4 %s, v%d, %s, s%d offen offset:%d %s" % (vr(vSTG + 4 * j, 4), vSW, WS, st, j * 1024, LD) for j in range(4)]
    return loads
def stage_streams(l):
    loads = stage_loads(l, 2)
    ls = [I(loads[0])] + [I(loads[1 + j], tag="xs2", gapmin=OPT["lgap2"], mark="xl2" if j == 3 else None) for j in range(4)]
    ws_ = checked(loads, W(("vm", "xs2"), after=["xl2"]), [vSTG + 4 * j + 3 for j in range(4)], T[4])
    for j in range(4):
        ws_.append(I("ds_write_b128 v%d, %s offset:%d" % (vSW, vr(vSTG + 4 * j, 4), L_X + j * 1024), tag="xw2", gapmin=OPT["wgap2"], lat=60, mark="xw2_%d" % j))
    for t in (1, 0):
        ls += [I("s_add_u32 s73, s%d, %d" % (sR, O_XB[l & 1] + t * 16384), after=["B%d" % (t + 1)]), I("s_lshl_b32 s72, s%d, 12" % sW)]
        for j in range(4):
            if l == 1:
                ls.append(I("s_add_u32 m0, s72, %d" % (L_X + (t & 1) * 16384), glue=True, gapmin=OPT["lgap"])); ls[-1].kind2 = "vmem"
            elif j == 0: ls.append(I("s_add_u32 m0, s72, %d" % (L_X + (t & 1) * 16384)))
            ls.append(I("buffer_load_dwordx4 v%d, %s, s73 offen offset:%d %s lds" % (vSW, WS, j * 1024, LD), tag="xs%d" % t, mark="xl%d" % t if j == 3 else None, gapmin=OPT["lgap"]))
    if l < 3:
        ls += [I("s_lshl_b32 s73, s%d, 16" % sHG, after=["B0"]), I("s_add_u32 s73, s73, %d" % (WOT_OFF + 64512)),
               I("s_mov_b32 m0, %d" % (L_WO[1] + 64512)),
               I("buffer_load_dwordx4 v%d, %s, s73 offen sc1 lds" % (vL16, WS), tag="hole", lat=700, mark="HOLE")]
    return ls, ws_

def finalize(S, SS, t1, rstd, nmean):
    return [
        "v_mul_f32 v%d, %s, v%d" % (S, fbits(1.0 / 512), S),
        "v_mul_f32 v%d, %s, v%d" % (SS, fbits(1.0 / 512), SS),
        "v_fma_f32 v%d, -v%d, v%d, v%d" % (SS, S, S, SS),
        "v_max_f32 v%d, 0, v%d" % (SS, SS),
        "v_cvt_pk_bf16_f32 v%d, v%d, -v%d" % (S, SS, S),
        "v_lshlrev_b32 v%d, 16, v%d" % (t1, S),
        "v_add_f32 v%d, %s, v%d" % (t1, fbits(1e-5), t1),
        "v_cvt_pk_bf16_f32 v%d, v%d, v%d" % (t1, t1, t1),
        "v_lshlrev_b32 v%d, 16, v%d" % (t1, t1),
        "v_sqrt_f32 v%d, v%d" % (t1, t1),
        "v_and_b32 v%d, 0xffff0000, v%d" % (nmean, S),
        "v_cvt_pk_bf16_f32 v%d, v%d, v%d" % (t1, t1, t1),
        "v_lshlrev_b32 v%d, 16, v%d" % (t1, t1),
        "v_rcp_f32 v%d, v%d" % (rstd, t1)]

def scratch(l): return (L_WO[0] if l == 3 else L_WO[1]) + 65536 - 512
def stats(l):
    R = 80; sc = scratch(l)
    loads = ["s_add_u32 s74, s%d, %d" % (sR, O_SB[l & 1]), "s_add_u32 s74, s74, s%d" % sW1K,
             "buffer_load_dwordx4 %s, v%d, %s, s74 offen %s" % (vr(R, 4), vL16, WS, LD)]
    adr = [I(x) for x in [
        "v_bfe_u32 v%d, v%d, 4, 4" % (vH, vL16), "v_lshlrev_b32 v%d, 3, v%d" % (vH, vH), "v_and_b32 v%d, 0x18, v%d" % (vH + 1, vH),
        "v_add_u32 v%d, %d, v%d" % (vH, sc, vH),
        "v_lshrrev_b32 v%d, 8, v%d" % (R + 5, vL16), "v_lshl_add_u32 v%d, v%d, 5, v%d" % (vH + 1, R + 5, vH + 1), "v_add_u32 v%d, %d, v%d" % (vH + 1, sc, vH + 1),
        "s_lshl_b32 s75, s%d, 7" % sW, "s_add_u32 s75, s75, %d" % sc,
        "v_lshrrev_b32 v%d, 6, v%d" % (R + 5, vL16), "v_lshl_add_u32 v%d, v%d, 3, s75" % (R + 5, R + 5)]]
    s = adr + [I(loads[0]), I(loads[1]), I(loads[2], tag="sl", delay=("B3", OPT["s0d"]), gapmin=OPT["lgap2"], mark="sll")]
    chk = ["v_max_u32 v%d, v%d, v%d" % (T[5], R + 1, R + 3), "v_cmp_eq_u32 vcc, -1, v%d" % T[5]]
    s += checked(loads, W(("vm", "sl")), None, None, chk=chk)
    for o in (0, 1): s.append(I("v_add_f32 v%d, v%d, v%d" % (R + o, R + o, R + 2 + o)))
    for o in (0, 1): s.append(I("v_add_f32_dpp v%d, v%d, v%d quad_perm:[1,0,3,2] row_mask:0xf bank_mask:0xf" % (R + 2 + o, R + o, R + o)))
    for o in (0, 1): s.append(I("v_add_f32_dpp v%d, v%d, v%d quad_perm:[2,3,0,1] row_mask:0xf bank_mask:0xf" % (R + o, R + 2 + o, R + 2 + o)))
    s += [I(x) for x in finalize(R, R + 1, R + 4, R + 2, R + 3)]
    s.append(I("ds_write_b64 v%d, %s" % (R + 5, vr(R + 2, 2)), tag="sw", mark="SW", gapmin=1, lat=60))
    return s
def statreads(t, after=None):
    s = [I("ds_read_b64 %s, v%d offset:%d" % (vr(N.rs(t), 2), vH, t * 128), tag="st%d" % t, after=after, gapmin=1),
         I("ds_read_b64 %s, v%d offset:%d" % (vr(N.rs2(t), 2), vH + 1, t * 128), tag="st%d" % t, gapmin=1, mark="SR%d" % t)]
    return s

def pubstats_stream(l):
    R, G, O = 104, 108, 96
    out = [I("v_mov_b32 v%d, 0x3f803f80" % (O + i)) for i in range(4)]
    for k in range(2):
        x = vr(vXOLD[k], 4)
        out.append(I("%s %s, %s, %s, %s" % (MF32, vr(G, 4), x, x, vr(G, 4) if k else "0")))
    for k in range(2):
        out.append(I("%s %s, %s, %s, %s" % (MF32, vr(R, 4), vr(O, 4), vr(vXOLD[k], 4), vr(R, 4) if k else "0")))
    out[-1].mark = "PSM"
    st = stmp()
    out.append(I("s_add_u32 s%d, s%d, %d" % (st, sR, O_SB[l & 1])))
    out += sel4(G, G)
    out.append(I("v_min_u32 v%d, -2, v%d" % (R + 1, G)))
    out.append(I("buffer_store_dwordx2 %s, v%d, %s, s%d offen %s" % (vr(R, 2), vSS, WS, st, ST), tag="sst", mark="PS", gapmin=1))
    return out

def bslot(i):
    if i == 5: return 12288
    if i == 6: return 0
    return L_WO[1] + 12288 * (i if i < 5 else (i - 7) % 5)
def bchunk(i, gap=None):
    s = [I("s_add_u32 s76, s%d, %d" % (sROT, i)), I("s_and_b32 s76, s76, 15"), I("s_mul_i32 s76, s76, 98304"),
         I("s_add_u32 m0, s%d, %d" % (sW3K, bslot(i)))]
    s += [I("buffer_load_dwordx4 v%d, %s, s76 offen offset:%d lds" % (vBV, sr(sWA, 4), j * 1024), tag="bc%d" % i, lat=OPT["blat"], gapmin=gap) for j in range(3)]
    s[-1].mark = "BC%d" % i
    return s
def breads(i, low=None):
    a, base = (low, bslot(i)) if bslot(i) < L_WO[1] else (vBT, bslot(i) - L_WO[1])
    s = [I("ds_read_b64_tr_b16 %s, v%d offset:%d" % (wreg(1, 3 * i + j, e2), a, base + j * 1024 + e2 * 512), tag="br%d" % i, gapmin=8) for j in range(3) for e2 in range(2)]
    s[-1].mark = "BR%d" % i
    return s
def wobdma(q, gap):
    s = [I("s_add_u32 s76, s%d, %d" % (sWOT, q * 4096))]
    for j in range(4):
        if q == 3 and j == 3:
            s += [I("s_cmp_eq_u32 s%d, 3" % sW, glue=True), I("s_cselect_b32 m0, %d, m0" % 0x2f000, glue=True)] if False else []
        s += [I("s_add_u32 m0, s%d, %d" % (sWL if not (q == 3 and j == 3) else sWL2, L_WO[1] + q * 4096), glue=True, gapmin=gap),
              I("buffer_load_dwordx4 v%d, %s, s76 offen offset:%d sc1 lds" % (vL16, WS, j * 1024), tag="wo", lat=1)]
        s[-2].kind2 = "vmem"
    return s

def fill2k(sbase, add, q, flav, gap=None):
    st = stmp()
    s = [I("s_add_u32 s%d, s%d, %d" % (st, sbase, add & 0xffffffff))]
    s += [I("buffer_store_dwordx4 %s, v%d, %s, s%d offen offset:%d %s" % (vr(q, 4), vL16, WS, st, k * 1024, flav), tag="init", gapmin=gap) for k in range(2)]
    return s
def touch2k(sbase, add, gap=None, dst=vDUM):
    st = stmp()
    return [I("s_add_u32 s%d, s%d, %d" % (st, sbase, add & 0xffffffff)),
            I("buffer_load_dword v%d, v%d, %s, s%d offen sc1" % (dst, vSL, WS, st), tag="touch", gapmin=gap)]
def fillsb(add, q, flav, gap=None):
    st = stmp()
    return [I("s_add_u32 s%d, s%d, %d" % (st, sR, add & 0xffffffff)),
            I("buffer_store_dwordx2 %s, v%d, %s, s%d offen %s" % (vr(q, 2), vSS, WS, st, flav), tag="init", gapmin=gap)]
def touchsb(add, gap=None, dst=vDUM):
    st = stmp()
    return [I("s_add_u32 s%d, s%d, %d" % (st, sR, add & 0xffffffff)),
            I("buffer_load_dword v%d, v%d, %s, s%d offen sc1" % (dst, vSS, WS, st), tag="touch", gapmin=gap)]
def fillkv(add, q, gap=None):
    st = stmp()
    return [I("s_add_u32 s%d, s%d, %d" % (st, sKVO, add & 0xffffffff)),
            I("buffer_store_dwordx4 %s, v%d, %s, s%d offen sc1" % (vr(q, 4), vL16, WS, st), tag="kvinit", gapmin=gap)]
def ones_q(q): return [I("v_mov_b32 v%d, -1" % (q + i)) for i in range(4)]

def xread(reg, t, ks, tag):
    return I("ds_read_b128 %s, v%d offset:%d" % (vr(reg, 4), vL16, L_X + (t & 1) * 16384 + ks * 1024), tag=tag)

RING6 = [40, 44, 48, 52, 112, 116]
def p1_main(typ, jit):
    uses = [(t, ks) for t in (3, 2, 1, 0) for ks in range(16)]
    free = list(RING6); reg = {}
    nxt = 0; waited = -1
    def rd():
        nonlocal nxt
        reg[nxt] = free.pop(0)
        i = xread(reg[nxt], uses[nxt][0], uses[nxt][1], "f%d" % nxt); nxt += 1
        return i
    first = [rd() for _ in range(3)]
    opened = 3
    steps = [[], [], [], []]; late = []
    for n, (t, ks) in enumerate(uses):
        a = vACC[t & 1]; fr = vr(reg[n], 4)
        g_ = []
        for j in (1, 0, 2):
            w = wreg(typ, ks * 3 + j)
            A, B = (w, fr) if j < 2 else (fr, w)
            g_.append((I("%s %s, %s, %s, %s" % (MF32, vr(a + 4 * j, 4), A, B, vr(a + 4 * j, 4) if ks else "0")), []))
        if n == 48: free += [24, 28, 32]
        defer = n >= 64 - OPT["vdef"]
        if defer: late.append(g_.pop())
        if jit and t == 3: g_ += [(m, []) for m in cs_mfma(typ, ks, vACC[0], 88)]
        for k in range(2):
            if nxt < len(uses) and free and uses[nxt][0] >= opened: g_[k][1].append(rd())
        last = g_[-1][1]
        if t > 0 and ks == (OPT["bks3"] if t == 3 else OPT["bks"]):
            if t == 3:
                w_ = W(("lg", "f%d" % (n + 15 - ks)), ("lg", "xw2"), ("lg", "sw")); w_.need = ["xw2_3", "SW"]
            else:
                w_ = W(("lg", "f%d" % (n + 15 - ks)), ("vm", "xs%d" % (t - 1))); w_.need = ["xl%d" % (t - 1)]
                if t == 1: w_.waitspec.append(("lg", "st0")); w_.need.append("SR0")
            assert nxt > n + 15 - ks
            last += [w_, I("s_barrier", mark="B%d" % (t - 1))]
            waited = n + 15 - ks; opened = t - 1
        if n + 1 < len(uses):
            spec = []
            if waited < n + 1:
                waited = min(n + (2 if nxt - n > 5 else 1), nxt - 1)
                assert waited >= n + 1
                spec.append(("lg", "f%d" % waited))
            nd = []
            if jit and t == 3 and 7 <= ks + 1 < 16: spec.append(("lg", "br%d" % (ks + 1))); nd = ["BR%d" % (ks + 1)]
            if spec:
                w_ = W(*spec); w_.need = nd; last.append(w_)
        if not defer: free.append(reg[n])
        steps[n // 16] += g_
    kq = steps[3][-1][0] if late else steps[3][-2][0]
    steps[3] += late
    kq.mark = "KQ0"
    for k, t in enumerate((3, 2, 1, 0)):
        steps[k][0][0].mark = "S%d" % t; steps[k][-1][0].mark = "G%d" % t
    return first, steps

def oloads(l, j):
    st = stmp()
    L = ["s_add_u32 s%d, s%d, %d" % (st, sOL, O_OB[l & 1] + j * 4096)]
    L += ["buffer_load_dwordx4 %s, v%d, %s, s%d offen offset:%d %s" % (vr(vOBUF[j] + 4 * i, 4), vL16, WS, st, i * 1024, LD) for i in range(4)]
    return L
def emit_oloads(l, j):
    for x in oloads(l, j): e(x, tag="og%d" % j)

def resid():
    return [I("%s %s, %s, %s, 0" % (MF16, vr(vPACC + 4 * u, 4), vr(vID, 2), vr(vXOLD[u >> 1] + 2 * (u & 1), 2))) for u in range(4)]

def s3loads(l):
    return ["s_add_u32 s73, s%d, %d" % (sR, O_XB[l & 1] + 3 * 16384)] + \
        ["buffer_load_dwordx4 %s, v%d, %s, s73 offen offset:%d %s" % (vr(40 + 4 * j, 4), vSW, WS, j * 1024, LD) for j in range(4)]
def s3finish(l):
    loads = s3loads(l)
    for p in range(2):
        chk = ["v_max_u32 v%d, v%d, v%d" % (T[4], 40 + 8 * p + 3, 40 + 8 * p + 7), "v_cmp_eq_u32 vcc, -1, v%d" % T[4]]
        emit_all(checked(loads if p == 0 else loads[3:5], W(("vm", "xs3_%d" % p)), None, None, chk=chk))
        if p == 0: lstamp(7)
        for j in (2 * p, 2 * p + 1):
            e("ds_write_b128 v%d, %s offset:%d" % (vSW, vr(40 + 4 * j, 4), L_X + 16384 + j * 1024), tag="xw3")

WRING = [80, 84, 96, 72, 76, 88, 92, 100]
def word(n): return I("ds_read_b128 %s, v%d offset:%d" % (vr(WRING[n % 8], 4), vL16b, n * 1024), tag="w%d" % n, gapmin=1)
def p2_early(l):
    rs = resid(); rs[0].after = ["V0"]
    w = [I("v_add_u32 v%d, %d, v%d" % (vL16b, L_WO[l & 1], vL16), after=["F0", "F1"])] + [word(n) for n in range(3)]
    return rs, w
def p2(l, cls, extra=None):
    def ocheck(j, js):
        regs = [vOBUF[j] + 4 * i + 3 for i in range(4)]
        re_ = [x for jj in js for x in oloads(l, jj)]
        return checked(re_, W(("vm", "og%d" % j)), regs, T[4], retry_wait=0 if cls else 4 * (len(js) - 1), mark="OK%d" % j)
    if cls is None:
        rs, w = p2_early(l)
        emit_all([w[0], rs[0], w[1], w[2], rs[1], w[3], rs[2], rs[3]])
    if cls == "lo":
        for n in range(3, 7): e.emit(word(n))
        e.emit(W(("vm", "ost")))
        emit_oloads(l, 0); emit_oloads(l, 1)
        lstamp(2)
    oc = ocheck(0, [0, 1, 2] if cls is None else [0])
    if cls == "lo": emit_all(oc)
    else:
        emit_all(oc[:-2])
        for n in range(3, 7): e.emit(word(n))
        emit_all(oc[-2:])
    lstamp(4)
    e.emit(W(("lg", "w0")))
    stamp("p2start")
    order = [(n // 4, n % 4) for n in range(56)] + [(14, 0), (14, 1), (15, 0), (15, 1), (14, 2), (14, 3), (15, 2), (15, 3)]
    main = []
    for n, (ks, u) in enumerate(order):
        j = n // 16
        m = I("%s %s, %s, %s, %s" % (MF32, vr(vPACC + 4 * u, 4), vr(WRING[n % 8], 4), vr(vOBUF[j] + 4 * (ks % 4), 4), vr(vPACC + 4 * u, 4)))
        att = []
        if n + 7 < 64:
            x = word(n + 7); k2, u2 = order[n + 7]
            x = I(x.text.rsplit("offset:", 1)[0] + "offset:%d" % ((4 * k2 + u2) * 1024), tag=x.tag)
            att.append(x)
        if n + 1 < 64 and n % 2 == 0: att.append(W(("lg", "w%d" % min(n + 2, 63))))
        if n % 16 == 0: m.need = ["OK%d" % j]
        if n % 16 == 15: m.mark = "PG%d" % j
        if n == 59: m.mark = "PH0"
        if extra and n == 13: att.append(I("s_barrier"))
        main.append((m, att))
    g2 = [I(x, tag="og2", gapmin=16, lat=420) for x in oloads(l, 2)] if cls else []
    g3 = [I(x, tag="og3", gapmin=16, lat=420) for x in oloads(l, 3)]
    for x in g2 + g3 + (extra or []): x.patience = 0
    g3[0].after = ["PG0"]; g3[-1].mark = "G3I"
    chain = g2 + ocheck(1, [1]) + g3 + ocheck(2, [2]) + ocheck(3, [3])
    extra = extra or []
    if extra: extra[0].after = ["G3I"]
    if cls == "lo" and l < 3:
        sl = [I(x, tag="xs3_%d" % max(0, (k - 1) // 2), gapmin=16) for k, x in enumerate(s3loads(l + 1))]
        for x in sl: x.patience = 0
        sl[0].after = ["PX"]; main[OPT["lox"]][0].mark = "PX"; sl[-1].mark = "XL3"; main[63][0].need = ["XL3"]
        chain += sl
    run(e, main, [chain, extra], drain=False, tol=OPT["p2tol"])
    assert not chain
    st = stmp()
    if l < 3: e("s_add_u32 s%d, s%d, %d" % (st, sXP, O_XB[(l + 1) & 1]))
    for k in range(2):
        for i in (3, 0, 1, 2):
            e("v_cvt_pk_bf16_f32 v%d, v%d, v%d" % (vXOLD[k] + i, vPACC + 8 * k + 2 * i, vPACC + 8 * k + 2 * i + 1))
        if l < 3:
            e("v_min_u32 v%d, -2, v%d" % (vXOLD[k] + 3, vXOLD[k] + 3))
            e("buffer_store_dwordx4 %s, v%d, %s, s%d offen offset:%d %s" % (vr(vXOLD[k], 4), vL16, WS, st, k * 1024, ST), tag="xst")
        else:
            e("buffer_store_dwordx4 %s, v%d, %s, 0 offen offset:%d" % (vr(vXOLD[k], 4), vXO, sr(sOUT, 4), 64 * k))
    stamp("xpub")
    lstamp(5)
    if l == 3: ldump(9)
    if l == 3:
        stamp("rt1", real=True)
        if OPT.get("echo"):
            lb = lab("spin")
            e(f"""
            s_memrealtime s[72:73]
            s_waitcnt lgkmcnt(0)
            s_sub_u32 s74, s0, s90
            s_min_u32 s74, s74, 10000
            {lb}:
            s_memrealtime s[76:77]
            s_waitcnt lgkmcnt(0)
            s_sub_u32 s75, s76, s72
            s_cmp_lt_u32 s75, s74
            s_cbranch_scc1 {lb}
            """)
        e(f"""
        s_or_b32 s72, s2, s{sW}
        s_cbranch_scc1 L_end
        v_mov_b32 v0, s{sN1}
        s_mov_b32 s72, {EPOCH}
        s_mov_b64 exec, 1
        buffer_store_dword v0, v{vL16}, {WS}, s72 offen sc1
        s_endpgm
        """)
        return
    if extra: flush(e, [extra])
    ps = pubstats_stream(l + 1)
    if cls == "lo":
        emit_all(ps[:8])
        s3finish(l + 1)
        emit_all(ps[8:-1])
        e("s_waitcnt vmcnt(0)")
        e.emit(ps[-1])
    else:
        emit_all(ps[:-1])
        e.emit(W(("vm", "xst")))
        for k, x in enumerate(s3loads(l + 1)): e(x, tag="xs3_%d" % max(0, (k - 1) // 2))
        e.emit(ps[-1])
        lstamp(6)
        s3finish(l + 1)
    e("s_waitcnt lgkmcnt(0)")
    lstamp(8)
    return extra

def p1(l, carry=None):
    typ = l & 1; a0, a1 = vACC
    e.marks = {}
    if l == 1: e.emit(W(("vm", "bc11")))
    e("s_barrier", mark="B3")
    stamp("B3")
    stamp("cnt")
    jit = l == 1
    first, steps = p1_main(typ, jit)
    emit_all(first)
    sld, stg = stage_streams(l)
    def ep(t, after): return [W(("lg", "st%d" % t), after=after)] + epi(N, typ, t)
    ch = stats(l) + statreads(3, ["B2"]) + statreads(2)
    if jit:
        c = cs_compact(1, a0); c[0].after = ["G3", "S2"]
        ch += c
    ch += ep(3, ["G3"]) + statreads(1) + kvpub(N, l, a1) + ep(2, ["G2"]) + statreads(0) + ep(1, ["G1", "A3"])
    [x for x in ch if x.tag == "kvst"][0].after = ["xl1"]
    if l < 3: ch.insert([i for i, x in enumerate(ch) if x.tag == "kvst"][0], W(("vm", "kvinit")))
    ch2 = epi_kq(N, typ, 0, after=["KQ0", "F2", "V1"])
    ch3 = epi_v(N, typ, 0, after=["G0", "PV2"])
    for x in ch3: x.lazy = True
    at = attn(N, l, 3, a0, T[0], ["K2"], ["Q2"], ["V2"]) + attn(N, l, 2, a1, T[2], ["K1"], ["Q1"], ["V1"])
    if l < 3: at.insert([i for i, x in enumerate(at) if x.tag == "ost"][0], W(("vm", "init")))
    at1 = attn(N, l, 1, a1, T[0], ["K0", "A2"], [], ["V0"])
    at0 = halo(N, l, ("S1", OPT["hd"])) + attn(N, l, 0, a0, T[2], ["K0"], ["Q0", "A2"], ["V0"])
    at0[0].after = ["xl0"]
    sides = [stg, sld, ch, at, ch2, at1, at0, ch3]
    emit_all(sld[:3] + ch[:5] + sld[3:4] + ch[5:13] + sld[4:5]); del sld[:5]; del ch[:13]
    e.t_mem["vmem"] = e.t
    if jit:
        for i in range(4): e("v_mov_b32 v%d, 0x3f803f80" % (88 + i))
        q = 92
        sv = breads(7) + breads(8) + [W(("lg", "br8")), I("s_barrier")] + bchunk(12, 16) + bchunk(13, 16) \
            + breads(9) + breads(10) + [W(("lg", "br10")), I("s_barrier")] + bchunk(14, 16) + bchunk(15, 16) + breads(11) \
            + [W(("vm", "bc13")), I("s_barrier")] + breads(12) + breads(13) + [W(("vm", "bc15")), I("s_barrier")] + breads(14) + breads(15) \
            + [W(("lg", "br15")), I("s_barrier", mark="BD")]
        for x in sv: x.patience = 0
        fl = ones_q(q) + fill2k(sXP, O_XB[0], q, ST) + fillsb(O_SB[0], q, ST) + fillkv(2 * 0x8000, q); fl[0].after = ["BC15"]
        f2 = ["s_lshl_b32 s77, s%d, 9" % sHG, "s_add_u32 s77, s77, %d" % FL2, "v_lshrrev_b32 v94, 1, v%d" % vL16,
              "buffer_load_dwordx2 v[92:93], v94, %s, s77 offen sc1" % WS]
        c2 = ["v_xor_b32 v94, s%d, v92" % sN1, "v_xor_b32 v95, s%d, v93" % sN2, "v_lshrrev_b32 v95, 8, v95", "v_or_b32 v94, v94, v95", "v_cmp_ne_u32 vcc, 0, v94"]
        fl[-1].mark = "S2"
        fl = [I(x, tag="f2", lat=600, after=["xl2"]) for x in f2] + checked(f2, W(("vm", "f2")), None, None, chk=c2) + fl
        tc = touch2k(sOI, O_OB[1], dst=vSTG) + touch2k(sXP, O_XB[0], dst=vSTG) + touchsb(O_SB[0], dst=vSTG); tc[0].after = ["B2"]
        wd = wobdma(0, 40) + wobdma(1, 40) + wobdma(2, 40) + wobdma(3, 40); wd[0].after = ["BD"]
        ex = fl + wd + tc
        ex[-1].mark = "WOB"
        sides.insert(2, sv)
        sides.append(ex)
        [x for x in sld if x.after == ["B1"]][0].after = ["B1", "WOB"]
        [x for x in sld if x.after == ["B2"]][0].after = ["B2", "BC15"]
    if l == 2:
        q = 0
        du = ones_q(q) + fillkv(3 * 0x8000, q) + fill2k(sXP, O_XB[1], q, ST) + fillsb(O_SB[1], q, ST)
        du[4].after = ["xl2", "sll"]; du[6].after = ["KVP"]; du[-1].mark = "DU"
        sides.append(du)
        [x for x in ch if x.waitspec and ("vm", "kvinit") in x.waitspec][0].after = ["DK"]; du[5].mark = "DK"
        at[0].after = at[0].after + ["DU"]
    if l < 3:
        ra = ones_q(36) + fill2k(sOI, O_OB[(l + 1) & 1], 36, ST)
        for x in ra: x.tag = "rearm" if x.tag else None
        ra[0].after = ["B2"]; ra[4].after = ["KVP"]; ra[-1].mark = "RA"
        sides.append(ra)
    e.emit(W(("lg", "f0")))
    steps[1][0][0].need = ["CS"] if jit else []
    steps[2][0][0].need = ["KVP"]
    steps[3][0][0].need = ["A3"]
    cut = OPT["cut"]
    steps[3][cut - 1][0].need = ["H"] + (["HOLE", "RA"] if l < 3 else [])
    for k, nm in enumerate(("s3", "s2", "s1", None)):
        run(e, steps[k] if k < 3 else steps[3][:cut], sides, drain=False, memgap=OPT["lgap"], tol=float(OPT["tol"].split("/")[k]))
        if nm: stamp(nm)
    assert not any(x.kind == "label" for s_ in sides for x in s_)
    return steps[3][cut:], sides

def tail(l, cls, mainB, sides):
    rs, w = p2_early(l)
    pf = []
    if cls == "hi":
        pf = [I(x, tag="og%d" % j, gapmin=OPT["pgap"]) for j in (0, 1) for x in oloads(l, j)]
        pf[0].delay = ("A2", OPT["pfd"]); pf[0].after = ["G0"]
    run(e, mainB, [pf] + sides, drain=False, memgap=OPT["lgap"], tol=float(OPT["tol"].split("/")[4]))
    for x in rs + w: x.lazy = True
    for x in pf: x.soft = True
    flush(e, [pf] + sides, until="Q0")
    flush(e, [pf] + sides + [rs, w], longest=True, first=pf)

def layer(l, carry=None):
    CURL[0] = l
    mainB, sides = p1(l, carry)
    lhi, ljoin = lab("hi"), lab("join")
    e("s_cmp_lt_u32 s%d, 2" % sW)
    e("s_cbranch_scc0 " + lhi)
    snap = (list(e.vm), list(e.lg), dict(e.marks), e.t, e.t_valu, e.t_mfma, dict(e.t_mem), e.vcc_pending)
    ctx = e.out[-30:]
    work = copy.deepcopy((mainB, sides))
    ns = len(stamp_names)
    main_out = e.out
    e.out = list(ctx)
    e(lhi + ":")
    tail(l, "hi", *work)
    stamp("E"); lstamp(0)
    p2(l, "hi")
    if l < 3: e("s_branch " + ljoin)
    o = Emitter(); o.out = e.out[len(ctx):]
    ool.append(o.text(OPT["times"]))
    del stamp_names[ns:]
    e.out = main_out
    e.vm, e.lg, e.marks, e.t, e.t_valu, e.t_mfma, e.t_mem, e.vcc_pending = snap
    tail(l, "lo", mainB, sides)
    stamp("E"); lstamp(0)
    p2(l, "lo")
    if l < 3:
        e(ljoin + ":")
        e.vm = []; e.lg = []

def wchunk(i, after=None):
    s = [I("s_add_u32 s72, s%d, %d" % (sROT, i), after=after), I("s_and_b32 s72, s72, 15"), I("s_mul_i32 s72, s72, 98304"),
         I("s_add_u32 m0, s%d, %d" % (sW3K, slot(i)))]
    s += [I("buffer_load_dwordx4 v%d, %s, s72 offen offset:%d lds" % (zWV, sr(sWA, 4), j * 1024), tag="wc%d" % i, lat=1) for j in range(3)]
    s[-1].mark = "WC%d" % i
    return s
def xslab(sl):
    s = [I("s_lshl_b32 s73, s%d, 6" % sROT), I("s_add_u32 s73, s73, %d" % (256 * sl)), I("s_and_b32 s73, s73, 1023"),
         I("s_add_u32 s73, s73, s%d" % sXBASE)]
    for t in range(4):
        s += [I("s_add_u32 m0, s%d, %d" % (sW1K, L_WO[1] + sl * 16384 + t * 4096)),
              I("buffer_load_dwordx4 v%d, %s, s73 offen lds" % (zXV, sr(sX, 4)), tag="xl%d" % sl, lat=1)]
        if t < 3: s.append(I("s_add_u32 s73, s73, 32768"))
    s[-1].mark = "XL%d" % sl
    return s
def stream(text):
    L = [x.strip() for x in text.strip().split("\n")]
    L = [I(x) for x in L if x and not x.startswith(";")]
    for a, b in zip(L, L[1:]):
        if b.mn.startswith("s_cselect"): a.glue = True
    return L

def prologue():
    rot = {0: "s_mov_b32 s%d, 0" % sROT,
           1: "s_lshl_b32 s%d, s3, 2" % sROT,
           2: "s_and_b32 s94, s2, 3\n s_lshl_b32 s%d, s94, 2" % sROT,
           3: "s_and_b32 s94, s3, 1\n s_lshl_b32 s94, s94, 1\n s_add_u32 s94, s94, s2\n s_and_b32 s94, s94, 3\n s_lshl_b32 s%d, s94, 2" % sROT,
           }[OPT["rot"]]
    if OPT.get("echo"): e("s_memrealtime s[90:91]")
    e(f"""
    s_load_dwordx4 s[76:79], s[0:1], 0
    s_load_dwordx2 s[82:83], s[0:1], 64
    s_load_dwordx2 s[80:81], s[0:1], 16
    s_load_dwordx4 s[84:87], s[0:1], 32
    s_load_dwordx2 s[88:89], s[0:1], 48
    s_cmp_ge_u32 s2, 256
    s_cbranch_scc1 L_end
    v_lshrrev_b32 v1, 6, v0
    v_and_b32 v0, 63, v0
    v_readfirstlane_b32 s{sW}, v1
    s_lshr_b32 s3, s2, 3
    s_getpc_b64 s[96:97]
    L_pc:
    s_mov_b32 s98, L_slow-L_pc
    s_mov_b32 s99, 0x00020000
    s_lshl_b32 s94, s3, 11
    s_cmp_eq_u32 s{sW}, 2
    s_cbranch_scc0 L_nocp
    """)
    e.begin_cond()
    e(f"""
    v_lshlrev_b32 v1, 5, v0
    buffer_load_dword v{vDUM}, v1, s[96:99], s94 offen
    """)
    e.end_cond()
    e(f"""
    L_nocp:
    s_add_u32 s{sHG}, s3, {OPT['hgo']}
    s_and_b32 s{sHG}, s{sHG}, 7
    s_lshr_b32 s3, s3, 3
    s_and_b32 s{sC}, s2, 7
    s_lshl_b32 s{sC}, s{sC}, 2
    s_add_u32 s{sC}, s{sC}, s3
    s_and_b32 s{sB}, s{sC}, 15
    {rot}
    v_and_b32 v2, 15, v0
    v_lshrrev_b32 v3, 4, v0
    v_lshlrev_b32 v{vL16}, 4, v0
    ; ---- x0 DMA voffset: i = 4w + g ; i*2048 + ((n ^ i) << 4)
    s_lshl_b32 s94, s{sW}, 2
    v_add_u32 v1, s94, v3
    v_xor_b32 v4, v1, v2
    v_lshlrev_b32 v4, 4, v4
    v_lshl_add_u32 v{zXV}, v1, 11, v4
    s_lshl_b32 s{sXBASE}, s{sB}, 7
    s_lshr_b32 s95, s{sC}, 4
    s_add_u32 s{sXBASE}, s{sXBASE}, s95
    s_lshl_b32 s{sXBASE}, s{sXBASE}, 10
    s_lshl_b32 s94, s{sW}, 3
    v_lshrrev_b32 v1, 3, v0
    v_add_u32 v{zUV}, s94, v1
    v_and_b32 v4, 1, v3
    v_lshlrev_b32 v4, 1, v4
    s_and_b32 s94, s{sW}, 1
    s_lshl_b32 s94, s94, 2
    v_or_b32 v4, s94, v4
    v_and_b32 v5, 7, v0
    v_xor_b32 v4, v4, v5
    v_lshlrev_b32 v4, 4, v4
    s_lshl_b32 s95, s{sHG}, 7
    v_mul_u32_u24 v{zWV}, 3072, v{zUV}
    v_add3_u32 v{zWV}, v{zWV}, v4, s95
    s_mul_i32 s{sW3K}, s{sW}, 3072
    s_lshl_b32 s{sW1K}, s{sW}, 10
    ; first touch (one dword per 128B line, distinct over the chip): w0 W_A, w1 W_B, w2 woA, w3 x rows 8hg..8hg+7
    s_lshl_b32 s94, s{sHG}, 14
    s_add_u32 s94, s94, s{sXBASE}
    s_mul_i32 s95, s2, 6144
    s_lshl_b32 s100, s2, 11
    s_movk_i32 s74, 96
    s_cmp_eq_u32 s{sW}, 2
    s_cselect_b32 s95, s100, s95
    s_cselect_b32 s74, 32, s74
    s_cmp_eq_u32 s{sW}, 3
    s_cselect_b32 s94, s94, s95
    s_cselect_b32 s74, 128, s74
    s_cselect_b32 s75, 1024, 0
    v_mul_u32_u24 v1, s75, v1
    v_mul_u32_u24 v4, s74, v0
    v_add_u32 v1, v1, v4
    s_mov_b32 s{sX+2}, 0x200000
    s_mov_b32 s{sX+3}, 0x00020000
    s_mov_b32 s{sWA+2}, 0x180000
    s_mov_b32 s{sWA+3}, 0x00020000
    s_mov_b32 s{sWS+2}, {0x2100000 if OPT['stamps'] else WS_SIZE}
    s_mov_b32 s{sWS+3}, 0x00020000
    s_mov_b32 s{sOUT+2}, 0x200000
    s_mov_b32 s{sOUT+3}, 0x00020000
    s_waitcnt lgkmcnt(0)
    s_mov_b64 {sr(sX,2)}, s[76:77]
    s_mov_b64 {sr(sWA,2)}, s[78:79]
    s_add_u32 s82, s82, {OPT["wsoff"]}
    s_addc_u32 s83, s83, 0
    s_mov_b64 {sr(sWS,2)}, s[82:83]
    s_cmp_eq_u32 s{sW}, 1
    s_cselect_b64 s[96:97], s[84:85], s[78:79]
    s_mov_b32 s98, 0x180000
    s_cmp_eq_u32 s{sW}, 2
    s_cselect_b64 s[96:97], s[80:81], s[96:97]
    s_cselect_b32 s98, 0x80000, s98
    s_cmp_eq_u32 s{sW}, 3
    s_cselect_b64 s[96:97], s[76:77], s[96:97]
    s_cselect_b32 s98, 0x200000, s98
    """)
    if OPT.get("echo"): stamp("start")
    if OPT["stamps"]:
        e(f"""
        s_lshl_b32 s92, s2, 2
        s_add_u32 s92, s92, s{sW}
        s_lshl_b32 s92, s92, 8
        s_add_u32 s92, s92, {STAMP_OFF}
        """)
        if OPT.get("dbgst"):
            e(f"""
            s_load_dwordx2 s[100:101], s[0:1], 56
            s_waitcnt lgkmcnt(0)
            s_lshl_b32 s95, s2, 2
            s_add_u32 s95, s95, s{sW}
            s_mov_b64 s[0:1], s[82:83]
            s_cmp_eq_u32 s95, {4 * OPT["dbgst"]}
            s_cselect_b64 s[0:1], s[100:101], s[0:1]
            s_cselect_b32 s92, 0, s92
            s_cmp_eq_u32 s95, {4 * OPT["dbgs2"]}
            s_cselect_b64 s[0:1], s[100:101], s[0:1]
            s_cselect_b32 s92, 32, s92
            """)
        stamp("rt0", real=True)
        stamp("start")
    t1 = "buffer_load_dword v%d, v1, s[96:99], s94 offen" % vDUM
    if OPT["tfirst"]: e(t1, tag="t1")
    emit_all(xslab(0) + wchunk(0))
    if not OPT["tfirst"]: e(t1, tag="t1")
    e(f"""
    ; second touch. Lines at 3 mod 8 stream slowly from beyond L2, so every CU pulls a share of that column group into
    s_lshr_b32 s94, s96, 7
    s_sub_u32 s94, 3, s94
    s_and_b32 s94, s94, 7
    s_lshl_b32 s94, s94, 7
    s_lshr_b32 s95, s2, 3
    s_cmp_eq_u32 s{sW}, 2
    s_cselect_b32 s74, 15, 47
    s_add_u32 s75, s74, 1
    s_mul_i32 s95, s95, s75
    s_lshl_b32 s95, s95, 10
    s_add_u32 s94, s94, s95
    s_cmp_eq_u32 s{sW}, 3
    s_cselect_b64 s[96:97], s[86:87], s[96:97]
    s_cselect_b32 s98, 0x80000, s98
    s_cselect_b32 s94, s100, s94
    s_cselect_b32 s74, 15, s74
    s_cselect_b32 s75, 7, 10
    s_cmp_eq_u32 s{sW}, {1 if not OPT["h3b"] else 9}
    s_cselect_b32 s98, 0, s98
    v_min_u32 v1, s74, v0
    v_lshlrev_b32 v1, s75, v1
    buffer_load_dword v{vDUM}, v1, s[96:99], s94 offen
    s_add_u32 s82, s82, {EPOCH}
    s_addc_u32 s83, s83, 0
    s_load_dword s{sN1}, s[82:83], 0
    """)
    emit_all(wchunk(1))
    e(f"""
    s_mov_b64 {sr(sOUT,2)}, s[88:89]
    s_mov_b64 {sr(sU1,2)}, s[86:87]
    s_mov_b32 s{sU1+2}, 0x80000
    s_mov_b32 s{sU1+3}, 0x00020000
    s_mov_b64 {sr(sWOA,2)}, s[80:81]
    s_mov_b32 s{sWOA+2}, 0x80000
    s_mov_b32 s{sWOA+3}, 0x00020000
    s_mov_b64 {sr(sWBP,2)}, s[84:85]
    v_lshlrev_b32 v1, 8, v2
    v_add_u32 v1, {L_WO[1]}, v1
    s_lshl_b32 s3, s{sW}, 12
    """)
    for m in range(4):
        e(f"""
        v_or_b32 v4, {4*m}, v3
        v_xor_b32 v4, v4, v2
        v_lshl_add_u32 v{zA+m}, v4, 4, v1
        v_add_u32 v{zAO+m}, s3, v{zA+m}
        v_mov_b32 v{zONE+m}, 0x3f803f80
        """)
    e(f"""
    v_bfe_u32 v1, v0, 2, 2
    v_lshrrev_b32 v4, 1, v1
    v_and_b32 v5, 1, v3
    v_lshl_or_b32 v4, v5, 1, v4
    v_xor_b32 v4, s{sW}, v4
    v_lshlrev_b32 v4, 5, v4
    v_and_b32 v5, 3, v0
    v_lshl_add_u32 v4, v5, 3, v4
    v_lshl_add_u32 v4, v1, 7, v4
    v_mul_u32_u24 v{zTR}, 3072, v3
    v_add_u32 v{zTR}, v4, v{zTR}
    v_add_u32 v{zTR+1}, 49152, v{zTR}
    """)
    e("s_waitcnt lgkmcnt(0)")
    C = consts()
    c0 = OPT["c0"]
    while C[c0 - 1].glue: c0 += 1
    emit_all(C[:c0]); emit_all(wchunk(2)); emit_all(C[c0:]); emit_all(wchunk(3))
    stamp("issued")

def consts():
    t = f"""
    s_mul_i32 s{sR}, s{sC}, {CS}
    s_add_u32 s{sR}, s{sR}, {HB}
    s_lshl_b32 s{sWL}, s{sW}, 14
    s_add_u32 s{sOL}, s{sR}, s{sWL}
    s_lshl_b32 s3, s{sHG}, 1
    s_sub_u32 s74, s3, s{sROT}
    s_and_b32 s74, s74, 15
    s_lshl_b32 s74, s74, 10
    s_add_u32 s{sXP}, s{sOL}, s74
    s_lshl_b32 s3, s3, 10
    s_add_u32 s{sOI}, s{sOL}, s3
    s_lshl_b32 s74, s{sHG}, 3
    s_add_u32 s3, s{sW1K}, s74
    v_lshlrev_b32 v1, 6, v2
    v_add_u32 v1, s3, v1
    v_mov_b32 v4, 0x7ffffff0
    s_mov_b32 s74, 0x00f0000f
    s_mov_b32 s75, 0xf0000f00
    v_cndmask_b32 v{vSS}, v4, v1, s[74:75]
    v_mov_b32 v{vACC[0]}, -1
    v_mov_b32 v{vACC[0]+1}, -1
    v_mov_b32 v{vACC[0]+2}, -1
    v_mov_b32 v{vACC[0]+3}, -1
    """
    a = stream(t); a[-1].mark = "C1"
    a2 = stream(f"""
    s_mul_i32 s{sN1}, s{sN1}, 0x9e3779b1
    s_add_u32 s{sN1}, s{sN1}, 0x7f4a7c15
    s_mul_i32 s{sN2}, s{sN1}, 0x85ebca6b
    s_and_b32 s{sN2}, s{sN2}, 0xffffff00
    s_getreg_b32 s3, hwreg(HW_REG_XCC_ID, 0, 4)
    s_or_b32 s{sN2}, s{sN2}, s3
    v_mov_b32 v{zFL}, s{sN1}
    v_mov_b32 v{zFL+1}, s{sN2}
    s_lshl_b32 s{sFO1}, s{sC}, 3
    s_add_u32 s{sFO1}, s{sFO1}, s{sHG}
    s_lshl_b32 s{sFO1}, s{sFO1}, 4
    s_add_u32 s{sFO1}, s{sFO1}, {FL1}
    s_cmp_eq_u32 s{sW}, 3
    s_cselect_b32 s{sFO1}, s{sFO1}, 0x7f000000
    v_and_b32 v{zST+3}, 0x70, v{vL16}
    """); a2[-1].mark = "CF"
    t = f"""
    v_mov_b32 v4, 0x3f80
    v_and_b32 v1, 1, v0
    v_lshlrev_b32 v1, 4, v1
    v_lshlrev_b32 v1, v1, v4
    s_and_b32 s76, s74, 0x33333333
    s_and_b32 s77, s75, 0x33333333
    v_cndmask_b32 v{vID}, 0, v1, s[76:77]
    s_xor_b64 s[76:77], s[76:77], s[74:75]
    v_cndmask_b32 v{vID+1}, 0, v1, s[76:77]
    """
    b0 = stream(t)
    t = f"""
    ; ---- wo DMA voffset: (lane>>3)*1024 + hg*128 + ((lane&7) ^ ((g&1)<<2))*16
    v_and_b32 v1, 1, v3
    v_lshlrev_b32 v1, 2, v1
    v_and_b32 v4, 7, v0
    v_xor_b32 v1, v1, v4
    v_lshlrev_b32 v1, 4, v1
    v_lshrrev_b32 v4, 3, v0
    v_lshlrev_b32 v4, 10, v4
    s_lshl_b32 s3, s{sHG}, 7
    v_add3_u32 v{zOV}, v4, v1, s3
    v_bfe_u32 v1, v0, 2, 2
    v_lshl_add_u32 v1, v3, 3, v1
    v_lshlrev_b32 v1, 7, v1
    v_and_b32 v4, 3, v0
    v_lshl_add_u32 v1, v4, 4, v1
    v_bfe_u32 v4, v0, 3, 1
    v_lshl_add_u32 v1, v4, 6, v1
    s_lshl_b32 s3, s{sW}, 12
    v_add_u32 v{vSW}, s3, v{vL16}
    s_add_u32 s3, s3, {L_WO[0]}
    v_add_u32 v{zTA}, s3, v1
    v_xor_b32 v{zTA+1}, 64, v{zTA}
    v_add_u32 v{zTA+2}, {L_WO[0]}, v{vSW}
    s_lshr_b32 s3, s{sW}, 1
    s_lshl_b32 s3, s3, 6
    s_and_b32 s74, s{sW}, 1
    s_lshl_b32 s75, s74, 3
    v_and_b32 v4, 1, v3
    v_xor_b32 v4, 1, v4
    v_lshlrev_b32 v4, 14, v4
    v_lshl_add_u32 v4, v2, 4, v4
    v_lshrrev_b32 v5, 1, v3
    v_lshl_add_u32 v4, v5, 8, v4
    s_lshl_b32 s76, s74, 9
    v_add_u32 v{vOS}, s76, v4
    s_add_u32 s3, s3, s75
    v_xor_b32 v{zUA}, s3, v1
    s_lshl_b32 s{sUS}, s{sB}, 2
    s_add_u32 s{sUS}, s{sUS}, s{sW}
    s_lshl_b32 s{sUD}, s{sHG}, 6
    s_add_u32 s{sUD}, s{sUD}, s{sUS}
    s_lshl_b32 s{sUS}, s{sUS}, 13
    s_lshl_b32 s{sFO2}, s{sUD}, 3
    s_add_u32 s{sFO2}, s{sFO2}, {FL2}
    s_lshl_b32 s{sUD}, s{sUD}, 10
    s_lshr_b32 s3, s{sC}, 4
    s_lshr_b32 s75, s{sW}, 1
    s_cmp_eq_u32 s3, s75
    s_cselect_b32 s{sUD}, s{sUD}, 0x7f000000
    s_cselect_b32 s{sFO2}, s{sFO2}, 0x7f000000
    s_lshl_b32 s{sF2}, s74, 13
    s_add_u32 s{sF}, s{sR}, s{sF2}
    s_mov_b32 s{sBUD}, 0x20000
    s_mov_b32 s{sSCALE}, {fbits(0.25 * 1.4426950408889634)}
    s_lshl_b32 s74, s{sHG}, 2
    s_add_u32 s74, s74, s{sW}
    s_lshl_b32 s75, s74, 10
    s_add_u32 s{sKVO}, s{sR}, s75
    s_add_u32 s{sKVO}, s{sKVO}, {O_KV}
    s_cmp_eq_u32 s{sB}, 0
    s_cselect_b32 s{sHBIAS}, 0xff800000, 0
    s_cselect_b32 s3, 0, {CS}
    s_sub_u32 s{sKVI}, s{sKVO}, s3
    s_lshr_b32 s3, s74, 1
    s_lshl_b32 s3, s3, 10
    s_add_u32 s{sOP}, s{sR}, s3
    s_cmp_eq_u32 s{sW}, 3
    s_cselect_b32 s{sWL2}, 0x10000, s{sWL}
    s_lshl_b32 s{sWOT}, s{sHG}, 16
    s_add_u32 s{sWOT}, s{sWOT}, s{sWL}
    s_lshl_b32 s3, s{sW}, 15
    s_add_u32 s3, s3, s{sXBASE}
    s_lshl_b32 s74, s{sHG}, 7
    s_add_u32 s3, s3, s74
    v_lshlrev_b32 v1, 11, v2
    v_lshlrev_b32 v4, 4, v3
    v_add3_u32 v{vXO}, v1, v4, s3
    v_and_b32 v1, 31, v0
    v_lshrrev_b32 v4, 5, v0
    v_lshlrev_b32 v1, 6, v1
    v_lshl_add_u32 v{vSL}, v4, 5, v1
    """
    c = stream(t); c[-1].mark = "C3"
    t = f"""
    v_lshlrev_b32 v1, 2, v3
    v_sub_u32 v1, v2, v1
    v_mov_b32 v5, 0xff800000
    v_mov_b32 v{vONES}, 0x3f803f80
    v_mov_b32 v{vONES+1}, 0x3f803f80
    """
    for r in range(4):
        t += f"""
        v_cmp_le_i32 {sr(sM+2*r,2)}, {r}, v1
        v_subrev_u32 v4, {r}, v1
        v_cmp_gt_u32 s[74:75], 8, v4
        v_cmp_gt_i32 s[76:77], -8, v4
        s_or_b64 s[74:75], s[76:77], s[74:75]
        v_cndmask_b32_e64 v{vBIAS+r}, v5, 0, s[74:75]
        """
    t += f"""
    v_mov_b32 v4, 0xffff
    v_mov_b32 v5, 0xffff0000
    v_cndmask_b32 v{vPM}, 0, v4, {sr(sM,2)}
    v_cndmask_b32 v1, 0, v5, {sr(sM+2,2)}
    v_or_b32 v{vPM}, v{vPM}, v1
    v_cndmask_b32 v{vPM+1}, 0, v4, {sr(sM+4,2)}
    v_cndmask_b32 v1, 0, v5, {sr(sM+6,2)}
    v_or_b32 v{vPM+1}, v{vPM+1}, v1
    ; layer-0 halo messages: tags and zero fill
    v_mov_b32 v74, s{sN1}
    v_mov_b32 v75, s{sN1}
    v_mov_b32 v76, s{sN1}
    v_mov_b32 v77, s{sN1}
    v_mov_b32 v80, 0
    v_mov_b32 v81, 0
    v_mov_b32 v82, s{sN1}
    v_mov_b32 v84, s{sN1}
    v_mov_b32 v86, 0
    v_mov_b32 v87, 0
    ; statistics exchange addresses
    v_lshlrev_b32 v{zST}, 3, v2
    s_lshl_b32 s3, s{sW}, 7
    v_add_u32 v{zST+1}, s3, v{zST}
    v_and_b32 v4, 0x18, v{zST}
    v_lshl_add_u32 v{zST+2}, v3, 5, v4
    v_mov_b32 v{vBV}, v{zWV}
    v_add_u32 v{vBT}, {L_WO[1]}, v{zTR}
    v_mov_b32 v2, v{zTR}
    """
    d = stream(t); d[-1].mark = "C4"
    return a + b0 + a2 + c + d
zST = 68

def reads0(i):
    s = []
    a = zTR + (1 if slot(i) >= 49152 else 0); base = slot(i) - (49152 if slot(i) >= 49152 else 0)
    xb = zXB[i & 1]
    for j in range(3):
        for e2 in range(2):
            s.append(I("ds_read_b64_tr_b16 %s, v%d offset:%d" % (wreg(0, 3 * i + j, e2), a, base + j * 1024 + e2 * 512), tag="r%d" % i))
    for t in range(4):
        s.append(I("ds_read_b128 %s, v%d offset:%d" % (vr(xb + 4 * t, 4), zA + (i & 3), t * 4096 + (i >> 2) * 16384), tag="r%d" % i))
    s.append(I("ds_read_b128 %s, v%d offset:%d" % (vr(xb + 16, 4), zAO + (i & 3), (i >> 2) * 16384), tag="r%d" % i))
    if i >= 2: s[6].after = ["M%d" % (i - 2)]
    return s
def mfmas0(i):
    xb = zXB[i & 1]; out = []
    def acc(a): return vr(a, 4) if i else "0"
    out += cs_mfma(0, i, zCS, zONE)
    for t in range(4):
        for j in range(3):
            w = wreg(0, 3 * i + j); x = vr(xb + 4 * t, 4); a = Z.acc(t) + 4 * j
            A, B = (w, x) if j < 2 else (x, w)
            out.append(I("%s %s, %s, %s, %s" % (MF32, vr(a, 4), A, B, acc(a))))
    x = vr(xb + 16, 4)
    out.append(I("%s %s, %s, %s, %s" % (MF32, vr(zG, 4), x, x, acc(zG))))
    out.append(I("%s %s, %s, %s, %s" % (MF32, vr(zR, 4), vr(zONE, 4), x, acc(zR))))
    out[0].need = ["R%d" % i]; out[-1].mark = "M%d" % i
    return [(m, []) for m in out]

def f1load(): return ["s_lshl_b32 s72, s%d, 7" % sC, "s_add_u32 s72, s72, %d" % FL1,
                      "buffer_load_dwordx2 %s, v%d, %s, s72 offen sc1" % (vr(zF1, 2), zST + 3, WS)]
def f2load(): return ["s_lshl_b32 s75, s%d, 10" % sHG, "s_add_u32 s75, s75, %d" % FL2,
                      "buffer_load_dwordx4 %s, v%d, %s, s75 offen sc1" % (vr(zF2, 4), vL16, WS)]
def lane0_store(sreg, **kw):
    return [I("s_mov_b64 exec, 1", glue=True, **kw),
            I("buffer_store_dwordx2 %s, v%d, %s, s%d offen sc1" % (vr(zFL, 2), vL16, WS, sreg), tag="fst", glue=True),
            I("s_mov_b64 exec, -1")]
def gemm0():
    q = vACC[0]; U = vSTG
    e.emit(W(("vm", "wc0")))
    e("s_barrier")
    stamp("x0")
    emit_all(reads0(0))
    emit_all(wchunk(4) + xslab(1))
    def groups(L):
        out = [[]]
        for x in L:
            out[-1].append(x)
            if x.kind in ("vmem", "ds") and not getattr(x, "glue", False): out.append([])
        tail = out.pop()
        if tail: out[-1] += tail
        return out
    ex = {i: [] for i in range(1, 18)}
    LA = OPT["la"]
    for c in range(5, 16):
        i = max(1, c - LA)
        ex[i] += wchunk(c)
        if c % 4 == 0: ex[i] += xslab(c // 4)
    ex[OPT["initat"]] = fill2k(sOI, O_OB[0], q, "") + fill2k(sXP, O_XB[1], q, "") + fillsb(O_SB[1], q, "") + ex[OPT["initat"]]
    ex[OPT["initat"] + LA] += lane0_store(sFO1)
    UA = OPT["uat"]
    ex[UA] = [I("s_mov_b32 m0, s%d" % sW1K), I("buffer_load_dwordx4 v%d, %s, s%d offen lds" % (zOV, sr(sU1, 4), sUS), tag="tdma")] + ex[UA]
    ex[UA + LA] += [I("ds_read_b64_tr_b16 %s, v%d offset:%d" % (vr(zF2 + 2 * e2, 2), zUA, e2 * 512), tag="ur") for e2 in range(2)]
    ex[OPT["tcat"]] += [I("buffer_load_dwordx4 %s, v%d, %s, 0 offen offset:%d" % (vr(vXOLD[k], 4), vXO, sr(sX, 4), 64 * k), tag="xin") for k in range(2)] \
        + touch2k(sOI, O_OB[0]) + touch2k(sXP, O_XB[1]) + touchsb(O_SB[1])
    for k, qq in enumerate((3, 2, 1, 0)):
        L = [I("s_lshl_b32 s72, s%d, 15" % sW), I("s_add_u32 s72, s72, %d" % (qq * 131072)), I("s_lshl_b32 s73, s%d, 12" % sW)]
        for j in range(4):
            L += [I("s_add_u32 m0, s73, %d" % (L_WO[0] + qq * 16384 + j * 1024)),
                  I("buffer_load_dwordx4 v%d, %s, s72 offen lds" % (zOV, sr(sWOA, 4)), tag="woa%d" % qq, lat=1)]
            if j < 3: L.append(I("s_add_u32 s72, s72, 8192"))
        ex[12 + k] += L
    ex[OPT["flat"]] += [I(x, tag="f1") for x in f1load()]
    ex[16] += [W(("lg", "ur")), I("buffer_store_dwordx4 %s, v%d, %s, s%d offen sc1" % (vr(zF2, 4), vL16, WS, sUD), tag="tst")] + fillkv(0x8000, q) \
        + [I("s_mov_b64 %s, %s" % (sr(sWA, 2), sr(sWBP, 2)))] + bchunk(0) + bchunk(1)
    for i in range(1, 17):
        e.emit(W(("lg", "r%d" % (i - 1))))
        G = []
        if i < 16:
            spec = ("vm", "xl%d" % (i // 4)) if i % 4 == 0 else ("vm", "wc%d" % i)
            G = groups([W(spec), I("s_barrier")] + reads0(i))
        X = groups(ex[i]) if ex[i] else []
        M = [m for m, _ in mfmas0(i - 1)]
        slots = len(M) - 1
        allg = G + X
        per = [[] for _ in M]
        k = 1; over = max(0, len(allg) - slots)
        gi = 0
        while gi < len(allg):
            per[min(k, len(M) - 1)] += allg[gi]; gi += 1
            if over and gi < len(allg): per[min(k, len(M) - 1)] += allg[gi]; gi += 1; over -= 1
            k += 1
        for m, p in zip(M, per):
            e.emit(m); emit_all(p)
        if OPT["g0st"] and i % 2 == 0 and i < 16: stamp("k%d" % i)
    stamp("gemm0")
    emit_all(sel4_masks() + sel4(zG, zG))
    fin = [I(x) for x in finalize(zR, zG, zG + 1, zR + 2, zR + 3)]
    chk = ["v_xor_b32 v%d, v%d, v%d" % (T[4], zF1, zFL), "v_xor_b32 v%d, v%d, v%d" % (T[3], zF1 + 1, zFL + 1),
           "v_lshrrev_b32 v%d, 8, v%d" % (T[5], T[3]), "v_or_b32 v%d, v%d, v%d" % (T[4], T[4], T[5]), "v_cmp_ne_u32 vcc, 0, v%d" % T[4]]
    flush(e, [fin, cs_compact(0, zCS)])
    e(f"""
    s_mov_b32 exec_lo, 0x00f0000f
    s_mov_b32 exec_hi, 0xf0000f00
    ds_write_b64 v{zST+1}, {vr(zR+2,2)} offset:{L_ST0}
    s_mov_b64 exec, -1
    """)
    emit_all(checked(f1load(), W(("vm", "f1")), None, None, chk=chk))
    e(f"""
    v_and_b32 v{T[3]}, 15, v{T[3]}
    v_cmp_ne_u32 vcc, 0, v{T[3]}
    s_waitcnt lgkmcnt(0)
    """)
    e("s_barrier", mark="G0E")
    for t in (3, 2, 1, 0):
        e("ds_read_b64 %s, v%d offset:%d" % (vr(Z.rs(t), 2), zST, L_ST0 + t * 128), tag="st%d" % t)
        e("ds_read_b64 %s, v%d offset:%d" % (vr(Z.rs2(t), 2), zST + 2, L_ST0 + t * 128), tag="st%d" % t)
    if OPT["force"] == "slow": e("s_branch L_slow")
    elif OPT["force"] != "fast": e("s_cbranch_vccnz L_slow")
    e.vcc_pending = False

def layer0_rest():
    CURL[0] = 0
    stamp("flags")
    if OPT["stamps"]: e("s_mov_b32 s52, 0")
    q = vACC[0]
    M = Z
    def at(t): return attn(M, 0, t, M.acc(t), 254 - 2 * t, ["V%d" % t] + (["K%d" % (t - 1)] if t else []), [], ["V%d" % (t - 1)] if t else [])
    def ep(t): return [W(("lg", "st%d" % t))] + epi(M, 0, t)
    KM, VM = "0xff00ff00", None
    def masked(op, kq, vq, sbase):
        return ["s_add_u32 s73, s%d, 0x20000" % sbase, "s_mov_b32 exec_lo, 0xff00ff00", "s_mov_b32 exec_hi, 0xff00ff00",
                "buffer_%s_dwordx4 %s, v%d, %s, s%d offen sc1" % (op, vr(kq, 4), vL16, WS, sbase),
                "s_mov_b32 exec_lo, 0", "s_mov_b32 exec_hi, -1",
                "buffer_%s_dwordx4 %s, v%d, %s, s73 offen sc1" % (op, vr(vq, 4), vL16, WS),
                "s_mov_b32 exec_lo, -1"]
    def glued(L, tag, **kw):
        out = [I(x, tag=tag, glue=True, lat=kw.get("lat")) for x in L]; out[-1].glue = False
        return out
    kv = [I("v_mov_b32 v78, v%d" % M.v(3)), I("v_mov_b32 v79, v%d" % (M.v(3) + 1))] + [W(("vm", "kvinit"))] + glued(masked("store", 72, 76, sKVO), "kvst", lat=1)
    kv[-1].mark = "KVP"
    hl = masked("load", 80, 84, sKVI)
    hchk = ["v_xor_b32 v%d, v82, v74" % T[4], "v_xor_b32 v%d, v84, v74" % T[3], "v_or_b32 v%d, v%d, v%d" % (T[4], T[4], T[3]), "v_cmp_ne_u32 vcc, 0, v%d" % T[4]]
    hs = glued(hl, "halo", lat=600); hs[0].delay = ("KVP", OPT["h0d"])
    hs += checked(hl, W(("vm", "halo")), None, None, chk=hchk, mark="H")
    bg = []
    for i in range(2, 7): bg += bchunk(i, OPT["pace"])
    tp = []
    for k, qq in enumerate((3, 2, 1, 0)):
        R = 24 + 16 * (k & 1)
        tp.append(W(("vm", "woa%d" % qq)))
        for u in range(4):
            for e2 in range(2):
                tp.append(I("ds_read_b64_tr_b16 %s, v%d offset:%d" % (vr(R + 4 * u + 2 * e2, 2), zTA + (u >> 1), qq * 16384 + e2 * 512 + (u & 1) * 8), tag="tr%d" % qq, gapmin=OPT["trg"]))
        tp.append(W(("lg", "tr%d" % qq)))
        for u in range(4):
            tp.append(I("ds_write_b128 v%d, %s offset:%d" % (zTA + 2, vr(R + 4 * u, 4), qq * 16384 + u * 1024), tag="trw", gapmin=OPT["twg"]))
    tp[0].after = ["KVP"]
    f2 = lane0_store(sFO2, after=["KVP"])
    sides = [bg, tp, ep(3) + kv + fill2k(sOI, O_OB[1], q, ST) + ep(2), f2, at(3), ep(1), at(2), ep(0), at(1), hs, at(0)]
    flush(e, sides, until="A0")
    flush(e, sides[2:])
    stamp("E")
    for x in bg + tp: x.gapmin = 1
    flush(e, [bg, tp])
    e.emit(W(("lg", "trw")))
    for j in range(3): emit_oloads(0, j)
    e.emit(W(("vm", "bc6")))
    e("s_barrier")
    stamp("wotr")
    for i in range(7): emit_all(breads(i, low=2))
    ex = []
    for i in range(7, 12): ex += bchunk(i, 30)
    return p2(0, None, extra=ex)

def bench():
    e("s_waitcnt vmcnt(0) lgkmcnt(0)")
    for r in list(range(24, 128)): e("v_mov_b32 v%d, 0" % r)
    e("s_mov_b32 s3, 0")
    e("L_bl:")
    e("s_cmp_eq_u32 s3, 1")
    e("s_cbranch_scc0 L_bn")
    e("s_memtime s[90:91]")
    e("s_waitcnt lgkmcnt(0)")
    e("L_bn:")
    t0 = e.t; n0 = len(e.out)
    tail(2, 'hi', *p1(2))
    print("model cycles", e.t - t0, file=sys.stderr)
    bd = OPT["bdrop"].split(",")
    new = []
    for i in e.out[n0:]:
        rep = None
        if "bar" in bd and i.kind == "barrier": rep = "s_nop 0"
        if "dsw" in bd and i.mn.startswith("ds_write"): rep = "ds_read_b32 v96, v6"
        if "vmw" in bd and i.kind == "wait" and "vmcnt" in i.text: rep = "s_nop 0"
        if "valu" in bd and i.is_valu and "vcc" not in i.writes: rep = ""
        if "valu4" in bd and i.is_valu and "vcc" not in i.writes: rep = "v_mov_b32 v96, v97"
        if "ld" in bd and i.kind == "vmem" and "load" in i.mn: rep = "s_nop 0"
        if "st" in bd and i.kind == "vmem" and "store" in i.mn: rep = "s_nop 0"
        if "br" in bd and i.mn == "s_cbranch_vccnz": rep = "s_nop 0"
        if "lgw" in bd and i.kind == "wait" and "lgkmcnt" in i.text: rep = "s_nop 0"
        if rep is None: new.append(i)
        elif rep: new.append(Ins(rep))
    e.out[n0:] = new
    e("s_nop 7")
    e("s_add_u32 s3, s3, 1")
    e("s_cmp_lt_u32 s3, 21")
    e("s_cbranch_scc1 L_bl")
    e("s_waitcnt lgkmcnt(0)")
    e("s_memtime s[72:73]")
    e("s_waitcnt lgkmcnt(0) vmcnt(0)")
    e("s_sub_u32 s72, s72, s90")
    e("v_mov_b32 v0, s72")
    e("s_lshl_b32 s73, s2, 2")
    e("s_add_u32 s73, s73, s%d" % sW)
    e("s_lshl_b32 s73, s73, 2")
    e("s_mov_b64 exec, 1")
    e("buffer_store_dword v0, v%d, %s, s73 offen" % (vL16, sr(sOUT, 4)))

def rest():
    if OPT["bench"]:
        if ST != "sc1": bench()
        else: e("s_endpgm")
        return
    carry = layer0_rest()
    layer(1, carry); layer(2); layer(3)

prologue()
gemm0()
snap = (list(e.vm), list(e.lg), dict(e.marks), e.t, e.t_valu, e.t_mfma, dict(e.t_mem))
ST = STF
rest()
fast_ool = list(ool); ool.clear()
e("L_end:")
e("s_endpgm")
fast_text = e.text(OPT["times"]); nfast = len(e.out); tfast = e.t
e.out = []
e.vm, e.lg, e.marks, e.t, e.t_valu, e.t_mfma, e.t_mem = snap
ST = "sc1"; LD = "sc1"
e("L_slow:")
q = vACC[0]
emit_all(fill2k(sOI, O_OB[0], q, ST) + fill2k(sXP, O_XB[1], q, ST) + fillsb(O_SB[1], q, ST))
e(f"""
v_or_b32 v{zFL+1}, 0x40, v{zFL+1}
s_waitcnt vmcnt(0)
s_barrier
""")
emit_all(lane0_store(sFO1))
e("L_slowpoll:")
for x in f1load(): e(x)
e(f"""
s_sub_u32 s{sBUD}, s{sBUD}, 1
s_cbranch_scc1 L_end
s_waitcnt vmcnt(0)
v_and_b32 v{T[4]}, 0x40, v{zF1+1}
v_cmp_eq_u32 vcc, 0, v{T[4]}
s_cbranch_vccnz L_slowpoll
""")
rest()

hdr = open("cdna_kernels/%s.s.ref" % NAME).read().split("; Override")[0]
out = hdr + "; Persistent fused kernel: 32 clusters of 8 workgroups x 64 same-parity rows; generated by a script.\n"
out += "; @launch grid=(256,1,1) block=(256,1,1) lds=%d\n" % LDS_BYTES
out += '.amdgcn_target "amdgcn-amd-amdhsa--gfx950"\n.text\n.globl %s\n.p2align 8\n.type %s,@function\n%s:\n' % (KN, KN, KN)
out += fast_text + "".join(fast_ool) + e.text() + "".join(ool)
out += """.section .rodata,"a"
.p2align 6
.amdhsa_kernel %s
  .amdhsa_next_free_vgpr 512
  .amdhsa_next_free_sgpr 102
  .amdhsa_accum_offset 256
  .amdhsa_group_segment_fixed_size 0
  .amdhsa_kernarg_size 72
  .amdhsa_user_sgpr_count 2
  .amdhsa_user_sgpr_kernarg_segment_ptr 1
  .amdhsa_system_sgpr_workgroup_id_x 1
  .amdhsa_float_denorm_mode_32 3
.end_amdhsa_kernel
""" % KN
open(sys.argv[1], "w").write(out)
print("fast instrs", nfast, "model cycles", int(tfast), "nop states", e.nops, "stamps", len(stamp_names), " ".join(stamp_names), file=sys.stderr)
```

```python
import sys, struct, copy
from asmlib3 import *

NAME = "interleave_layers__sliding_local_dilated__sliding_local_dilated__prompt"
KN = NAME + "_kernel"
OPT = dict(stamps=False, force="", rot=2, bench="", hgo=0, only="", g0st=0, bdrop="", drop="", times=False, w64=0, pace=90, g0gap=40, g0tol=4, f1at=8, ini2=1, uat=6, tcat=11, flat=12, la=4, h3b=1, tfirst=1, wsoff=0, c0=60, blat=700, trg=24, twg=60, h0d=500, wbx=11, x1d=560, wgap=64, wgap2=40, lgap=64, lgap2=30, bks=12, bks3=12, cut=30, lox=50, vdef=9, hd=550, pgap=60, pfd=420, p2tol=1, tol="1/1/1/1/1", s0d=120)
for a in sys.argv[2:]:
    k, v = a.split("=", 1)
    OPT[k] = {"True": True, "False": False}.get(v, int(v) if v.lstrip("-").isdigit() else v)
LD = OPT.get("ld", "sc1").replace("+", " ")
STF = OPT.get("stf", "").replace("+", " ")
ST = ""

WOT_OFF = 0; FL1 = 0x80000; FL2 = 0x82000; EPOCH = 0x84000; HB = 0x88000
O_XB = [0, 0]; O_OB = [0x10000, 0x10000]; O_KV = 0x20000; O_SB = [0x48000, 0x48000]; CS = 0x49000
WS_SIZE = HB + 32 * CS
STAMP_OFF = 0x2000000
L_X = 0; L_WO = [32768, 98304]; LDS_BYTES = 163840; L_ST0 = 24576
def slot(i): return (7 - ((i + 5) % 7)) * 12288
T = [0, 1, 2, 3, 4, 5]
vL16, vSW, vOS, vSL, vSS, vXO, vID = 6, 7, 8, 9, 10, 11, 14
vL16b = 5; vDUM = 96
vCS = [(12, 13, 120), (121, 122, 123)]
vBIAS = 16; vPM = 20; vONES = 22
vSTG = 24; vRING = 40; vACC = [56, 68]
vH = 98
vXOLD = [100, 124]
vOBUF = [24, 40, 56, 24]; vWR = 72; vPACC = 104
class RM: pass
N = RM()
N.acc = lambda t: vACC[t & 1]
N.q = lambda t: 80 + 2 * (t & 1); N.k = lambda t: 88 if t < 0 else 84 + 2 * (t & 1)
N.v = lambda t: 92 + 2 * (t & 1); N.c = lambda t: 96 + (t & 1)
N.kh = 88
N.rs = lambda t: 104 + 4 * (t & 1); N.nm = lambda t: 105 + 4 * (t & 1); N.rs2 = lambda t: 106 + 4 * (t & 1); N.nm2 = lambda t: 107 + 4 * (t & 1)
N.va = lambda t: (92, True) if t == 2 else ((90, False) if t == 0 else (92, False))
Z = RM()
Z.acc = lambda t: 128 + 12 * t
Z.q = lambda t: 216 + 2 * t; Z.k = lambda t: 80 if t < 0 else (72 if t == 3 else 224 + 2 * t)
Z.v = lambda t: 88 + 2 * t; Z.c = lambda t: 244 + t
Z.rs = lambda t: 176 + 4 * t; Z.nm = lambda t: 177 + 4 * t; Z.rs2 = lambda t: 178 + 4 * t; Z.nm2 = lambda t: 179 + 4 * t
Z.va = lambda t: (86 + 2 * t, False)
zXB = [176, 196]; zCS = 216; zG = 228; zR = 232; zONE = 236; zA = 240; zAO = 244; zTR = 248; zXV = 250; zUV = 251; zUA = 252; zOV = 253; zWV = 254
zTA = 97
vBV, vBT = 0, 1
zFL = 60; zF1 = 62; zF2 = 64
sWS, sOUT, sX, sWA, sM = 8, 12, 16, 20, 28
sW, sHG, sC, sB, sROT, sBUD, sHBIAS, sSCALE = 36, 37, 38, 39, 40, 41, 42, 43
sU1, sWOA, sWBP = 44, 24, 50
sXBASE, sUS, sUD, sW3K, sW1K, sN1, sN2, sFO1, sFO2 = 52, 53, 56, 59, 4, 5, 6, 7, 93
sR, sKVI, sKVO, sXP, sOI, sOP, sOL, sF, sF2, sWB, sWOT, sWL = range(60, 72)
sHX = 54
sWL2 = 69
sTMP = list(range(78, 90)) + list(range(94, 102))
_st = [0]
def stmp():
    _st[0] = (_st[0] + 1) % len(sTMP)
    return sTMP[_st[0]]

def vr(b, n): return "v[%d:%d]" % (b, b + n - 1)
def sr(b, n): return "s[%d:%d]" % (b, b + n - 1)
WS = sr(sWS, 4)
def wreg(typ, f, half=None):
    if typ == 0: p, b = "a", 4 * f
    elif f < 16: p, b = "a", 192 + 4 * f
    else: p, b = "v", 128 + 4 * (f - 16)
    if half is None: return "%s[%d:%d]" % (p, b, b + 3)
    return "%s[%d:%d]" % (p, b + 2 * half, b + 2 * half + 1)
def fbits(x): return "0x%08x" % struct.unpack("<I", struct.pack("<f", x))[0]
MF32 = "v_mfma_f32_16x16x32_bf16"; MF16 = "v_mfma_f32_16x16x16_bf16"

e = Emitter()
_drop = [d for d in OPT["drop"].split(",") if d]
e.drop = lambda ins: ins.kind == "vmem" and ins.tag in _drop
ool = []
_lab = [0]
def lab(p):
    _lab[0] += 1
    return "L_%s_%d" % (p, _lab[0])
def emit_all(L):
    for i in L: e.emit(i)

stamp_names = []
CURL = [0]
_echo = [0]
def stamp(name="", real=False):
    if OPT.get("echo"):
        nm, _, occ = OPT["echo"].partition(":")
        if name == nm and (not occ or int(occ) == CURL[0]):
            e("s_memrealtime s[0:1]")
            e("s_waitcnt lgkmcnt(0)")
        return
    if not OPT["stamps"]: return
    if OPT["only"] and name not in OPT["only"].split(","): return
    if ST != "sc1": stamp_names.append(name)
    if name == "cnt": e("s_mov_b32 s90, s52"); e("s_mov_b32 s52, 0")
    else: e("s_memrealtime s[90:91]" if real else "s_memtime s[90:91]")
    e("s_waitcnt lgkmcnt(0)")
    e("v_writelane_b32 v%d, s90, 0" % vSL)
    e("s_mov_b64 exec, 1")
    if OPT.get("dbgst"):
        e("v_mov_b32 v%d, s92" % vL16)
        e("global_store_dword v%d, v%d, s[0:1]" % (vL16, vSL), tag="stamp")
        e("v_mov_b32 v%d, 0" % vL16)
    else:
        e("buffer_store_dword v%d, v%d, %s, s92 offen" % (vSL, vL16, WS), tag="stamp")
    e("s_mov_b64 exec, -1")
    e("s_add_u32 s92, s92, 4")
    e("s_nop 1")
    e("v_writelane_b32 v%d, 0, 0" % vSL)
    e.vm.pop()

LREG = [24, 26, 52, 50, 56, 16, 18, 20, 22]
def lstamp(i):
    if OPT["stamps"] and OPT.get("light") and CURL[0] == 2: e("s_memtime s[%d:%d]" % (LREG[i], LREG[i] + 1))
def ldump(n):
    if not (OPT["stamps"] and OPT.get("light") and CURL[0] == 3): return
    e("s_waitcnt lgkmcnt(0)")
    for i in range(n):
        if ST != "sc1": stamp_names.append("l%d" % i)
        e("v_writelane_b32 v%d, s%d, 0" % (vSL, LREG[i]))
        e("s_mov_b64 exec, 1")
        e("buffer_store_dword v%d, v%d, %s, s92 offen" % (vSL, vL16, WS), tag="stamp")
        e("s_mov_b64 exec, -1")
        e("s_add_u32 s92, s92, 4")
        e("s_nop 1")
        e.vm.pop()
    e("v_writelane_b32 v%d, 0, 0" % vSL)

def maxchain(dst, regs):
    out = []; regs = list(regs)
    out.append("v_max3_u32 v%d, v%d, v%d, v%d" % (dst, regs[0], regs[1], regs[2])); regs = regs[3:]
    while len(regs) >= 2:
        out.append("v_max3_u32 v%d, v%d, v%d, v%d" % (dst, dst, regs[0], regs[1])); regs = regs[2:]
    if regs: out.append("v_max_u32 v%d, v%d, v%d" % (dst, dst, regs[0]))
    return out

def tagop(dst, src, ph): return ("v_or_b32 v%d, 1, v%d" if ph else "v_and_b32 v%d, -2, v%d") % (dst, src)
def tagchk(tmp, regs, ph):
    out = []
    a = regs[0]
    if len(regs) == 4:
        out.append("v_bitop3_b32 v%d, v%d, v%d, v%d bitop3:%s" % (tmp, regs[0], regs[1], regs[2], "0x80" if ph else "0xfe")); a = tmp
    out.append("v_bitop3_b32 v%d, v%d, v%d, 1 bitop3:%s" % (tmp, a, regs[-1], "0x80" if ph else "0xa8"))
    out.append("v_cmp_ne_u32 vcc, %d, v%d" % (ph, tmp))
    return out
PO = lambda l: l & 1
PX = lambda l: (l + 1) & 1

def checked(loads, waitins, chk_regs, tmp, retry_wait=0, chk=None, **kw):
    lr, lb = lab("retry"), lab("back")
    if chk is None:
        if len(chk_regs) == 1: chk = []; src = chk_regs[0]
        else: chk = maxchain(tmp, chk_regs); src = tmp
        chk = chk + ["v_cmp_eq_u32 vcc, -1, v%d" % src]
    s = [waitins] + [I(c) for c in chk] + [I("s_cbranch_vccnz " + lr), I(lb + ":", **kw)]
    o = Emitter()
    o(lr + ":")
    for l in loads: o(l)
    if OPT["stamps"] and not OPT.get("light"):
        tg = waitins.waitspec[0][1]
        k = {"og0": 0, "og1": 1, "og2": 1, "og3": 1, "xs3_0": 2, "xs3_1": 6, "xs3_2": 6, "xs3_3": 6, "xs2": 3, "xs1": 3, "xs0": 3, "sl": 4, "halo": 5}.get(tg, 6)
        o("s_add_u32 s52, s52, %d" % (1 << (4 * k)) if k < 7 else "")
    o("s_sub_u32 s%d, s%d, 1" % (sBUD, sBUD))
    o("s_cbranch_scc1 L_end")
    o("s_waitcnt vmcnt(%d)" % retry_wait)
    for c in chk: o(c)
    o("s_cbranch_vccnz " + lr)
    o("s_branch " + lb)
    ool.append(o.text())
    return s

BC = "row_newbcast:%d row_mask:0xf bank_mask:0xf"
def epi_kq(M, typ, t, after=None):
    a = M.acc(t); q, k = a, a + 4; cq, ck, cv = vCS[typ]
    s = []
    for r in range(4): s.append(I("v_fmac_f32_dpp v%d, v%d, v%d %s" % (k + r, ck, M.nm(t), BC % r), after=after if r == 0 else None))
    for r in range(4): s.append(I("v_mul_f32 v%d, v%d, v%d" % (k + r, M.rs(t), k + r)))
    s.append(I("v_cvt_pk_bf16_f32 v%d, v%d, v%d" % (M.k(t), k, k + 1)))
    s.append(I("v_cvt_pk_bf16_f32 v%d, v%d, v%d" % (M.k(t) + 1, k + 2, k + 3), mark="K%d" % t))
    for r in range(4): s.append(I("v_fmac_f32_dpp v%d, v%d, v%d %s" % (q + r, cq, M.nm(t), BC % r)))
    s.append(I("v_cvt_pk_bf16_f32 v%d, v%d, v%d" % (M.q(t), q, q + 1)))
    s.append(I("v_cvt_pk_bf16_f32 v%d, v%d, v%d" % (M.q(t) + 1, q + 2, q + 3)))
    s.append(I("v_mul_f32 v%d, s%d, v%d" % (M.c(t), sSCALE, M.rs(t)), mark="Q%d" % t))
    return s
def epi_v(M, typ, t, after=None):
    v = M.acc(t) + 8; cv = vCS[typ][2]
    s = []
    for r in range(4): s.append(I("v_fmac_f32_dpp v%d, v%d, v%d %s" % (v + r, M.nm2(t), cv, BC % r), after=after if r == 0 else None))
    for r in range(4): s.append(I("v_mul_f32_dpp v%d, v%d, v%d %s" % (v + r, M.rs2(t), v + r, BC % r)))
    s.append(I("v_cvt_pk_bf16_f32 v%d, v%d, v%d" % (M.v(t), v, v + 1)))
    s.append(I("v_cvt_pk_bf16_f32 v%d, v%d, v%d" % (M.v(t) + 1, v + 2, v + 3), mark="V%d" % t))
    return s
def epi(M, typ, t, after=None): return epi_kq(M, typ, t, after) + epi_v(M, typ, t)

def sel4(dst, a):
    return [I("v_cndmask_b32 v%d, v%d, v%d, s[44:45]" % (dst, a, a + 1)), I("v_cndmask_b32 v%d, v%d, v%d, s[46:47]" % (dst, dst, a + 2)),
            I("v_cndmask_b32 v%d, v%d, v%d, s[48:49]" % (dst, dst, a + 3))]
def sel4_masks():
    return [I("s_mov_b32 s44, 0x22222222"), I("s_mov_b32 s45, s44"), I("s_lshl_b64 s[46:47], s[44:45], 1"), I("s_lshl_b64 s[48:49], s[44:45], 2")]
def cs_compact(typ, a):
    return sel4(vCS[typ][0], a) + sel4(vCS[typ][1], a + 4) + [I("v_mov_b32 v%d, v%d" % (vCS[typ][2], a + 8), mark="CS")]
def cs_mfma(typ, ks, a, ones):
    out = []
    for j in range(3):
        w = wreg(typ, 3 * ks + j); A, B = (w, vr(ones, 4)) if j < 2 else (vr(ones, 4), w)
        out.append(I("%s %s, %s, %s, %s" % (MF32, vr(a + 4 * j, 4), A, B, vr(a + 4 * j, 4) if ks else "0")))
    return out

def attn(M, l, t, a, ta, depS_p, depS_c, depV):
    sc, sp, lsum = a, a + 4, a + 8
    c = M.c(t); kprev = M.k(t - 1)
    s = []
    if t == 0:
        for r in range(4):
            s.append(I("v_add_f32 v%d, s%d, v%d" % (sp + r, sHBIAS, vBIAS + r), after=depS_p if r == 0 else None))
        s.append(I("%s %s, %s, %s, %s" % (MF16, vr(sc, 4), vr(M.k(t), 2), vr(M.q(t), 2), vr(vBIAS, 4)), after=depS_c))
        s.append(I("%s %s, %s, %s, %s" % (MF16, vr(sp, 4), vr(kprev, 2), vr(M.q(t), 2), vr(sp, 4)), after=["H"]))
    else:
        s.append(I("%s %s, %s, %s, %s" % (MF16, vr(sp, 4), vr(kprev, 2), vr(M.q(t), 2), vr(vBIAS, 4)), after=depS_p))
        s.append(I("%s %s, %s, %s, %s" % (MF16, vr(sc, 4), vr(M.k(t), 2), vr(M.q(t), 2), vr(vBIAS, 4)), after=depS_c))
    for r in range(4):
        s.append(I("v_cndmask_b32 v%d, v%d, v%d, %s" % (sc + r, sp + r, sc + r, sr(sM + 2 * r, 2))))
    s.append(I("v_max3_f32 v%d, v%d, v%d, v%d" % (sp, sc, sc + 1, sc + 2)))
    s.append(I("v_max_f32 v%d, v%d, v%d" % (sp + 1, sp, sc + 3)))
    s.append(I("v_max_f32 v%d, v%d, v%d" % (sp, sp, sc + 3)))
    s.append(I("v_permlane32_swap_b32 v%d, v%d" % (sp, sp + 1)))
    s.append(I("v_max_f32 v%d, v%d, v%d" % (sp + 2, sp, sp + 1)))
    s.append(I("v_max_f32 v%d, v%d, v%d" % (sp, sp, sp + 1)))
    s.append(I("v_permlane16_swap_b32 v%d, v%d" % (sp, sp + 2)))
    s.append(I("v_max_f32 v%d, v%d, v%d" % (sp, sp, sp + 2)))
    s.append(I("v_mul_f32 v%d, -v%d, v%d" % (sp, sp, c)))
    for r in range(4): s.append(I("v_fma_f32 v%d, v%d, v%d, v%d" % (sc + r, sc + r, c, sp)))
    s[-1].mark = "F%d" % t
    for r in range(4): s.append(I("v_exp_f32 v%d, v%d" % (sc + r, sc + r)))
    s.append(I("v_cvt_pk_bf16_f32 v%d, v%d, v%d" % (ta, sc, sc + 1)))
    s.append(I("v_cvt_pk_bf16_f32 v%d, v%d, v%d" % (ta + 1, sc + 2, sc + 3)))
    va, curfirst = M.va(t)
    pc, pp = (sp, sp + 2) if curfirst else (sp + 2, sp)
    s.append(I("v_and_b32 v%d, v%d, v%d" % (pc, ta, vPM)))
    s.append(I("v_and_b32 v%d, v%d, v%d" % (pc + 1, ta + 1, vPM + 1)))
    s.append(I("%s %s, %s, %s, 0" % (MF16, vr(sc, 4), vr(vONES, 2), vr(ta, 2))))
    s.append(I("v_xor_b32 v%d, v%d, v%d" % (pp, ta, pc)))
    s.append(I("v_xor_b32 v%d, v%d, v%d" % (pp + 1, ta + 1, pc + 1)))
    st = stmp()
    if t % 2 == 0: s.append(I("s_add_u32 s%d, s%d, %d" % (st, sOP, O_OB[l & 1] + t * 16384)))
    s.append(I("%s %s, %s, %s, 0" % (MF32, vr(lsum, 4), vr(va, 4), vr(sp, 4)), after=depV, mark="PV%d" % t))
    s.append(I("v_rcp_f32 v%d, v%d" % (sc, sc)))
    for r in range(4): s.append(I("v_mul_f32 v%d, v%d, v%d" % (lsum + r, sc, lsum + r)))
    s.append(I("v_cvt_pk_bf16_f32 v%d, v%d, v%d" % (ta + 1, lsum + 2, lsum + 3)))
    s.append(I("v_cvt_pk_bf16_f32 v%d, v%d, v%d" % (ta, lsum, lsum + 1)))
    if t % 2: s[-1].mark = "A%d" % t
    else:
        s.append(I("v_permlane16_swap_b32 v%d, v%d" % (ta - 1, ta + 1), after=["A%d" % (t + 1)]))
        s.append(I("v_permlane16_swap_b32 v%d, v%d" % (ta - 2, ta)))
        s.append(I(tagop(ta + 1, ta + 1, PO(l))))
        s.append(I("buffer_store_dwordx4 %s, v%d, %s, s%d offen %s" % (vr(ta - 2, 4), vOS, WS, st, ST), tag="ost", mark="A%d" % t, gapmin=1))
    return s

def kvpub(M, l, q):
    st = stmp()
    return [I("v_mov_b32 v%d, v%d" % (q, M.k(3)), after=["V3"]), I("v_mov_b32 v%d, v%d" % (q + 1, M.k(3) + 1)),
            I("s_add_u32 s%d, s%d, %d" % (st, sKVO, l * 0x8000)),
            I("v_mov_b32 v%d, v%d" % (q + 2, M.v(3))), I("v_min_u32 v%d, -2, v%d" % (q + 3, M.v(3) + 1)),
            I("buffer_store_dwordx4 %s, v%d, %s, s%d offen sc1" % (vr(q, 4), vL16, WS, st), tag="kvst", mark="KVP", gapmin=1, lat=1000)]
def halo(M, l, delay, lat=900):
    st = 75
    hl = ["s_add_u32 s%d, s%d, %d" % (st, sKVI, l * 0x8000),
          "buffer_load_dwordx4 %s, v%d, %s, s%d offen sc1" % (vr(M.kh, 4), vL16, WS, st)]
    return [I(hl[0], delay=delay), I(hl[1], tag="halo", lat=lat)] + checked(hl, W(("vm", "halo")), [M.kh + 3], None, mark="H")

def stage_loads(l, t):
    st = 73
    loads = ["s_add_u32 s%d, s%d, %d" % (st, sR, O_XB[l & 1] + t * 16384)]
    loads += ["buffer_load_dwordx4 %s, v%d, %s, s%d offen offset:%d %s" % (vr(vSTG + 4 * j, 4), vSW, WS, st, j * 1024, LD) for j in range(4)]
    return loads
def stage_streams(l):
    loads = stage_loads(l, 2)
    ls = [I(loads[0])] + [I(loads[1 + j], tag="xs2", gapmin=OPT["lgap2"], mark="xl2" if j == 3 else None) for j in range(4)]
    ws_ = checked(loads, W(("vm", "xs2"), after=["xl2"]), None, None, chk=tagchk(T[4], [vSTG + 4 * j + 3 for j in range(4)], PX(l)))
    for j in range(4):
        ws_.append(I("ds_write_b128 v%d, %s offset:%d" % (vSW, vr(vSTG + 4 * j, 4), L_X + j * 1024), tag="xw2", gapmin=OPT["wgap2"], lat=60, mark="xw2_%d" % j))
    for t in (1, 0):
        ls += [I("s_add_u32 s73, s%d, %d" % (sR, O_XB[l & 1] + t * 16384), after=["B%d" % (t + 1)]), I("s_lshl_b32 s72, s%d, 12" % sW)]
        for j in range(4):
            if l == 1:
                ls.append(I("s_add_u32 m0, s72, %d" % (L_X + (t & 1) * 16384), glue=True, gapmin=OPT["lgap"])); ls[-1].kind2 = "vmem"
            elif j == 0: ls.append(I("s_add_u32 m0, s72, %d" % (L_X + (t & 1) * 16384)))
            ls.append(I("buffer_load_dwordx4 v%d, %s, s73 offen offset:%d %s lds" % (vSW, WS, j * 1024, LD), tag="xs%d" % t, mark="xl%d" % t if j == 3 else None, gapmin=OPT["lgap"]))
    if l < 3:
        ls += [I("s_lshl_b32 s73, s%d, 16" % sHG, after=["B0"]), I("s_add_u32 s73, s73, %d" % (WOT_OFF + 64512)),
               I("s_mov_b32 m0, %d" % (L_WO[1] + 64512)),
               I("buffer_load_dwordx4 v%d, %s, s73 offen sc1 lds" % (vL16, WS), tag="hole", lat=700, mark="HOLE")]
    return ls, ws_

def finalize(S, SS, t1, rstd, nmean):
    return [
        "v_mul_f32 v%d, %s, v%d" % (S, fbits(1.0 / 512), S),
        "v_mul_f32 v%d, %s, v%d" % (SS, fbits(1.0 / 512), SS),
        "v_fma_f32 v%d, -v%d, v%d, v%d" % (SS, S, S, SS),
        "v_max_f32 v%d, 0, v%d" % (SS, SS),
        "v_cvt_pk_bf16_f32 v%d, v%d, -v%d" % (S, SS, S),
        "v_lshlrev_b32 v%d, 16, v%d" % (t1, S),
        "v_add_f32 v%d, %s, v%d" % (t1, fbits(1e-5), t1),
        "v_cvt_pk_bf16_f32 v%d, v%d, v%d" % (t1, t1, t1),
        "v_lshlrev_b32 v%d, 16, v%d" % (t1, t1),
        "v_sqrt_f32 v%d, v%d" % (t1, t1),
        "v_and_b32 v%d, 0xffff0000, v%d" % (nmean, S),
        "v_cvt_pk_bf16_f32 v%d, v%d, v%d" % (t1, t1, t1),
        "v_lshlrev_b32 v%d, 16, v%d" % (t1, t1),
        "v_rcp_f32 v%d, v%d" % (rstd, t1)]

def scratch(l): return (L_WO[0] if l == 3 else L_WO[1]) + 65536 - 512
def stats(l):
    R = 80; sc = scratch(l)
    loads = ["s_add_u32 s74, s%d, %d" % (sR, O_SB[l & 1]), "s_add_u32 s74, s74, s%d" % sW1K,
             "buffer_load_dwordx4 %s, v%d, %s, s74 offen %s" % (vr(R, 4), vL16, WS, LD)]
    adr = [I(x) for x in [
        "v_bfe_u32 v%d, v%d, 4, 4" % (vH, vL16), "v_lshlrev_b32 v%d, 3, v%d" % (vH, vH), "v_and_b32 v%d, 0x18, v%d" % (vH + 1, vH),
        "v_add_u32 v%d, %d, v%d" % (vH, sc, vH),
        "v_lshrrev_b32 v%d, 8, v%d" % (R + 5, vL16), "v_lshl_add_u32 v%d, v%d, 5, v%d" % (vH + 1, R + 5, vH + 1), "v_add_u32 v%d, %d, v%d" % (vH + 1, sc, vH + 1),
        "s_lshl_b32 s75, s%d, 7" % sW, "s_add_u32 s75, s75, %d" % sc,
        "v_lshrrev_b32 v%d, 6, v%d" % (R + 5, vL16), "v_lshl_add_u32 v%d, v%d, 3, s75" % (R + 5, R + 5)]]
    s = adr + [I(loads[0]), I(loads[1]), I(loads[2], tag="sl", delay=("B3", OPT["s0d"]), gapmin=OPT["lgap2"], mark="sll")]
    chk = tagchk(T[5], [R + 1, R + 3], PX(l))
    s += checked(loads, W(("vm", "sl")), None, None, chk=chk)
    for o in (0, 1): s.append(I("v_add_f32 v%d, v%d, v%d" % (R + o, R + o, R + 2 + o)))
    for o in (0, 1): s.append(I("v_add_f32_dpp v%d, v%d, v%d quad_perm:[1,0,3,2] row_mask:0xf bank_mask:0xf" % (R + 2 + o, R + o, R + o)))
    for o in (0, 1): s.append(I("v_add_f32_dpp v%d, v%d, v%d quad_perm:[2,3,0,1] row_mask:0xf bank_mask:0xf" % (R + o, R + 2 + o, R + 2 + o)))
    s += [I(x) for x in finalize(R, R + 1, R + 4, R + 2, R + 3)]
    s.append(I("ds_write_b64 v%d, %s" % (R + 5, vr(R + 2, 2)), tag="sw", mark="SW", gapmin=1, lat=60))
    return s
def statreads(t, after=None):
    s = [I("ds_read_b64 %s, v%d offset:%d" % (vr(N.rs(t), 2), vH, t * 128), tag="st%d" % t, after=after, gapmin=1),
         I("ds_read_b64 %s, v%d offset:%d" % (vr(N.rs2(t), 2), vH + 1, t * 128), tag="st%d" % t, gapmin=1, mark="SR%d" % t)]
    return s

def pubstats_stream(l):
    R, G, O = 104, 108, 96
    out = [I("v_mov_b32 v%d, 0x3f803f80" % (O + i)) for i in range(4)]
    for k in range(2):
        x = vr(vXOLD[k], 4)
        out.append(I("%s %s, %s, %s, %s" % (MF32, vr(G, 4), x, x, vr(G, 4) if k else "0")))
    for k in range(2):
        out.append(I("%s %s, %s, %s, %s" % (MF32, vr(R, 4), vr(O, 4), vr(vXOLD[k], 4), vr(R, 4) if k else "0")))
    out[-1].mark = "PSM"
    st = stmp()
    out.append(I("s_add_u32 s%d, s%d, %d" % (st, sR, O_SB[l & 1])))
    out += sel4(G, G)
    out.append(I(tagop(R + 1, G, PX(l))))
    out.append(I("buffer_store_dwordx2 %s, v%d, %s, s%d offen %s" % (vr(R, 2), vSS, WS, st, ST), tag="sst", mark="PS", gapmin=1))
    return out

def bslot(i):
    if i == 5: return 12288
    if i == 6: return 0
    return L_WO[1] + 12288 * (i if i < 5 else (i - 7) % 5)
def bchunk(i, gap=None):
    s = [I("s_add_u32 s76, s%d, %d" % (sROT, i)), I("s_and_b32 s76, s76, 15"), I("s_mul_i32 s76, s76, 98304"),
         I("s_add_u32 m0, s%d, %d" % (sW3K, bslot(i)))]
    s += [I("buffer_load_dwordx4 v%d, %s, s76 offen offset:%d lds" % (vBV, sr(sWA, 4), j * 1024), tag="bc%d" % i, lat=OPT["blat"], gapmin=gap) for j in range(3)]
    s[-1].mark = "BC%d" % i
    return s
def breads(i, low=None):
    a, base = (low, bslot(i)) if bslot(i) < L_WO[1] else (vBT, bslot(i) - L_WO[1])
    s = [I("ds_read_b64_tr_b16 %s, v%d offset:%d" % (wreg(1, 3 * i + j, e2), a, base + j * 1024 + e2 * 512), tag="br%d" % i, gapmin=8) for j in range(3) for e2 in range(2)]
    s[-1].mark = "BR%d" % i
    return s
def wobdma(q, gap):
    s = [I("s_add_u32 s76, s%d, %d" % (sWOT, q * 4096))]
    for j in range(4):
        if q == 3 and j == 3:
            s += [I("s_cmp_eq_u32 s%d, 3" % sW, glue=True), I("s_cselect_b32 m0, %d, m0" % 0x2f000, glue=True)] if False else []
        s += [I("s_add_u32 m0, s%d, %d" % (sWL if not (q == 3 and j == 3) else sWL2, L_WO[1] + q * 4096), glue=True, gapmin=gap),
              I("buffer_load_dwordx4 v%d, %s, s76 offen offset:%d sc1 lds" % (vL16, WS, j * 1024), tag="wo", lat=1)]
        s[-2].kind2 = "vmem"
    return s

def fill2k(sbase, add, q, flav, gap=None):
    st = stmp()
    s = [I("s_add_u32 s%d, s%d, %d" % (st, sbase, add & 0xffffffff))]
    s += [I("buffer_store_dwordx4 %s, v%d, %s, s%d offen offset:%d %s" % (vr(q, 4), vL16, WS, st, k * 1024, flav), tag="init", gapmin=gap) for k in range(2)]
    return s
def touch2k(sbase, add, gap=None, dst=vDUM):
    st = stmp()
    return [I("s_add_u32 s%d, s%d, %d" % (st, sbase, add & 0xffffffff)),
            I("buffer_load_dword v%d, v%d, %s, s%d offen sc1" % (dst, vSL, WS, st), tag="touch", gapmin=gap)]
def fillsb(add, q, flav, gap=None):
    st = stmp()
    return [I("s_add_u32 s%d, s%d, %d" % (st, sR, add & 0xffffffff)),
            I("buffer_store_dwordx2 %s, v%d, %s, s%d offen %s" % (vr(q, 2), vSS, WS, st, flav), tag="init", gapmin=gap)]
def touchsb(add, gap=None, dst=vDUM):
    st = stmp()
    return [I("s_add_u32 s%d, s%d, %d" % (st, sR, add & 0xffffffff)),
            I("buffer_load_dword v%d, v%d, %s, s%d offen sc1" % (dst, vSS, WS, st), tag="touch", gapmin=gap)]
def fillkv(add, q, gap=None):
    st = stmp()
    return [I("s_add_u32 s%d, s%d, %d" % (st, sKVO, add & 0xffffffff)),
            I("buffer_store_dwordx4 %s, v%d, %s, s%d offen sc1" % (vr(q, 4), vL16, WS, st), tag="kvinit", gapmin=gap)]
def ones_q(q): return [I("v_mov_b32 v%d, -1" % (q + i)) for i in range(4)]

def xread(reg, t, ks, tag):
    return I("ds_read_b128 %s, v%d offset:%d" % (vr(reg, 4), vL16, L_X + (t & 1) * 16384 + ks * 1024), tag=tag)

RING6 = [40, 44, 48, 52, 112, 116]
def p1_main(typ, jit):
    uses = [(t, ks) for t in (3, 2, 1, 0) for ks in range(16)]
    free = list(RING6); reg = {}
    nxt = 0; waited = -1
    def rd():
        nonlocal nxt
        reg[nxt] = free.pop(0)
        i = xread(reg[nxt], uses[nxt][0], uses[nxt][1], "f%d" % nxt); nxt += 1
        return i
    first = [rd() for _ in range(3)]
    opened = 3
    steps = [[], [], [], []]; late = []
    for n, (t, ks) in enumerate(uses):
        a = vACC[t & 1]; fr = vr(reg[n], 4)
        g_ = []
        for j in (1, 0, 2):
            w = wreg(typ, ks * 3 + j)
            A, B = (w, fr) if j < 2 else (fr, w)
            g_.append((I("%s %s, %s, %s, %s" % (MF32, vr(a + 4 * j, 4), A, B, vr(a + 4 * j, 4) if ks else "0")), []))
        if n == 48: free += [24, 28, 32, 36]
        defer = n >= 64 - OPT["vdef"]
        if defer: late.append(g_.pop())
        if jit and t == 3: g_ += [(m, []) for m in cs_mfma(typ, ks, vACC[0], 88)]
        for k in range(2):
            if nxt < len(uses) and free and uses[nxt][0] >= opened: g_[k][1].append(rd())
        last = g_[-1][1]
        if t > 0 and ks == (OPT["bks3"] if t == 3 else OPT["bks"]):
            if t == 3:
                w_ = W(("lg", "f%d" % (n + 15 - ks)), ("lg", "xw2"), ("lg", "sw")); w_.need = ["xw2_3", "SW"]
            else:
                w_ = W(("lg", "f%d" % (n + 15 - ks)), ("vm", "xs%d" % (t - 1))); w_.need = ["xl%d" % (t - 1)]
                if t == 1: w_.waitspec.append(("lg", "st0")); w_.need.append("SR0")
            assert nxt > n + 15 - ks
            last += [w_, I("s_barrier", mark="B%d" % (t - 1))]
            waited = n + 15 - ks; opened = t - 1
        if n + 1 < len(uses):
            spec = []
            if waited < n + 1:
                waited = min(n + (2 if nxt - n > 5 else 1), nxt - 1)
                assert waited >= n + 1
                spec.append(("lg", "f%d" % waited))
            nd = []
            if jit and t == 3 and 7 <= ks + 1 < 16: spec.append(("lg", "br%d" % (ks + 1))); nd = ["BR%d" % (ks + 1)]
            if spec:
                w_ = W(*spec); w_.need = nd; last.append(w_)
        if not defer: free.append(reg[n])
        steps[n // 16] += g_
    kq = steps[3][-1][0] if late else steps[3][-2][0]
    steps[3] += late
    kq.mark = "KQ0"
    for k, t in enumerate((3, 2, 1, 0)):
        steps[k][0][0].mark = "S%d" % t; steps[k][-1][0].mark = "G%d" % t
    return first, steps

def oloads(l, j):
    st = stmp()
    L = ["s_add_u32 s%d, s%d, %d" % (st, sOL, O_OB[l & 1] + j * 4096)]
    L += ["buffer_load_dwordx4 %s, v%d, %s, s%d offen offset:%d %s" % (vr(vOBUF[j] + 4 * i, 4), vL16, WS, st, i * 1024, LD) for i in range(4)]
    return L
def emit_oloads(l, j):
    for x in oloads(l, j): e(x, tag="og%d" % j)

def resid():
    return [I("%s %s, %s, %s, 0" % (MF16, vr(vPACC + 4 * u, 4), vr(vID, 2), vr(vXOLD[u >> 1] + 2 * (u & 1), 2))) for u in range(4)]

def s3loads(l):
    return ["s_add_u32 s73, s%d, %d" % (sR, O_XB[l & 1] + 3 * 16384)] + \
        ["buffer_load_dwordx4 %s, v%d, %s, s73 offen offset:%d %s" % (vr(40 + 4 * j, 4), vSW, WS, j * 1024, LD) for j in range(4)]
def s3finish(l):
    loads = s3loads(l)
    for p in range(2):
        chk = tagchk(T[4], [40 + 8 * p + 3, 40 + 8 * p + 7], PX(l))
        emit_all(checked(loads if p == 0 else loads[3:5], W(("vm", "xs3_%d" % p)), None, None, chk=chk))
        if p == 0: lstamp(7)
        for j in (2 * p, 2 * p + 1):
            e("ds_write_b128 v%d, %s offset:%d" % (vSW, vr(40 + 4 * j, 4), L_X + 16384 + j * 1024), tag="xw3")

WRING = [80, 84, 96, 72, 76, 88, 92, 100]
def word(n): return I("ds_read_b128 %s, v%d offset:%d" % (vr(WRING[n % 8], 4), vL16b, n * 1024), tag="w%d" % n, gapmin=1)
def p2_early(l):
    rs = resid(); rs[0].after = ["V0"]
    w = [I("v_add_u32 v%d, %d, v%d" % (vL16b, L_WO[l & 1], vL16), after=["F0", "F1"])] + [word(n) for n in range(3)]
    return rs, w
def p2(l, cls, extra=None):
    def ocheck(j, js):
        regs = [vOBUF[j] + 4 * i + 3 for i in range(4)]
        re_ = [x for jj in js for x in oloads(l, jj)]
        return checked(re_, W(("vm", "og%d" % j)), None, None, chk=tagchk(T[4], regs, PO(l)), retry_wait=0 if cls else 4 * (len(js) - 1), mark="OK%d" % j)
    if cls is None:
        rs, w = p2_early(l)
        emit_all([w[0], rs[0], w[1], w[2], rs[1], w[3], rs[2], rs[3]])
    if cls == "lo":
        for n in range(3, 7): e.emit(word(n))
        e("s_waitcnt vmcnt(0)")
        emit_oloads(l, 0); emit_oloads(l, 1)
        lstamp(2)
    oc = ocheck(0, [0, 1, 2] if cls is None else [0])
    if cls == "lo": emit_all(oc)
    else:
        emit_all(oc[:-2])
        for n in range(3, 7): e.emit(word(n))
        emit_all(oc[-2:])
    lstamp(4)
    e.emit(W(("lg", "w0")))
    stamp("p2start")
    order = [(n // 4, n % 4) for n in range(56)] + [(14, 0), (14, 1), (15, 0), (15, 1), (14, 2), (14, 3), (15, 2), (15, 3)]
    main = []
    for n, (ks, u) in enumerate(order):
        j = n // 16
        m = I("%s %s, %s, %s, %s" % (MF32, vr(vPACC + 4 * u, 4), vr(WRING[n % 8], 4), vr(vOBUF[j] + 4 * (ks % 4), 4), vr(vPACC + 4 * u, 4)))
        att = []
        if n + 7 < 64:
            x = word(n + 7); k2, u2 = order[n + 7]
            x = I(x.text.rsplit("offset:", 1)[0] + "offset:%d" % ((4 * k2 + u2) * 1024), tag=x.tag)
            att.append(x)
        if n + 1 < 64 and n % 2 == 0: att.append(W(("lg", "w%d" % min(n + 2, 63))))
        if n % 16 == 0: m.need = ["OK%d" % j]
        if n % 16 == 15: m.mark = "PG%d" % j
        if n == 59: m.mark = "PH0"
        if extra and n == 13: att.append(I("s_barrier"))
        main.append((m, att))
    g2 = [I(x, tag="og2", gapmin=16, lat=420) for x in oloads(l, 2)] if cls else []
    g3 = [I(x, tag="og3", gapmin=16, lat=420) for x in oloads(l, 3)]
    for x in g2 + g3 + (extra or []): x.patience = 0
    g3[0].after = ["PG0"]; g3[-1].mark = "G3I"
    chain = g2 + ocheck(1, [1]) + g3 + ocheck(2, [2]) + ocheck(3, [3])
    extra = extra or []
    if extra: extra[0].after = ["G3I"]
    if cls == "lo" and l < 3:
        sl = [I(x, tag="xs3_%d" % max(0, (k - 1) // 2), gapmin=16) for k, x in enumerate(s3loads(l + 1))]
        for x in sl: x.patience = 0
        sl[0].after = ["PX"]; main[OPT["lox"]][0].mark = "PX"; sl[-1].mark = "XL3"; main[63][0].need = ["XL3"]
        chain += sl
    run(e, main, [chain, extra], drain=False, tol=OPT["p2tol"])
    assert not chain
    st = stmp()
    if l < 3: e("s_add_u32 s%d, s%d, %d" % (st, sXP, O_XB[(l + 1) & 1]))
    for k in range(2):
        for i in (3, 0, 1, 2):
            e("v_cvt_pk_bf16_f32 v%d, v%d, v%d" % (vXOLD[k] + i, vPACC + 8 * k + 2 * i, vPACC + 8 * k + 2 * i + 1))
        if l < 3:
            if cls != "lo": e(tagop(vXOLD[k] + 3, vXOLD[k] + 3, PX(l + 1)))
            e("buffer_store_dwordx4 %s, v%d, %s, s%d offen offset:%d %s" % (vr(vXOLD[k], 4), vL16, WS, st, k * 1024, ST), tag="xst")
        else:
            e("buffer_store_dwordx4 %s, v%d, %s, 0 offen offset:%d" % (vr(vXOLD[k], 4), vXO, sr(sOUT, 4), 64 * k))
    if l < 3 and cls != "lo":
        for k in range(2): e("v_cvt_pk_bf16_f32 v%d, v%d, v%d" % (vXOLD[k] + 3, vPACC + 8 * k + 6, vPACC + 8 * k + 7))
    stamp("xpub")
    lstamp(5)
    if l == 3: ldump(9)
    if l == 3:
        stamp("rt1", real=True)
        if OPT.get("echo"):
            lb = lab("spin")
            e(f"""
            s_memrealtime s[72:73]
            s_waitcnt lgkmcnt(0)
            s_sub_u32 s74, s0, s90
            s_min_u32 s74, s74, 10000
            {lb}:
            s_memrealtime s[76:77]
            s_waitcnt lgkmcnt(0)
            s_sub_u32 s75, s76, s72
            s_cmp_lt_u32 s75, s74
            s_cbranch_scc1 {lb}
            """)
        e(f"""
        s_or_b32 s72, s2, s{sW}
        s_cbranch_scc1 L_end
        v_mov_b32 v0, s{sN1}
        s_mov_b32 s72, {EPOCH}
        s_mov_b64 exec, 1
        buffer_store_dword v0, v{vL16}, {WS}, s72 offen sc1
        s_endpgm
        """)
        return
    if extra: flush(e, [extra])
    ps = pubstats_stream(l + 1)
    if cls == "lo":
        emit_all(ps[:8])
        s3finish(l + 1)
        emit_all(ps[8:-1])
        e("s_waitcnt vmcnt(0)")
        e.emit(ps[-1])
    else:
        emit_all(ps[:-1])
        e.emit(W(("vm", "xst")))
        for k, x in enumerate(s3loads(l + 1)): e(x, tag="xs3_%d" % max(0, (k - 1) // 2))
        e.emit(ps[-1])
        lstamp(6)
        s3finish(l + 1)
    e("s_waitcnt lgkmcnt(0)")
    lstamp(8)
    return extra

def p1(l, carry=None):
    typ = l & 1; a0, a1 = vACC
    e.marks = {}
    if l == 1: e.emit(W(("vm", "bc11")))
    e("s_barrier", mark="B3")
    stamp("B3")
    stamp("cnt")
    jit = l == 1
    first, steps = p1_main(typ, jit)
    emit_all(first)
    sld, stg = stage_streams(l)
    def ep(t, after): return [W(("lg", "st%d" % t), after=after)] + epi(N, typ, t)
    ch = stats(l) + statreads(3, ["B2"]) + statreads(2)
    if jit:
        c = cs_compact(1, a0); c[0].after = ["G3", "S2"]
        ch += c
    ch += ep(3, ["G3"]) + statreads(1) + kvpub(N, l, a1) + ep(2, ["G2"]) + statreads(0) + ep(1, ["G1", "A3"])
    [x for x in ch if x.tag == "kvst"][0].after = ["xl1"]
    if l < 3: ch.insert([i for i, x in enumerate(ch) if x.tag == "kvst"][0], W(("vm", "kvinit")))
    ch2 = epi_kq(N, typ, 0, after=["KQ0", "F2", "V1"])
    ch3 = epi_v(N, typ, 0, after=["G0", "PV2"])
    for x in ch3: x.lazy = True
    at = attn(N, l, 3, a0, T[0], ["K2"], ["Q2"], ["V2"]) + attn(N, l, 2, a1, T[2], ["K1"], ["Q1"], ["V1"])
    at1 = attn(N, l, 1, a1, T[0], ["K0", "A2"], [], ["V0"])
    at0 = halo(N, l, ("S1", OPT["hd"])) + attn(N, l, 0, a0, T[2], ["K0"], ["Q0", "A2"], ["V0"])
    at0[0].after = ["xl0"]
    sides = [stg, sld, ch, at, ch2, at1, at0, ch3]
    emit_all(sld[:3] + ch[:5] + sld[3:4] + ch[5:13] + sld[4:5]); del sld[:5]; del ch[:13]
    e.t_mem["vmem"] = e.t
    if jit:
        for i in range(4): e("v_mov_b32 v%d, 0x3f803f80" % (88 + i))
        q = 92
        sv = breads(7) + breads(8) + [W(("lg", "br8")), I("s_barrier")] + bchunk(12, 16) + bchunk(13, 16) \
            + breads(9) + breads(10) + [W(("lg", "br10")), I("s_barrier")] + bchunk(14, 16) + bchunk(15, 16) + breads(11) \
            + [W(("vm", "bc13")), I("s_barrier")] + breads(12) + breads(13) + [W(("vm", "bc15")), I("s_barrier")] + breads(14) + breads(15) \
            + [W(("lg", "br15")), I("s_barrier", mark="BD")]
        for x in sv: x.patience = 0
        fl = ones_q(q) + fillkv(2 * 0x8000, q); fl[0].after = ["BC15"]
        f2 = ["s_lshl_b32 s77, s%d, 9" % sHG, "s_add_u32 s77, s77, %d" % FL2, "v_lshrrev_b32 v94, 1, v%d" % vL16,
              "buffer_load_dwordx2 v[92:93], v94, %s, s77 offen sc1" % WS]
        c2 = ["v_xor_b32 v94, s%d, v92" % sN1, "v_xor_b32 v95, s%d, v93" % sN2, "v_lshrrev_b32 v95, 8, v95", "v_or_b32 v94, v94, v95", "v_cmp_ne_u32 vcc, 0, v94"]
        fl[-1].mark = "S2"
        fl = [I(x, tag="f2", lat=600, after=["xl2"]) for x in f2] + checked(f2, W(("vm", "f2")), None, None, chk=c2) + fl
        wd = wobdma(0, 40) + wobdma(1, 40) + wobdma(2, 40) + wobdma(3, 40); wd[0].after = ["BD"]
        ex = fl + wd
        ex[-1].mark = "WOB"
        sides.insert(2, sv)
        sides.append(ex)
        [x for x in sld if x.after == ["B1"]][0].after = ["B1", "WOB"]
        [x for x in sld if x.after == ["B2"]][0].after = ["B2", "BC15"]
    if l == 2:
        du = ones_q(0) + fillkv(3 * 0x8000, 0)
        du[4].after = ["xl2", "sll"]; du[-1].mark = "DK"
        sides.append(du)
        [x for x in ch if x.waitspec and ("vm", "kvinit") in x.waitspec][0].after = ["DK"]
    e.emit(W(("lg", "f0")))
    steps[1][0][0].need = ["CS"] if jit else []
    steps[2][0][0].need = ["KVP"]
    steps[3][0][0].need = ["A3"]
    for k, nm in enumerate(("s3", "s2", "s1", None)):
        run(e, steps[k], sides, drain=False, memgap=OPT["lgap"], tol=float(OPT["tol"].split("/")[k]))
        if nm: stamp(nm)
    rs, w = p2_early(l)
    pf = []
    for j in (0, 1):
        L = oloads(l, j)
        pf.append(I(L[0]))
        for h in (0, 1):
            pf += [I("s_mov_b64 exec, %s" % sr(sHX, 2), glue=True, gapmin=OPT["pgap"]), I(L[1 + 2 * h], tag="og%d" % j, glue=True),
                   I(L[2 + 2 * h], tag="og%d" % j, glue=True), I("s_mov_b64 exec, -1")]
            pf[-4].kind2 = "vmem"
    pf[0].delay = ("A2", OPT["pfd"]); pf[0].after = ["H"]
    for x in rs + w: x.lazy = True
    flush(e, [pf] + sides, until="Q0")
    flush(e, [pf] + sides + [rs, w], longest=True, first=pf)

def layer(l, carry=None):
    CURL[0] = l
    p1(l, carry)
    stamp("E"); lstamp(0)
    llo, ljoin = lab("lo"), lab("join")
    e("s_cmp_lt_u32 s%d, 2" % sW)
    e("s_cbranch_scc1 " + llo)
    snap = (list(e.vm), list(e.lg), dict(e.marks), e.t, e.t_valu, e.t_mfma, dict(e.t_mem), e.vcc_pending)
    ctx = e.out[-30:]
    ns = len(stamp_names)
    main_out = e.out
    e.out = list(ctx)
    e(llo + ":")
    p2(l, "lo")
    if l < 3: e("s_branch " + ljoin)
    o = Emitter(); o.out = e.out[len(ctx):]
    ool.append(o.text(OPT["times"]))
    del stamp_names[ns:]
    e.out = main_out
    e.vm, e.lg, e.marks, e.t, e.t_valu, e.t_mfma, e.t_mem, e.vcc_pending = snap
    p2(l, "hi")
    if l < 3:
        e(ljoin + ":")
        e.vm = []; e.lg = []

def wchunk(i, after=None):
    s = [I("s_add_u32 s72, s%d, %d" % (sROT, i), after=after), I("s_and_b32 s72, s72, 15"), I("s_mul_i32 s72, s72, 98304"),
         I("s_add_u32 m0, s%d, %d" % (sW3K, slot(i)))]
    s += [I("buffer_load_dwordx4 v%d, %s, s72 offen offset:%d lds" % (zWV, sr(sWA, 4), j * 1024), tag="wc%d" % i, lat=1) for j in range(3)]
    s[-1].mark = "WC%d" % i
    return s
def xslab(sl):
    s = [I("s_lshl_b32 s73, s%d, 6" % sROT), I("s_add_u32 s73, s73, %d" % (256 * sl)), I("s_and_b32 s73, s73, 1023"),
         I("s_add_u32 s73, s73, s%d" % sXBASE)]
    for t in range(4):
        s += [I("s_add_u32 m0, s%d, %d" % (sW1K, L_WO[1] + sl * 16384 + t * 4096)),
              I("buffer_load_dwordx4 v%d, %s, s73 offen lds" % (zXV, sr(sX, 4)), tag="xl%d" % sl, lat=1)]
        if t < 3: s.append(I("s_add_u32 s73, s73, 32768"))
    s[-1].mark = "XL%d" % sl
    return s
def stream(text):
    L = [x.strip() for x in text.strip().split("\n")]
    L = [I(x) for x in L if x and not x.startswith(";")]
    for a, b in zip(L, L[1:]):
        if b.mn.startswith("s_cselect"): a.glue = True
    return L

def prologue():
    rot = {0: "s_mov_b32 s%d, 0" % sROT,
           1: "s_lshl_b32 s%d, s3, 2" % sROT,
           2: "s_and_b32 s94, s2, 3\n s_lshl_b32 s%d, s94, 2" % sROT,
           3: "s_and_b32 s94, s3, 1\n s_lshl_b32 s94, s94, 1\n s_add_u32 s94, s94, s2\n s_and_b32 s94, s94, 3\n s_lshl_b32 s%d, s94, 2" % sROT,
           }[OPT["rot"]]
    if OPT.get("echo"): e("s_memrealtime s[90:91]")
    e(f"""
    s_load_dwordx4 s[76:79], s[0:1], 0
    s_load_dwordx2 s[82:83], s[0:1], 64
    s_load_dwordx2 s[80:81], s[0:1], 16
    s_load_dwordx4 s[84:87], s[0:1], 32
    s_load_dwordx2 s[88:89], s[0:1], 48
    s_cmp_ge_u32 s2, 256
    s_cbranch_scc1 L_end
    v_lshrrev_b32 v1, 6, v0
    v_and_b32 v0, 63, v0
    v_readfirstlane_b32 s{sW}, v1
    s_lshr_b32 s3, s2, 3
    s_getpc_b64 s[96:97]
    L_pc:
    s_mov_b32 s98, L_slow-L_pc
    s_mov_b32 s99, 0x00020000
    s_lshl_b32 s94, s3, 11
    s_cmp_eq_u32 s{sW}, 2
    s_cbranch_scc0 L_nocp
    """)
    e.begin_cond()
    e(f"""
    v_lshlrev_b32 v1, 5, v0
    buffer_load_dword v{vDUM}, v1, s[96:99], s94 offen
    """)
    e.end_cond()
    e(f"""
    L_nocp:
    s_add_u32 s{sHG}, s3, {OPT['hgo']}
    s_and_b32 s{sHG}, s{sHG}, 7
    s_lshr_b32 s3, s3, 3
    s_and_b32 s{sC}, s2, 7
    s_lshl_b32 s{sC}, s{sC}, 2
    s_add_u32 s{sC}, s{sC}, s3
    s_and_b32 s{sB}, s{sC}, 15
    {rot}
    v_and_b32 v2, 15, v0
    v_lshrrev_b32 v3, 4, v0
    v_lshlrev_b32 v{vL16}, 4, v0
    ; ---- x0 DMA voffset: i = 4w + g ; i*2048 + ((n ^ i) << 4)
    s_lshl_b32 s94, s{sW}, 2
    v_add_u32 v1, s94, v3
    v_xor_b32 v4, v1, v2
    v_lshlrev_b32 v4, 4, v4
    v_lshl_add_u32 v{zXV}, v1, 11, v4
    s_lshl_b32 s{sXBASE}, s{sB}, 7
    s_lshr_b32 s95, s{sC}, 4
    s_add_u32 s{sXBASE}, s{sXBASE}, s95
    s_lshl_b32 s{sXBASE}, s{sXBASE}, 10
    s_lshl_b32 s94, s{sW}, 3
    v_lshrrev_b32 v1, 3, v0
    v_add_u32 v{zUV}, s94, v1
    v_and_b32 v4, 1, v3
    v_lshlrev_b32 v4, 1, v4
    s_and_b32 s94, s{sW}, 1
    s_lshl_b32 s94, s94, 2
    v_or_b32 v4, s94, v4
    v_and_b32 v5, 7, v0
    v_xor_b32 v4, v4, v5
    v_lshlrev_b32 v4, 4, v4
    s_lshl_b32 s95, s{sHG}, 7
    v_mul_u32_u24 v{zWV}, 3072, v{zUV}
    v_add3_u32 v{zWV}, v{zWV}, v4, s95
    s_mul_i32 s{sW3K}, s{sW}, 3072
    s_lshl_b32 s{sW1K}, s{sW}, 10
    s_mul_i32 s{sR}, s{sC}, {CS}
    s_add_u32 s{sR}, s{sR}, {HB}
    s_lshl_b32 s{sWL}, s{sW}, 14
    s_add_u32 s{sOL}, s{sR}, s{sWL}
    s_lshl_b32 s3, s{sHG}, 1
    s_sub_u32 s74, s3, s{sROT}
    s_and_b32 s74, s74, 15
    s_lshl_b32 s74, s74, 10
    s_add_u32 s{sXP}, s{sOL}, s74
    s_lshl_b32 s3, s3, 10
    s_add_u32 s{sOI}, s{sOL}, s3
    s_lshl_b32 s74, s{sHG}, 2
    s_add_u32 s74, s74, s{sW}
    s_lshl_b32 s75, s74, 10
    s_add_u32 s{sKVO}, s{sR}, s75
    s_add_u32 s{sKVO}, s{sKVO}, {O_KV}
    s_lshl_b32 s101, s74, 7
    s_add_u32 s101, s101, s{sR}
    s_add_u32 s101, s101, {O_SB[0]}
    s_add_u32 s72, s{sOI}, {O_OB[0]}
    s_add_u32 s73, s{sKVO}, 0x8000
    v_lshlrev_b32 v{vSS}, 1, v0
    v_mov_b32 v{vACC[0]}, -1
    v_mov_b32 v{vACC[0]+1}, -1
    v_mov_b32 v{vACC[0]+2}, -1
    v_mov_b32 v{vACC[0]+3}, -1
    ; first touch (one dword per 128B line, distinct over the chip): w0 W_A, w1 W_B, w2 woA, w3 x rows 8hg..8hg+7
    s_lshl_b32 s94, s{sHG}, 14
    s_add_u32 s94, s94, s{sXBASE}
    s_mul_i32 s95, s2, 6144
    s_lshl_b32 s100, s2, 11
    s_movk_i32 s74, 96
    s_cmp_eq_u32 s{sW}, 2
    s_cselect_b32 s95, s100, s95
    s_cselect_b32 s74, 32, s74
    s_cmp_eq_u32 s{sW}, 3
    s_cselect_b32 s94, s94, s95
    s_cselect_b32 s74, 128, s74
    s_cselect_b32 s75, 1024, 0
    v_mul_u32_u24 v1, s75, v1
    v_mul_u32_u24 v4, s74, v0
    v_add_u32 v1, v1, v4
    s_mov_b32 s{sX+2}, 0x200000
    s_mov_b32 s{sX+3}, 0x00020000
    s_mov_b32 s{sWA+2}, 0x180000
    s_mov_b32 s{sWA+3}, 0x00020000
    s_mov_b32 s{sWS+2}, {0x2100000 if OPT['stamps'] else WS_SIZE}
    s_mov_b32 s{sWS+3}, 0x00020000
    s_mov_b32 s{sOUT+2}, 0x200000
    s_mov_b32 s{sOUT+3}, 0x00020000
    s_waitcnt lgkmcnt(0)
    s_mov_b64 {sr(sX,2)}, s[76:77]
    s_mov_b64 {sr(sWA,2)}, s[78:79]
    s_add_u32 s82, s82, {OPT["wsoff"]}
    s_addc_u32 s83, s83, 0
    s_mov_b64 {sr(sWS,2)}, s[82:83]
    s_cmp_eq_u32 s{sW}, 1
    s_cselect_b64 s[96:97], s[84:85], s[78:79]
    s_mov_b32 s98, 0x180000
    s_cmp_eq_u32 s{sW}, 2
    s_cselect_b64 s[96:97], s[80:81], s[96:97]
    s_cselect_b32 s98, 0x80000, s98
    s_cmp_eq_u32 s{sW}, 3
    s_cselect_b64 s[96:97], s[76:77], s[96:97]
    s_cselect_b32 s98, 0x200000, s98
    """)
    if OPT.get("echo"): stamp("start")
    if OPT["stamps"]:
        e(f"""
        s_lshl_b32 s92, s2, 2
        s_add_u32 s92, s92, s{sW}
        s_lshl_b32 s92, s92, 8
        s_add_u32 s92, s92, {STAMP_OFF}
        """)
        if OPT.get("dbgst"):
            e(f"""
            s_load_dwordx2 s[100:101], s[0:1], 56
            s_waitcnt lgkmcnt(0)
            s_lshl_b32 s95, s2, 2
            s_add_u32 s95, s95, s{sW}
            s_mov_b64 s[0:1], s[82:83]
            s_cmp_eq_u32 s95, {4 * OPT["dbgst"]}
            s_cselect_b64 s[0:1], s[100:101], s[0:1]
            s_cselect_b32 s92, 0, s92
            s_cmp_eq_u32 s95, {4 * OPT["dbgs2"]}
            s_cselect_b64 s[0:1], s[100:101], s[0:1]
            s_cselect_b32 s92, 32, s92
            """)
        stamp("rt0", real=True)
        stamp("start")
    t1 = "buffer_load_dword v%d, v1, s[96:99], s94 offen" % vDUM
    q = vr(vACC[0], 4)
    ini = [f"buffer_store_dwordx4 {q}, v{vL16}, {WS}, s72 offen sc1", f"buffer_store_dwordx4 {q}, v{vL16}, {WS}, s72 offen offset:1024 sc1",
           f"buffer_store_dwordx4 {q}, v{vL16}, {WS}, s{sXP} offen sc1", f"buffer_store_dwordx4 {q}, v{vL16}, {WS}, s{sXP} offen offset:1024 sc1",
           f"buffer_store_short v{vACC[0]}, v{vSS}, {WS}, s101 offen sc1", f"buffer_store_dwordx4 {q}, v{vL16}, {WS}, s73 offen sc1"]
    if OPT["tfirst"]: e(t1, tag="t1")
    for k in ((0, 1, 4) if OPT["ini2"] else range(6)): e(ini[k], tag="kvinit")
    emit_all(xslab(0) + wchunk(0))
    if not OPT["tfirst"]: e(t1, tag="t1")
    e(f"""
    ; second touch. Lines at 3 mod 8 stream slowly from beyond L2, so every CU pulls a share of that column group into
    s_lshr_b32 s94, s96, 7
    s_sub_u32 s94, 3, s94
    s_and_b32 s94, s94, 7
    s_lshl_b32 s94, s94, 7
    s_lshr_b32 s95, s2, 3
    s_cmp_eq_u32 s{sW}, 2
    s_cselect_b32 s74, 15, 47
    s_add_u32 s75, s74, 1
    s_mul_i32 s95, s95, s75
    s_lshl_b32 s95, s95, 10
    s_add_u32 s94, s94, s95
    s_cmp_eq_u32 s{sW}, 3
    s_cselect_b64 s[96:97], s[86:87], s[96:97]
    s_cselect_b32 s98, 0x80000, s98
    s_cselect_b32 s94, s100, s94
    s_cselect_b32 s74, 15, s74
    s_cselect_b32 s75, 7, 10
    s_cmp_eq_u32 s{sW}, {1 if not OPT["h3b"] else 9}
    s_cselect_b32 s98, 0, s98
    v_min_u32 v1, s74, v0
    v_lshlrev_b32 v1, s75, v1
    buffer_load_dword v{vDUM}, v1, s[96:99], s94 offen
    s_add_u32 s82, s82, {EPOCH}
    s_addc_u32 s83, s83, 0
    s_load_dword s{sN1}, s[82:83], 0
    """)
    emit_all(wchunk(1))
    e(f"""
    s_mov_b64 {sr(sOUT,2)}, s[88:89]
    s_mov_b64 {sr(sU1,2)}, s[86:87]
    s_mov_b32 s{sU1+2}, 0x80000
    s_mov_b32 s{sU1+3}, 0x00020000
    s_mov_b64 {sr(sWOA,2)}, s[80:81]
    s_mov_b32 s{sWOA+2}, 0x80000
    s_mov_b32 s{sWOA+3}, 0x00020000
    s_mov_b64 {sr(sWBP,2)}, s[84:85]
    v_lshlrev_b32 v1, 8, v2
    v_add_u32 v1, {L_WO[1]}, v1
    s_lshl_b32 s3, s{sW}, 12
    """)
    for m in range(4):
        e(f"""
        v_or_b32 v4, {4*m}, v3
        v_xor_b32 v4, v4, v2
        v_lshl_add_u32 v{zA+m}, v4, 4, v1
        v_add_u32 v{zAO+m}, s3, v{zA+m}
        v_mov_b32 v{zONE+m}, 0x3f803f80
        """)
    e(f"""
    v_bfe_u32 v1, v0, 2, 2
    v_lshrrev_b32 v4, 1, v1
    v_and_b32 v5, 1, v3
    v_lshl_or_b32 v4, v5, 1, v4
    v_xor_b32 v4, s{sW}, v4
    v_lshlrev_b32 v4, 5, v4
    v_and_b32 v5, 3, v0
    v_lshl_add_u32 v4, v5, 3, v4
    v_lshl_add_u32 v4, v1, 7, v4
    v_mul_u32_u24 v{zTR}, 3072, v3
    v_add_u32 v{zTR}, v4, v{zTR}
    v_add_u32 v{zTR+1}, 49152, v{zTR}
    """)
    e("s_waitcnt lgkmcnt(0)")
    C = consts()
    c0 = OPT["c0"]
    while C[c0 - 1].glue: c0 += 1
    emit_all(C[:c0]); emit_all(wchunk(2)); emit_all(C[c0:]); emit_all(wchunk(3))
    stamp("issued")

def consts():
    t = f"""
    s_lshl_b32 s74, s{sHG}, 3
    s_add_u32 s3, s{sW1K}, s74
    v_lshlrev_b32 v1, 6, v2
    v_add_u32 v1, s3, v1
    v_mov_b32 v4, 0x7ffffff0
    s_mov_b32 s74, 0x00f0000f
    s_mov_b32 s75, 0xf0000f00
    v_cndmask_b32 v{vSS}, v4, v1, s[74:75]
    """
    a = stream(t); a[-1].mark = "C1"
    a2 = stream(f"""
    s_mul_i32 s{sN1}, s{sN1}, 0x9e3779b1
    s_add_u32 s{sN1}, s{sN1}, 0x7f4a7c15
    s_mul_i32 s{sN2}, s{sN1}, 0x85ebca6b
    s_and_b32 s{sN2}, s{sN2}, 0xffffff00
    s_getreg_b32 s3, hwreg(HW_REG_XCC_ID, 0, 4)
    s_or_b32 s{sN2}, s{sN2}, s3
    v_mov_b32 v{zFL}, s{sN1}
    v_mov_b32 v{zFL+1}, s{sN2}
    s_lshl_b32 s{sFO1}, s{sC}, 3
    s_add_u32 s{sFO1}, s{sFO1}, s{sHG}
    s_lshl_b32 s{sFO1}, s{sFO1}, 4
    s_add_u32 s{sFO1}, s{sFO1}, {FL1}
    s_cmp_eq_u32 s{sW}, 3
    s_cselect_b32 s{sFO1}, s{sFO1}, 0x7f000000
    v_and_b32 v{zST+3}, 0x70, v{vL16}
    """); a2[-1].mark = "CF"
    t = f"""
    v_mov_b32 v4, 0x3f80
    v_and_b32 v1, 1, v0
    v_lshlrev_b32 v1, 4, v1
    v_lshlrev_b32 v1, v1, v4
    s_and_b32 s76, s74, 0x33333333
    s_and_b32 s77, s75, 0x33333333
    v_cndmask_b32 v{vID}, 0, v1, s[76:77]
    s_xor_b64 s[76:77], s[76:77], s[74:75]
    v_cndmask_b32 v{vID+1}, 0, v1, s[76:77]
    """
    b0 = stream(t)
    t = f"""
    ; ---- wo DMA voffset: (lane>>3)*1024 + hg*128 + ((lane&7) ^ ((g&1)<<2))*16
    v_and_b32 v1, 1, v3
    v_lshlrev_b32 v1, 2, v1
    v_and_b32 v4, 7, v0
    v_xor_b32 v1, v1, v4
    v_lshlrev_b32 v1, 4, v1
    v_lshrrev_b32 v4, 3, v0
    v_lshlrev_b32 v4, 10, v4
    s_lshl_b32 s3, s{sHG}, 7
    v_add3_u32 v{zOV}, v4, v1, s3
    v_bfe_u32 v1, v0, 2, 2
    v_lshl_add_u32 v1, v3, 3, v1
    v_lshlrev_b32 v1, 7, v1
    v_and_b32 v4, 3, v0
    v_lshl_add_u32 v1, v4, 4, v1
    v_bfe_u32 v4, v0, 3, 1
    v_lshl_add_u32 v1, v4, 6, v1
    s_lshl_b32 s3, s{sW}, 12
    v_add_u32 v{vSW}, s3, v{vL16}
    s_add_u32 s3, s3, {L_WO[0]}
    v_add_u32 v{zTA}, s3, v1
    v_xor_b32 v{zTA+1}, 64, v{zTA}
    v_add_u32 v{zTA+2}, {L_WO[0]}, v{vSW}
    s_lshr_b32 s3, s{sW}, 1
    s_lshl_b32 s3, s3, 6
    s_and_b32 s74, s{sW}, 1
    s_lshl_b32 s75, s74, 3
    v_and_b32 v4, 1, v3
    v_xor_b32 v4, 1, v4
    v_lshlrev_b32 v4, 14, v4
    v_lshl_add_u32 v4, v2, 4, v4
    v_lshrrev_b32 v5, 1, v3
    v_lshl_add_u32 v4, v5, 8, v4
    s_lshl_b32 s76, s74, 9
    v_add_u32 v{vOS}, s76, v4
    s_add_u32 s3, s3, s75
    v_xor_b32 v{zUA}, s3, v1
    s_lshl_b32 s{sUS}, s{sB}, 2
    s_add_u32 s{sUS}, s{sUS}, s{sW}
    s_lshl_b32 s{sUD}, s{sHG}, 6
    s_add_u32 s{sUD}, s{sUD}, s{sUS}
    s_lshl_b32 s{sUS}, s{sUS}, 13
    s_lshl_b32 s{sFO2}, s{sUD}, 3
    s_add_u32 s{sFO2}, s{sFO2}, {FL2}
    s_lshl_b32 s{sUD}, s{sUD}, 10
    s_lshr_b32 s3, s{sC}, 4
    s_lshr_b32 s75, s{sW}, 1
    s_cmp_eq_u32 s3, s75
    s_cselect_b32 s{sUD}, s{sUD}, 0x7f000000
    s_cselect_b32 s{sFO2}, s{sFO2}, 0x7f000000
    s_lshl_b32 s{sF2}, s74, 13
    s_add_u32 s{sF}, s{sR}, s{sF2}
    s_mov_b32 s{sBUD}, 0x20000
    s_mov_b32 s{sSCALE}, {fbits(0.25 * 1.4426950408889634)}
    s_lshl_b32 s74, s{sHG}, 2
    s_add_u32 s74, s74, s{sW}
    s_cmp_eq_u32 s{sB}, 0
    s_cselect_b32 s{sHBIAS}, 0xff800000, 0
    s_cselect_b32 s3, 0, {CS}
    s_sub_u32 s{sKVI}, s{sKVO}, s3
    s_lshr_b32 s3, s74, 1
    s_lshl_b32 s3, s3, 10
    s_add_u32 s{sOP}, s{sR}, s3
    s_cmp_eq_u32 s{sW}, 3
    s_cselect_b32 s{sWL2}, 0x10000, s{sWL}
    s_lshl_b32 s{sWOT}, s{sHG}, 16
    s_add_u32 s{sWOT}, s{sWOT}, s{sWL}
    s_lshl_b32 s3, s{sW}, 15
    s_add_u32 s3, s3, s{sXBASE}
    s_lshl_b32 s74, s{sHG}, 7
    s_add_u32 s3, s3, s74
    v_lshlrev_b32 v1, 11, v2
    v_lshlrev_b32 v4, 4, v3
    v_add3_u32 v{vXO}, v1, v4, s3
    v_and_b32 v1, 31, v0
    v_lshrrev_b32 v4, 5, v0
    v_lshlrev_b32 v1, 6, v1
    v_lshl_add_u32 v{vSL}, v4, 5, v1
    """
    c = stream(t); c[-1].mark = "C3"
    t = f"""
    v_lshlrev_b32 v1, 2, v3
    v_sub_u32 v1, v2, v1
    v_mov_b32 v5, 0xff800000
    v_mov_b32 v{vONES}, 0x3f803f80
    v_mov_b32 v{vONES+1}, 0x3f803f80
    """
    for r in range(4):
        t += f"""
        v_cmp_le_i32 {sr(sM+2*r,2)}, {r}, v1
        v_subrev_u32 v4, {r}, v1
        v_cmp_gt_u32 s[74:75], 8, v4
        v_cmp_gt_i32 s[76:77], -8, v4
        s_or_b64 s[74:75], s[76:77], s[74:75]
        v_cndmask_b32_e64 v{vBIAS+r}, v5, 0, s[74:75]
        """
    t += f"""
    v_mov_b32 v4, 0xffff
    v_mov_b32 v5, 0xffff0000
    v_cndmask_b32 v{vPM}, 0, v4, {sr(sM,2)}
    v_cndmask_b32 v1, 0, v5, {sr(sM+2,2)}
    v_or_b32 v{vPM}, v{vPM}, v1
    v_cndmask_b32 v{vPM+1}, 0, v4, {sr(sM+4,2)}
    v_cndmask_b32 v1, 0, v5, {sr(sM+6,2)}
    v_or_b32 v{vPM+1}, v{vPM+1}, v1
    ; layer-0 halo messages: tags and zero fill
    v_mov_b32 v74, s{sN1}
    v_mov_b32 v75, s{sN1}
    v_mov_b32 v76, s{sN1}
    v_mov_b32 v77, s{sN1}
    v_mov_b32 v80, 0
    v_mov_b32 v81, 0
    v_mov_b32 v82, s{sN1}
    v_mov_b32 v84, s{sN1}
    v_mov_b32 v86, 0
    v_mov_b32 v87, 0
    ; statistics exchange addresses
    v_lshlrev_b32 v{zST}, 3, v2
    s_lshl_b32 s3, s{sW}, 7
    v_add_u32 v{zST+1}, s3, v{zST}
    v_and_b32 v4, 0x18, v{zST}
    v_lshl_add_u32 v{zST+2}, v3, 5, v4
    v_mov_b32 v{vBV}, v{zWV}
    v_add_u32 v{vBT}, {L_WO[1]}, v{zTR}
    v_mov_b32 v2, v{zTR}
    """
    d = stream(t); d[-1].mark = "C4"
    return a + b0 + a2 + c + d
zST = 68

def reads0(i):
    s = []
    a = zTR + (1 if slot(i) >= 49152 else 0); base = slot(i) - (49152 if slot(i) >= 49152 else 0)
    xb = zXB[i & 1]
    for j in range(3):
        for e2 in range(2):
            s.append(I("ds_read_b64_tr_b16 %s, v%d offset:%d" % (wreg(0, 3 * i + j, e2), a, base + j * 1024 + e2 * 512), tag="r%d" % i))
    for t in range(4):
        s.append(I("ds_read_b128 %s, v%d offset:%d" % (vr(xb + 4 * t, 4), zA + (i & 3), t * 4096 + (i >> 2) * 16384), tag="r%d" % i))
    s.append(I("ds_read_b128 %s, v%d offset:%d" % (vr(xb + 16, 4), zAO + (i & 3), (i >> 2) * 16384), tag="r%d" % i))
    if i >= 2: s[6].after = ["M%d" % (i - 2)]
    return s
def mfmas0(i):
    xb = zXB[i & 1]; out = []
    def acc(a): return vr(a, 4) if i else "0"
    out += cs_mfma(0, i, zCS, zONE)
    for t in range(4):
        for j in range(3):
            w = wreg(0, 3 * i + j); x = vr(xb + 4 * t, 4); a = Z.acc(t) + 4 * j
            A, B = (w, x) if j < 2 else (x, w)
            out.append(I("%s %s, %s, %s, %s" % (MF32, vr(a, 4), A, B, acc(a))))
    x = vr(xb + 16, 4)
    out.append(I("%s %s, %s, %s, %s" % (MF32, vr(zG, 4), x, x, acc(zG))))
    out.append(I("%s %s, %s, %s, %s" % (MF32, vr(zR, 4), vr(zONE, 4), x, acc(zR))))
    out[0].need = ["R%d" % i]; out[-1].mark = "M%d" % i
    return [(m, []) for m in out]

def f1load(): return ["s_lshl_b32 s72, s%d, 7" % sC, "s_add_u32 s72, s72, %d" % FL1,
                      "buffer_load_dwordx2 %s, v%d, %s, s72 offen sc1" % (vr(zF1, 2), zST + 3, WS)]
def f2load(): return ["s_lshl_b32 s75, s%d, 10" % sHG, "s_add_u32 s75, s75, %d" % FL2,
                      "buffer_load_dwordx4 %s, v%d, %s, s75 offen sc1" % (vr(zF2, 4), vL16, WS)]
def lane0_store(sreg, **kw):
    return [I("s_mov_b64 exec, 1", glue=True, **kw),
            I("buffer_store_dwordx2 %s, v%d, %s, s%d offen sc1" % (vr(zFL, 2), vL16, WS, sreg), tag="fst", glue=True),
            I("s_mov_b64 exec, -1")]
def gemm0():
    q = vACC[0]; U = vSTG
    e.emit(W(("vm", "wc0")))
    e("s_barrier")
    stamp("x0")
    emit_all(reads0(0))
    emit_all(wchunk(4) + xslab(1))
    def groups(L):
        out = [[]]
        for x in L:
            out[-1].append(x)
            if x.kind in ("vmem", "ds") and not getattr(x, "glue", False): out.append([])
        tail = out.pop()
        if tail: out[-1] += tail
        return out
    ex = {i: [] for i in range(1, 18)}
    LA = OPT["la"]
    for c in range(5, 16):
        i = max(1, c - LA)
        ex[i] += wchunk(c)
        if c % 4 == 0: ex[i] += xslab(c // 4)
    ex[OPT["f1at"]] += lane0_store(sFO1)
    UA = OPT["uat"]
    ex[UA] = [I("s_mov_b32 m0, s%d" % sW1K), I("buffer_load_dwordx4 v%d, %s, s%d offen lds" % (zOV, sr(sU1, 4), sUS), tag="tdma")] + ex[UA]
    ex[UA + LA] += [I("ds_read_b64_tr_b16 %s, v%d offset:%d" % (vr(zF2 + 2 * e2, 2), zUA, e2 * 512), tag="ur") for e2 in range(2)]
    ex[OPT["tcat"]] += [I("buffer_load_dwordx4 %s, v%d, %s, 0 offen offset:%d" % (vr(vXOLD[k], 4), vXO, sr(sX, 4), 64 * k), tag="xin") for k in range(2)] \
        + touch2k(sOI, O_OB[0]) + ([] if OPT["ini2"] else touch2k(sXP, O_XB[1])) + touchsb(O_SB[1])
    for k, qq in enumerate((3, 2, 1, 0)):
        L = [I("s_lshl_b32 s72, s%d, 15" % sW), I("s_add_u32 s72, s72, %d" % (qq * 131072)), I("s_lshl_b32 s73, s%d, 12" % sW)]
        for j in range(4):
            L += [I("s_add_u32 m0, s73, %d" % (L_WO[0] + qq * 16384 + j * 1024)),
                  I("buffer_load_dwordx4 v%d, %s, s72 offen lds" % (zOV, sr(sWOA, 4)), tag="woa%d" % qq, lat=1)]
            if j < 3: L.append(I("s_add_u32 s72, s72, 8192"))
        ex[12 + k] += L
    ex[OPT["flat"]] = [I(x, tag="f1") for x in f1load()] + ((fill2k(sXP, O_XB[1], q, "sc1") + fillkv(0x8000, q)) if OPT["ini2"] else []) + ex[OPT["flat"]]
    ex[16] += [W(("lg", "ur")), I("buffer_store_dwordx4 %s, v%d, %s, s%d offen sc1" % (vr(zF2, 4), vL16, WS, sUD), tag="tst")] \
        + [I("s_mov_b64 %s, %s" % (sr(sWA, 2), sr(sWBP, 2)))] + bchunk(0) + bchunk(1)
    for i in range(1, 17):
        e.emit(W(("lg", "r%d" % (i - 1))))
        G = []
        if i < 16:
            spec = ("vm", "xl%d" % (i // 4)) if i % 4 == 0 else ("vm", "wc%d" % i)
            G = groups([W(spec), I("s_barrier")] + reads0(i))
        X = groups(ex[i]) if ex[i] else []
        M = [m for m, _ in mfmas0(i - 1)]
        slots = len(M) - 1
        allg = G + X
        per = [[] for _ in M]
        k = 1; over = max(0, len(allg) - slots)
        gi = 0
        while gi < len(allg):
            per[min(k, len(M) - 1)] += allg[gi]; gi += 1
            if over and gi < len(allg): per[min(k, len(M) - 1)] += allg[gi]; gi += 1; over -= 1
            k += 1
        for m, p in zip(M, per):
            e.emit(m); emit_all(p)
        if OPT["g0st"] and i % 2 == 0 and i < 16: stamp("k%d" % i)
    stamp("gemm0")
    e("s_cmp_lt_u32 s%d, 2" % sW)
    e("s_cselect_b64 %s, 0, -1" % sr(sHX, 2))
    emit_all(sel4_masks() + sel4(zG, zG))
    fin = [I(x) for x in finalize(zR, zG, zG + 1, zR + 2, zR + 3)]
    chk = ["v_xor_b32 v%d, v%d, v%d" % (T[4], zF1, zFL), "v_xor_b32 v%d, v%d, v%d" % (T[3], zF1 + 1, zFL + 1),
           "v_lshrrev_b32 v%d, 8, v%d" % (T[5], T[3]), "v_or_b32 v%d, v%d, v%d" % (T[4], T[4], T[5]), "v_cmp_ne_u32 vcc, 0, v%d" % T[4]]
    flush(e, [fin, cs_compact(0, zCS)])
    e(f"""
    s_mov_b32 exec_lo, 0x00f0000f
    s_mov_b32 exec_hi, 0xf0000f00
    ds_write_b64 v{zST+1}, {vr(zR+2,2)} offset:{L_ST0}
    s_mov_b64 exec, -1
    """)
    emit_all(checked(f1load(), W(("vm", "f1")), None, None, chk=chk))
    e(f"""
    v_and_b32 v{T[3]}, 15, v{T[3]}
    v_cmp_ne_u32 vcc, 0, v{T[3]}
    s_waitcnt lgkmcnt(0)
    """)
    e("s_barrier", mark="G0E")
    for t in (3, 2, 1, 0):
        e("ds_read_b64 %s, v%d offset:%d" % (vr(Z.rs(t), 2), zST, L_ST0 + t * 128), tag="st%d" % t)
        e("ds_read_b64 %s, v%d offset:%d" % (vr(Z.rs2(t), 2), zST + 2, L_ST0 + t * 128), tag="st%d" % t)
    if OPT["force"] == "slow": e("s_branch L_slow")
    elif OPT["force"] != "fast": e("s_cbranch_vccnz L_slow")
    e.vcc_pending = False

def layer0_rest():
    CURL[0] = 0
    stamp("flags")
    if OPT["stamps"]: e("s_mov_b32 s52, 0")
    q = vACC[0]
    M = Z
    def at(t): return attn(M, 0, t, M.acc(t), 254 - 2 * t, ["V%d" % t] + (["K%d" % (t - 1)] if t else []), [], ["V%d" % (t - 1)] if t else [])
    def ep(t): return [W(("lg", "st%d" % t))] + epi(M, 0, t)
    KM, VM = "0xff00ff00", None
    def masked(op, kq, vq, sbase):
        return ["s_add_u32 s73, s%d, 0x20000" % sbase, "s_mov_b32 exec_lo, 0xff00ff00", "s_mov_b32 exec_hi, 0xff00ff00",
                "buffer_%s_dwordx4 %s, v%d, %s, s%d offen sc1" % (op, vr(kq, 4), vL16, WS, sbase),
                "s_mov_b32 exec_lo, 0", "s_mov_b32 exec_hi, -1",
                "buffer_%s_dwordx4 %s, v%d, %s, s73 offen sc1" % (op, vr(vq, 4), vL16, WS),
                "s_mov_b32 exec_lo, -1"]
    def glued(L, tag, **kw):
        out = [I(x, tag=tag, glue=True, lat=kw.get("lat")) for x in L]; out[-1].glue = False
        return out
    kv = [I("v_mov_b32 v78, v%d" % M.v(3)), I("v_mov_b32 v79, v%d" % (M.v(3) + 1))] + [W(("vm", "kvinit"))] + glued(masked("store", 72, 76, sKVO), "kvst", lat=1)
    kv[-1].mark = "KVP"
    if OPT["ini2"]: kv += touch2k(sXP, O_XB[1])
    hl = masked("load", 80, 84, sKVI)
    hchk = ["v_xor_b32 v%d, v82, v74" % T[4], "v_xor_b32 v%d, v84, v74" % T[3], "v_or_b32 v%d, v%d, v%d" % (T[4], T[4], T[3]), "v_cmp_ne_u32 vcc, 0, v%d" % T[4]]
    hs = glued(hl, "halo", lat=600); hs[0].delay = ("KVP", OPT["h0d"])
    hs += checked(hl, W(("vm", "halo")), None, None, chk=hchk, mark="H")
    bg = []
    for i in range(2, 7): bg += bchunk(i, OPT["pace"])
    tp = []
    for k, qq in enumerate((3, 2, 1, 0)):
        R = 24 + 16 * (k & 1)
        tp.append(W(("vm", "woa%d" % qq)))
        for u in range(4):
            for e2 in range(2):
                tp.append(I("ds_read_b64_tr_b16 %s, v%d offset:%d" % (vr(R + 4 * u + 2 * e2, 2), zTA + (u >> 1), qq * 16384 + e2 * 512 + (u & 1) * 8), tag="tr%d" % qq, gapmin=OPT["trg"]))
        tp.append(W(("lg", "tr%d" % qq)))
        for u in range(4):
            tp.append(I("ds_write_b128 v%d, %s offset:%d" % (zTA + 2, vr(R + 4 * u, 4), qq * 16384 + u * 1024), tag="trw", gapmin=OPT["twg"]))
    tp[0].after = ["KVP"]
    f2 = [W(("vm", "tst"), after=["A2"])] + lane0_store(sFO2)
    sides = [bg, tp, ep(3) + kv + ep(2), f2, at(3), ep(1), at(2), ep(0), at(1), hs, at(0)]
    flush(e, sides, until="A0")
    flush(e, sides[2:])
    stamp("E")
    for x in bg + tp: x.gapmin = 1
    flush(e, [bg, tp])
    e.emit(W(("lg", "trw")))
    for j in range(3): emit_oloads(0, j)
    e.emit(W(("vm", "bc6")))
    e("s_barrier")
    stamp("wotr")
    for i in range(7): emit_all(breads(i, low=2))
    ex = []
    for i in range(7, 12): ex += bchunk(i, 30)
    return p2(0, None, extra=ex)

def bench():
    e("s_waitcnt vmcnt(0) lgkmcnt(0)")
    for r in list(range(24, 128)): e("v_mov_b32 v%d, 0" % r)
    e("s_mov_b32 s3, 0")
    e("L_bl:")
    e("s_cmp_eq_u32 s3, 1")
    e("s_cbranch_scc0 L_bn")
    e("s_memtime s[90:91]")
    e("s_waitcnt lgkmcnt(0)")
    e("L_bn:")
    t0 = e.t; n0 = len(e.out)
    p1(2)
    print("model cycles", e.t - t0, file=sys.stderr)
    bd = OPT["bdrop"].split(",")
    new = []
    for i in e.out[n0:]:
        rep = None
        if "bar" in bd and i.kind == "barrier": rep = "s_nop 0"
        if "dsw" in bd and i.mn.startswith("ds_write"): rep = "ds_read_b32 v96, v6"
        if "vmw" in bd and i.kind == "wait" and "vmcnt" in i.text: rep = "s_nop 0"
        if "valu" in bd and i.is_valu and "vcc" not in i.writes: rep = ""
        if "valu4" in bd and i.is_valu and "vcc" not in i.writes: rep = "v_mov_b32 v96, v97"
        if "ld" in bd and i.kind == "vmem" and "load" in i.mn: rep = "s_nop 0"
        if "st" in bd and i.kind == "vmem" and "store" in i.mn: rep = "s_nop 0"
        if "br" in bd and i.mn == "s_cbranch_vccnz": rep = "s_nop 0"
        if "lgw" in bd and i.kind == "wait" and "lgkmcnt" in i.text: rep = "s_nop 0"
        if rep is None: new.append(i)
        elif rep: new.append(Ins(rep))
    e.out[n0:] = new
    e("s_nop 7")
    e("s_add_u32 s3, s3, 1")
    e("s_cmp_lt_u32 s3, 21")
    e("s_cbranch_scc1 L_bl")
    e("s_waitcnt lgkmcnt(0)")
    e("s_memtime s[72:73]")
    e("s_waitcnt lgkmcnt(0) vmcnt(0)")
    e("s_sub_u32 s72, s72, s90")
    e("v_mov_b32 v0, s72")
    e("s_lshl_b32 s73, s2, 2")
    e("s_add_u32 s73, s73, s%d" % sW)
    e("s_lshl_b32 s73, s73, 2")
    e("s_mov_b64 exec, 1")
    e("buffer_store_dword v0, v%d, %s, s73 offen" % (vL16, sr(sOUT, 4)))

def rest():
    if OPT["bench"]:
        if ST != "sc1": bench()
        else: e("s_endpgm")
        return
    carry = layer0_rest()
    layer(1, carry); layer(2); layer(3)

prologue()
gemm0()
snap = (list(e.vm), list(e.lg), dict(e.marks), e.t, e.t_valu, e.t_mfma, dict(e.t_mem))
ST = STF
rest()
fast_ool = list(ool); ool.clear()
e("L_end:")
e("s_endpgm")
fast_text = e.text(OPT["times"]); nfast = len(e.out); tfast = e.t
e.out = []
e.vm, e.lg, e.marks, e.t, e.t_valu, e.t_mfma, e.t_mem = snap
ST = "sc1"; LD = "sc1"
e("L_slow:")
rest()

hdr = open("cdna_kernels/%s.s.ref" % NAME).read().split("; Override")[0]
out = hdr + "; Persistent fused kernel: 32 clusters of 8 workgroups x 64 same-parity rows; generated by a script.\n"
out += "; @launch grid=(256,1,1) block=(256,1,1) lds=%d\n" % LDS_BYTES
out += '.amdgcn_target "amdgcn-amd-amdhsa--gfx950"\n.text\n.globl %s\n.p2align 8\n.type %s,@function\n%s:\n' % (KN, KN, KN)
out += fast_text + "".join(fast_ool) + e.text() + "".join(ool)
out += """.section .rodata,"a"
.p2align 6
.amdhsa_kernel %s
  .amdhsa_next_free_vgpr 512
  .amdhsa_next_free_sgpr 102
  .amdhsa_accum_offset 256
  .amdhsa_group_segment_fixed_size 0
  .amdhsa_kernarg_size 72
  .amdhsa_user_sgpr_count 2
  .amdhsa_user_sgpr_kernarg_segment_ptr 1
  .amdhsa_system_sgpr_workgroup_id_x 1
  .amdhsa_float_denorm_mode_32 3
.end_amdhsa_kernel
""" % KN
open(sys.argv[1], "w").write(out)
print("fast instrs", nfast, "model cycles", int(tfast), "nop states", e.nops, "stamps", len(stamp_names), " ".join(stamp_names), file=sys.stderr)
```
